```python
import torch

def _softmax(x, axis=-1):
    return torch.softmax(x, dim=axis)

def _gelu(x):
    return torch.nn.functional.gelu(x, approximate='tanh')

def _silu(x):
    return torch.nn.functional.silu(x)

def _sigmoid(x):
    return torch.sigmoid(x)

def _layernorm(x, axis=-1, eps=1e-05):
    m = x.mean(dim=axis, keepdim=True)
    v = x.var(dim=axis, keepdim=True, unbiased=False)
    return (x - m) / torch.sqrt(v + eps)

def _scatter_add(tgt, idx, src, axis=0):
    return tgt.clone().index_add_(axis, idx, src)

def _segment_sum(src, seg, n):
    out = torch.zeros((n,) + src.shape[1:], dtype=src.dtype)
    return out.index_add_(0, seg, src)

def _pad(x, pw):
    flat = tuple((v for pair in reversed(pw) for v in pair))
    return torch.nn.functional.pad(x, flat)
kernel_name = 'recurrent_scan__memory_aug_recurrent_mem_tr__dense_activation_mish__prompt'

def setup_inputs():

    _w = lambda a: (lambda t: t.to(torch.bfloat16) if t.is_floating_point() else t)(torch.as_tensor(a))

    def _A_setup():
        B, S, Dm = (1, 2048, 512)
        H, Dh = (32, 128)
        M, seg = (8, 32)
        seg = min(seg, S)
        S = S // seg * seg
        return {'x': _w((lambda *s: torch.randn(*s, dtype=torch.bfloat16) * 0.05)(B, S, Dm)), 'mem0': _w((lambda *s: torch.randn(*s, dtype=torch.bfloat16) * 0.8)(B, M, Dm)), 'Wq': _w((lambda *s: torch.randn(*s, dtype=torch.bfloat16) * 1.6)(Dm, H, Dh) * Dm ** (-0.5)), 'Wk': _w((lambda *s: torch.randn(*s, dtype=torch.bfloat16) * 1.6)(Dm, H, Dh) * Dm ** (-0.5)), 'Wv': _w((lambda *s: torch.randn(*s, dtype=torch.bfloat16) * 0.8)(Dm, H, Dh) * Dm ** (-0.5)), 'Wo': _w((lambda *s: torch.randn(*s, dtype=torch.bfloat16) * 0.8)(H, Dh, Dm) * (H * Dh) ** (-0.5)), 'seg_len': seg}
    _A_in = _A_setup()

    def _B_setup():
        B, S, D, F = (1, 2048, 512, 1792)
        return {'x': _w((lambda *s: torch.randn(*s, dtype=torch.bfloat16) * 0.05)(B, S, D)), 'w1': _w((lambda *s: torch.randn(*s, dtype=torch.bfloat16) * 0.8)(D, F) * D ** (-0.5)), 'b1': _w((lambda *s: torch.randn(*s, dtype=torch.bfloat16) * 0.2)(F)), 'w2': _w((lambda *s: torch.randn(*s, dtype=torch.bfloat16) * 0.2)(F, D) * F ** (-0.5))}
    _B_in = _B_setup()
    return {'A_x': _A_in['x'], 'A_mem0': _A_in['mem0'], 'A_Wq': _A_in['Wq'], 'A_Wk': _A_in['Wk'], 'A_Wv': _A_in['Wv'], 'A_Wo': _A_in['Wo'], 'A_seg_len': _A_in['seg_len'], 'B_x': _B_in['x'], 'B_w1': _B_in['w1'], 'B_b1': _B_in['b1'], 'B_w2': _B_in['w2']}

def reference(A_x, A_mem0, A_Wq, A_Wk, A_Wv, A_Wo, A_seg_len, B_x, B_w1, B_b1, B_w2):

    def _A_ref(x, mem0, Wq, Wk, Wv, Wo, seg_len):
        B, S, Dm = x.shape
        H, Dh = (Wq.shape[1], Wq.shape[2])
        M = mem0.shape[1]
        scale = Dh ** (-0.5)
        n_seg = S // seg_len
        L = M + seg_len
        idx = torch.arange(L)
        mask = (idx[:, None] < M) | (idx[:, None] >= idx[None, :])
        mem = mem0
        outs = []
        for s in range(n_seg):
            xs = x[:, s * seg_len:(s + 1) * seg_len, :].clone()
            h = torch.concatenate([mem, xs], axis=1)
            q = torch.einsum('btd,dhe->bhte', h, Wq)
            k = torch.einsum('btd,dhe->bhte', h, Wk)
            v = torch.einsum('btd,dhe->bhte', h, Wv)
            scores = torch.einsum('bhqe,bhke->bhqk', q, k) * scale
            scores = torch.where(mask[None, None], scores, -1000000000.0)
            p = _softmax(scores, axis=-1)
            o = torch.einsum('bhqk,bhke->bhqe', p, v)
            o = torch.einsum('bhte,hed->btd', o, Wo)
            mem = o[:, :M, :].clone()
            outs.append(o[:, M:, :])
        return torch.concatenate(outs, axis=1)

    def _B_ref(x, w1, b1, w2):
        h = torch.einsum('bsd,df->bsf', x, w1) + b1
        sp = torch.log1p(torch.exp(-torch.abs(h))) + torch.where(h > 0, h, torch.zeros_like(h))
        act = h * torch.tanh(sp)
        return torch.einsum('bsf,fd->bsd', act, w2)
    x = A_x
    xn = _layernorm(x, axis=-1)
    s = _A_ref(xn, A_mem0, A_Wq, A_Wk, A_Wv, A_Wo, A_seg_len)
    g = _silu(_B_ref(xn, B_w1, B_b1, B_w2))
    return x + s * g
```

```python
import re

def v(i, n=1): return f"v{i}" if n == 1 else f"v[{i}:{i+n-1}]"
def a(i, n=1): return f"a{i}" if n == 1 else f"a[{i}:{i+n-1}]"
def s(i, n=1): return f"s{i}" if n == 1 else f"s[{i}:{i+n-1}]"

_REG = re.compile(r"^(-|\|)?(abs\()?([vas])(?:(\d+)|\[(\d+):(\d+)\])\)?\|?$")

def regs_of(op):
    op = op.strip()
    if op in ("vcc", "vcc_lo", "vcc_hi"): return {("s", "vcc")}
    if op in ("exec", "exec_lo", "exec_hi"): return {("s", "exec")}
    if op == "m0": return {("s", "m0")}
    m = _REG.match(op)
    if not m: return set()
    k = m.group(3)
    if m.group(4) is not None: return {(k, int(m.group(4)))}
    return {(k, i) for i in range(int(m.group(5)), int(m.group(6)) + 1)}

TRANS = ("v_exp_f32", "v_log_f32", "v_rcp_f32", "v_rsq_f32", "v_sqrt_f32", "v_sin_f32", "v_cos_f32", "v_rcp_iflag_f32")

class Ins:
    __slots__ = ("text", "op", "cls", "wr", "rd", "passes", "srcc", "dpp", "store_data", "wide", "sgpr_rd_vmem", "ab", "comment")
    def __init__(self, text):
        self.text = text
        t = text.split(";")[0].strip()
        self.cls = "other"; self.wr = set(); self.rd = set(); self.passes = 0
        self.srcc = set(); self.ab = set(); self.dpp = False; self.store_data = set(); self.wide = False
        self.sgpr_rd_vmem = set()
        if not t or t.endswith(":") or t.startswith("."):
            self.cls = "label"; self.op = ""; return
        parts = t.split(None, 1)
        self.op = op = parts[0]
        rest = parts[1] if len(parts) > 1 else ""
        rest = re.sub(r"\b(op_sel|op_sel_hi|neg_lo|neg_hi):\[[^\]]*\]", "", rest).strip()
        ops = [x.strip() for x in rest.split(",")] if rest else []
        mods = ""
        if ops:
            last = ops[-1].split()
            if last:
                ops[-1] = last[0]; mods = " ".join(last[1:])
        R = lambda i: regs_of(ops[i]) if i < len(ops) else set()
        allr = lambda lo: set().union(*[regs_of(o) for o in ops[lo:]]) if len(ops) > lo else set()
        if op.startswith("v_mfma") or op.startswith("v_smfmac"):
            self.cls = "mfma"
            self.passes = 8 if "32x32" in op else (2 if "4x4" in op else 4)
            self.wr = R(0); self.ab = R(1) | R(2)
            if op.startswith("v_smfmac"):
                self.ab |= R(3); self.srcc = R(0)
            else:
                self.srcc = R(3)
            self.rd = self.ab | self.srcc
        elif op.startswith("v_"):
            self.cls = "valu"
            self.dpp = ("dpp" in op) or ("row_" in mods) or ("quad_perm" in mods)
            if op.startswith("v_cmp"):
                self.wr = R(0); self.rd = allr(1)
            elif op.startswith("v_permlane") and "swap" in op:
                self.wr = R(0) | R(1); self.rd = R(0) | R(1); self.cls = "valu"
            elif op.startswith("v_readfirstlane") or op.startswith("v_readlane"):
                self.wr = R(0); self.rd = allr(1)
            elif op.startswith(("v_add_co", "v_sub_co", "v_addc_co", "v_subb_co")):
                self.wr = R(0) | R(1); self.rd = allr(2)
            else:
                self.wr = R(0); self.rd = allr(1)
                if op.startswith(("v_fmac", "v_mac", "v_dot2c", "v_writelane", "v_pk_fmac")) or "d16_hi" in op or self.dpp:
                    self.rd |= R(0)
                if op.startswith("v_cndmask") and len(ops) == 3: self.rd |= {("s", "vcc")}
        elif op.startswith(("global_", "buffer_", "flat_")):
            self.cls = "vmem"
            is_lds = ("lds" in op) or (" lds" in " " + mods)
            if "store" in op:
                self.rd = allr(0)
                if op.startswith("global_"): self.store_data = R(1)
                else: self.store_data = R(0)
                self.wide = ("x4" in op) or ("x3" in op)
            elif "atomic" in op:
                self.rd = allr(0)
                if "sc0" in mods: self.wr = R(0)
            elif is_lds:
                self.rd = allr(0) | {("s", "m0")}
            elif op.startswith(("buffer_inv", "buffer_wbl2")):
                pass
            else:
                self.wr = R(0); self.rd = allr(1)
                if "d16" in op: self.rd |= R(0)
            self.sgpr_rd_vmem = {r for r in self.rd if r[0] == "s"}
        elif op.startswith("ds_"):
            self.cls = "ds"
            if op.startswith(("ds_write", "ds_add", "ds_max", "ds_min")):
                self.rd = allr(0)
            else:
                self.wr = R(0); self.rd = allr(1)
        elif op.startswith("s_"):
            self.cls = "salu"
            if op.startswith(("s_cmp", "s_cbranch", "s_branch", "s_waitcnt", "s_nop", "s_barrier", "s_sleep", "s_endpgm", "s_setprio", "s_bitcmp")):
                self.rd = allr(0)
            else:
                self.wr = R(0); self.rd = allr(1)
        else:
            raise ValueError("unknown op " + text)

def overlap(x, y): return bool(x & y)

def need_wait(p, c):
    n = 0
    vw = {r for r in p.wr if r[0] in "va"}
    sw = {r for r in p.wr if r[0] == "s"}
    if p.cls == "valu":
        if p.op.startswith("v_dot2") and c.cls in ("valu", "vmem", "ds") and overlap(vw, c.rd | c.wr):
            if not (c.op == p.op): n = max(n, 3)
        if c.cls == "mfma" and overlap(vw, c.rd): n = max(n, 2)
        if c.cls == "valu":
            if c.dpp and overlap(vw, c.rd): n = max(n, 2)
            if c.op.startswith("v_permlane") and overlap(vw, c.rd): n = max(n, 2)
            if c.op.startswith(("v_readlane", "v_readfirstlane")) and overlap(vw, c.rd): n = max(n, 1)
            if overlap(sw, c.rd):
                n = max(n, 4 if c.op.startswith(("v_readlane", "v_writelane")) else 2)
            if p.op.replace("_e32", "").replace("_e64", "") in TRANS and overlap(vw, c.rd): n = max(n, 1)
        if c.cls == "vmem" and overlap(sw, c.sgpr_rd_vmem): n = max(n, 5)
        if c.cls == "salu" and overlap(sw, c.rd) and not c.op.startswith("s_cbranch"): n = max(n, 1)
    if p.cls == "mfma":
        P = p.passes
        big = {2: 5, 4: 8, 8: 12, 16: 20}[P]
        if c.cls == "mfma":
            if overlap(p.wr, c.ab): n = max(n, big)
            if overlap(p.wr, c.srcc):
                if not (p.wr == c.srcc and p.passes == c.passes and p.op == c.op):
                    n = max(n, {2: 4, 4: 6, 8: 10, 16: 18}[P])
                elif P == 2: n = max(n, 2)
            elif overlap(p.wr, c.wr):
                n = max(n, big)
        elif c.cls in ("valu", "vmem", "ds"):
            if overlap(p.wr, c.rd | c.wr): n = max(n, big)
            if c.cls == "valu" and overlap(p.srcc, c.wr): n = max(n, {2: 1, 4: 3, 8: 7, 16: 15}[P])
    if p.cls == "vmem" and p.wide and c.cls == "valu" and overlap(p.store_data, c.wr): n = max(n, 2)
    if p.cls == "vmem" and p.wide and c.cls in ("ds", "vmem") and overlap(p.store_data, c.wr): n = max(n, 1)
    if p.cls == "salu" and ("s", "m0") in p.wr and c.cls == "vmem" and ("s", "m0") in c.rd: n = max(n, 1)
    if p.cls == "salu" and ("s", "exec") in p.wr and c.cls == "valu" and c.dpp: n = max(n, 1)
    return n

class K:
    def __init__(self):
        self.ins = []
        self.uid = 0
    def __call__(self, text):
        for line in text.split("\n"):
            line = line.strip()
            if line: self.ins.append(line)
    def label(self, name): self.ins.append(name + ":")
    def newlabel(self, base):
        self.uid += 1
        return f"{base}_{self.uid}"
    def finish(self, window=40):
        out = []; hist = []
        pos = 0; inserted = 0; mfma_free = 0
        for line in self.ins:
            I = Ins(line)
            if I.cls == "label":
                out.append(line); continue
            t = pos
            if I.cls == "mfma": t = max(t, mfma_free)
            need = 0
            for (p, ppos) in hist:
                w = need_wait(p, I)
                if w:
                    have = (t if p.cls == "mfma" else pos) - ppos - 1
                    need = max(need, w - have)
            if need > 0:
                k = need + (t - pos if I.cls == "mfma" and False else 0)
                inserted += k
                kk = k
                while kk > 0:
                    m = min(kk, 16)
                    out.append(f"s_nop {m-1}"); kk -= m
                pos += k
                t = pos
                if I.cls == "mfma": t = max(t, mfma_free)
                for (p, ppos) in hist:
                    w = need_wait(p, I)
                    if w:
                        have = (t if p.cls == "mfma" else pos) - ppos - 1
                        while have < w:
                            out.append("s_nop 0"); pos += 1; inserted += 1
                            t = pos
                            if I.cls == "mfma": t = max(t, mfma_free)
                            have = (t if p.cls == "mfma" else pos) - ppos - 1
            out.append(line)
            ns = 1
            if I.op == "s_nop": ns = int(line.split()[1]) + 1
            if I.cls == "mfma":
                pos = t
                mfma_free = t + I.passes
            hist.append((I, pos)); pos += ns
            hist = [(p, q) for (p, q) in hist if pos - q <= window]
        self.nops = inserted
        return "\n".join(("" if l.endswith(":") else "    ") + l for l in out)

KD = """
.section .rodata,"a"
.p2align 6
.amdhsa_kernel {name}
  .amdhsa_next_free_vgpr {vgpr}
  .amdhsa_next_free_sgpr 102
  .amdhsa_accum_offset {acc}
  .amdhsa_group_segment_fixed_size 0
  .amdhsa_kernarg_size 112
  .amdhsa_user_sgpr_count 2
  .amdhsa_user_sgpr_kernarg_segment_ptr 1
  .amdhsa_system_sgpr_workgroup_id_x 1
  .amdhsa_float_denorm_mode_32 3
.end_amdhsa_kernel
.text
"""
def kernel_text(name, body, vgpr, acc):
    return (f".globl {name}\n.p2align 8\n.type {name},@function\n{name}:\n" + body + "\n" + KD.format(name=name, vgpr=vgpr, acc=acc))
```

```python
from asm import *
from layout import *
import math, struct

def f2u(x): return struct.unpack("<I", struct.pack("<f", x))[0]

L_WO = 0
L_KS = 131072
L_MX = 147456
L_QX = 155648
L_KX = L_QX + 2304
L_OX = L_KX + 2304
RSX = 288
S_H, S_W = 3, 4
WS = 8
WSRD = 12
S_STEP = 20
S_MEMC, S_MEMN, S_MEMP = 21, 22, 23
S_INBC, S_INBC1, S_INBP = 24, 25, 26
S_KFN, S_VFN, S_KM, S_VM = 27, 28, 29, 30
S_KSM0 = 31
S_SPIN = 32
S_C = 33
S_T0, S_T1, S_T2 = 34, 35, 36
S_ERR = 37
S_KSLOT = 38
S_FLG = 39
S_JUNK = 19
V_IDX, V_L16, V_FLV, V_MEMP, V_MEMW = 1, 2, 3, 4, 5
V_MR = 6
V_PART, V_INB, V_PUB = 9, 10, 11
V_SEL = 12
V_QW, V_QR, V_KR, V_OW, V_WO, V_KMO, V_VMO = 16, 17, 18, 19, 20, 21, 22
V_TMP = 23
V_WARM = 0
AQ, AK, AV = 24, 32, 40
MA = [48, 52, 56, 60, 64, 68, 72, 76]
KSEG = 80
QB = [48, 52, 112, 116]
KA = [80, 84, 88, 92]
VSEG = 120
WSLOT = [96, 104, 80, 88, 112, 56, 64, 72, 120]
WACC = [28, 36, 40, 44]
OA = [24, 32, 48, 52]
OUT = [120, 124]
WV0 = 128

def wfrag(mat, t, u):
    f = t * 8 + u
    if mat == 0: return a(8 * f, 8)
    if mat == 1: return a(128 + 8 * f, 8)
    return v(WV0 + 8 * f, 8)
def wfrag_pair(mat, t, u, rp):
    f = t * 8 + u
    if mat == 0: return a(8 * f + 2 * rp, 2)
    if mat == 1: return a(128 + 8 * f + 2 * rp, 2)
    return v(WV0 + 8 * f + 2 * rp, 2)

def srd(k, r, ptr, nbytes):
    k(f"s_mov_b32 s{r}, s{ptr}")
    k(f"s_and_b32 s{r+1}, s{ptr+1}, 0xffff")
    k(f"s_mov_b32 s{r+2}, {nbytes}")
    k(f"s_mov_b32 s{r+3}, 0x20000")

class Stamps:
    def __init__(self, k, on): self.k = k; self.on = on; self.used = []
    def init(self, n=16):
        if not self.on: return
        for i in range(n): self.k(f"s_mov_b32 s{44+i}, 0")
        self.k("s_memtime s[40:41]\ns_waitcnt lgkmcnt(0)\ns_mov_b32 s42, s40")
    def __call__(self, i):
        if not self.on: return
        self.used.append(i)
        self.k(f"s_memtime s[{64+2*i}:{65+2*i}]")
    def collect(self):
        if not self.on: return
        self.k("s_waitcnt lgkmcnt(0)")
        prev = 42
        for i in self.used:
            self.k(f"s_sub_u32 s43, s{64+2*i}, s{prev}\ns_add_u32 s{44+i}, s{44+i}, s43")
            prev = 64 + 2 * i
        self.k(f"s_mov_b32 s42, s{prev}")

def sm(k, mat, t, u):
    acc = [AQ, AK, AV][mat] + 4 * t
    k(f"v_smfmac_f32_16x16x64_bf16 {v(acc,4)}, {v(MA[u],4)}, {wfrag(mat,t,u)}, v{V_IDX}")

def chain_setup(k, P):
    k(f"""
    s_load_dwordx8 s[16:23], s[0:1], {A_WQ}
    s_load_dwordx2 s[24:25], s[0:1], {A_MEM0}
    s_load_dwordx2 s[26:27], s[0:1], {D_WS}
    v_lshrrev_b32 v24, 6, v0
    v_and_b32 v0, 63, v0
    v_readfirstlane_b32 s{S_W}, v24
    v_and_b32 v24, 15, v0          ; n
    v_lshrrev_b32 v25, 4, v0       ; g
    v_lshlrev_b32 v{V_L16}, 4, v0
    v_and_b32 v26, 1, v0
    v_mul_u32_u24 v26, 0xaaaa, v26
    v_add_u32 v{V_IDX}, 0x4444, v26
    s_lshl_b32 s5, s{S_W}, 11
    v_add_u32 v{V_MEMP}, s5, v{V_L16}
    v_add_u32 v{V_MEMW}, {L_MX}, v{V_MEMP}
    v_xor_b32 v{V_MR}, 2048, v{V_MEMW}
    v_xor_b32 v{V_MR+1}, 4096, v{V_MEMW}
    v_xor_b32 v{V_MR+2}, 6144, v{V_MEMW}
    s_lshl_b32 s5, s{S_W}, 4
    v_lshrrev_b32 v26, 1, v24
    v_add_u32 v26, s5, v26
    v_lshlrev_b32 v26, 12, v26
    s_lshl_b32 s5, s{S_H}, 7
    v_add_u32 v26, s5, v26
    v_and_b32 v27, 1, v24
    v_lshlrev_b32 v27, 6, v27
    v_add_u32 v26, v26, v27
    v_lshlrev_b32 v27, 4, v25
    v_add_u32 v{V_PART}, v26, v27
    s_and_b32 s7, s{S_W}, 1
    s_lshl_b32 s6, s{S_H}, 1
    s_add_u32 s6, s6, s7
    s_lshl_b32 s5, s6, 12
    v_add_u32 v{V_INB}, s5, v{V_L16}
    s_lshr_b32 s5, s6, 3
    s_lshl_b32 s5, s5, 10
    s_bfe_u32 s7, s6, 0x20001
    s_lshl_b32 s7, s7, 8
    s_add_u32 s5, s5, s7
    s_and_b32 s7, s6, 1
    s_lshl_b32 s7, s7, 4
    s_add_u32 s5, s5, s7
    v_and_b32 v26, 3, v24
    v_lshlrev_b32 v26, 1, v26
    v_and_b32 v27, 1, v25
    v_add_u32 v28, v26, v27          ; m
    v_lshlrev_b32 v26, 5, v28
    v_bfe_u32 v30, v24, 2, 1         ; nb
    v_lshl_add_u32 v26, v30, 3, v26
    v_add_u32 v{V_PUB}, s5, v26
    v_and_b32 v26, 3, v24
    v_bfe_u32 v27, v24, 2, 1
    v_lshlrev_b32 v27, 4, v27
    v_mov_b32 v29, 0x3f80
    v_lshlrev_b32 v29, v27, v29
    """)
    for r in range(4):
        k(f"v_cmp_eq_u32 vcc, {r}, v26\nv_cndmask_b32 v{V_SEL+r}, 0, v29, vcc")
    k(f"""
    v_mul_u32_u24 v26, {2*RSX}, v25
    v_lshrrev_b32 v27, 2, v24
    v_lshlrev_b32 v27, 4, v27
    v_add_u32 v26, v26, v27
    v_and_b32 v27, 3, v24
    v_lshlrev_b32 v27, 1, v27
    v_add_u32 v26, v26, v27
    s_lshl_b32 s5, s{S_W}, 6
    s_add_u32 s5, s5, {L_QX}
    v_add_u32 v{V_QW}, s5, v26
    v_and_b32 v26, 7, v24
    v_mul_u32_u24 v26, {RSX}, v26
    v_lshlrev_b32 v27, 4, v25
    v_add_u32 v26, v26, v27
    v_add_u32 v{V_QR}, {L_QX}, v26
    ; m'(x) = 2*(x>>2) + (x&1)
    v_lshrrev_b32 v26, 2, v24
    v_lshlrev_b32 v26, 1, v26
    v_and_b32 v29, 1, v24
    v_add_u32 v29, v26, v29
    v_mul_u32_u24 v26, {RSX}, v29
    v_add_u32 v26, v26, v27
    v_add_u32 v{V_KR}, {L_KX}, v26
    v_lshlrev_b32 v26, 8, v29
    v_add_u32 v26, v26, v27
    s_lshl_b32 s5, s{S_W}, 6
    v_add_u32 v{V_KMO}, s5, v26
    v_lshlrev_b32 v26, 3, v0
    s_lshl_b32 s5, s{S_W}, 9
    v_add_u32 v{V_VMO}, s5, v26
    v_and_b32 v26, 7, v24
    v_lshlrev_b32 v26, 4, v26
    v_lshrrev_b32 v27, 1, v25
    v_lshlrev_b32 v27, 7, v27
    v_add_u32 v26, v26, v27
    v_and_b32 v27, 1, v25
    v_lshlrev_b32 v27, 3, v27
    v_add_u32 v26, v26, v27
    s_lshl_b32 s5, s{S_W}, 9
    s_add_u32 s5, s5, {L_OX}
    v_add_u32 v{V_OW}, s5, v26
    s_lshl_b32 s5, s{S_W}, 15
    v_add_u32 v{V_WO}, s5, v{V_L16}
    s_waitcnt lgkmcnt(0)
    """)
    srd(k, WS, 26, WS_BYTES)
    srd(k, WSRD, 24, 8192)
    k(f"""
    s_cmp_ge_u32 s{S_W}, 2
    s_cbranch_scc1 {P}_nopub0
    s_lshr_b32 s5, s6, 3
    s_lshl_b32 s5, s5, 6
    s_and_b32 s7, s6, 7
    s_lshl_b32 s7, s7, 1
    s_add_u32 s5, s5, s7
    s_lshl_b32 s5, s5, 1
    v_lshlrev_b32 v26, 10, v28
    v_lshl_add_u32 v26, v30, 1, v26
    v_add_u32 v26, s5, v26
    buffer_load_ushort v30, v26, s[{WSRD}:{WSRD+3}], 0 offen
    buffer_load_ushort v31, v26, s[{WSRD}:{WSRD+3}], 0 offen offset:32
    buffer_load_ushort v32, v26, s[{WSRD}:{WSRD+3}], 0 offen offset:64
    buffer_load_ushort v33, v26, s[{WSRD}:{WSRD+3}], 0 offen offset:96
    s_waitcnt vmcnt(0)
    v_lshl_or_b32 v30, v31, 16, v30
    v_lshl_or_b32 v31, v33, 16, v32
    s_mov_b32 s5, {MEMR}
    buffer_store_dwordx2 v[30:31], v{V_PUB}, s[{WS}:{WS+3}], s5 offen sc1
    """)
    k.label(f"{P}_nopub0")
    k(f"""
    v_lshrrev_b32 v26, 4, v0
    v_lshlrev_b32 v27, 1, v26
    v_and_b32 v28, 15, v0
    v_xor_b32 v27, v27, v28
    v_lshlrev_b32 v27, 4, v27
    v_lshlrev_b32 v26, 13, v26
    v_add_u32 v26, v26, v27
    s_lshl_b32 s5, s{S_H}, 8
    v_add_u32 v24, s5, v26
    v_xor_b32 v25, 128, v24
    v_bfe_u32 v28, v0, 2, 2        ; r
    v_and_b32 v29, 3, v0           ; c
    v_lshrrev_b32 v30, 4, v0       ; gB
    v_and_b32 v31, 1, v28          ; r&1
    v_lshrrev_b32 v32, 1, v28      ; r>>1
    v_and_b32 v33, 1, v30          ; gB&1
    v_lshrrev_b32 v34, 1, v30      ; gB>>1
    v_lshlrev_b32 v35, 4, v31
    v_lshl_add_u32 v35, v34, 2, v35
    v_lshl_add_u32 v35, v32, 1, v35
    v_add_u32 v35, v35, v33        ; Lrow
    v_lshlrev_b32 v35, 8, v35
    v_lshlrev_b32 v36, 2, v31
    v_lshl_add_u32 v36, v32, 1, v36
    v_add_u32 v36, v36, v33        ; F
    v_lshlrev_b32 v36, 1, v36      ; 2F
    v_lshrrev_b32 v37, 1, v29      ; c>>1
    s_lshl_b32 s5, s{S_W}, 2
    v_add_u32 v37, s5, v37
    v_xor_b32 v37, v37, v36
    v_lshlrev_b32 v37, 4, v37
    v_and_b32 v38, 1, v29
    v_lshl_add_u32 v37, v38, 3, v37
    v_add_u32 v35, v35, v37
    s_lshl_b32 s5, s{S_W}, 15
    v_add_u32 v26, s5, v35
    v_xor_b32 v27, 32, v26
    """)
    for mat in range(3):
        srd(k, WSRD, 16 + 2 * mat, 512 * 4096 * 2)
        k(f"s_lshl_b32 s5, s{S_W}, 20\ns_lshl_b32 s6, s{S_W}, 15")
        for y in range(32):
            k(f"s_mov_b32 m0, s6")
            k(f"buffer_load_dwordx4 v{24 + ((y >> 2) & 1)}, s[{WSRD}:{WSRD+3}], s5 offen lds")
            if y < 31: k(f"s_add_u32 s5, s5, 32768\ns_add_u32 s6, s6, 1024")
        k("s_waitcnt vmcnt(0)\ns_barrier")
        for t in range(2):
            for u in range(8):
                k(f"v_xor_b32 v28, {u*16384}, v{26+t}")
                for rp in range(4):
                    off = 8192 * (rp & 1) + 2048 * (rp >> 1)
                    k(f"ds_read_b64_tr_b16 {wfrag_pair(mat,t,u,rp)}, v28 offset:{off}")
                if u % 2 == 1: k("s_waitcnt lgkmcnt(0)")
        k("s_waitcnt lgkmcnt(0)\ns_barrier")
    srd(k, WSRD, 22, 4096 * 512 * 2)
    k(f"""
    v_lshrrev_b32 v26, 4, v0
    v_and_b32 v27, 1, v26
    v_lshlrev_b32 v27, 2, v27        ; 4*(row&1)
    v_and_b32 v28, 15, v0
    v_xor_b32 v27, v27, v28
    v_lshlrev_b32 v27, 4, v27
    v_lshlrev_b32 v26, 10, v26
    v_add_u32 v26, v26, v27
    s_lshl_b32 s5, s{S_W}, 8
    v_add_u32 v24, s5, v26
    v_xor_b32 v25, 128, v24
    s_lshl_b32 s5, s{S_H}, 17
    s_lshl_b32 s6, s{S_W}, 15
    """)
    for y in range(32):
        k("s_mov_b32 m0, s6")
        k(f"buffer_load_dwordx4 v{24 + (y & 1)}, s[{WSRD}:{WSRD+3}], s5 offen lds")
        if y < 31: k("s_add_u32 s5, s5, 4096\ns_add_u32 s6, s6, 1024")
    k(f"""
    v_lshlrev_b32 v35, 3, v34
    v_lshl_add_u32 v35, v33, 2, v35
    v_add_u32 v35, v35, v31
    v_lshlrev_b32 v35, 8, v35
    v_lshlrev_b32 v36, 2, v31
    v_lshl_add_u32 v36, v33, 3, v36
    v_lshrrev_b32 v37, 1, v29
    v_lshl_add_u32 v37, v32, 1, v37
    v_xor_b32 v37, v37, v36
    v_lshlrev_b32 v37, 4, v37
    v_lshl_add_u32 v37, v38, 3, v37
    v_add_u32 v35, v35, v37
    s_lshl_b32 s5, s{S_W}, 15
    v_add_u32 v28, s5, v35
    s_waitcnt vmcnt(0)
    """)
    TMP = 48
    for half in range(2):
        for tau in range(4):
            k(f"v_xor_b32 v29, {64*tau}, v28")
            for e2 in range(2):
                eb = 2 * half + e2
                for rp in range(4):
                    off = (32 * eb + 16 * (rp >> 1) + 2 * (rp & 1)) * 256
                    k(f"ds_read_b64_tr_b16 {v(TMP+16*tau+8*e2+2*rp,2)}, v29 offset:{off}")
            k("s_waitcnt lgkmcnt(0)")
        for tau in range(4):
            for e2 in range(2):
                for hf in range(2):
                    k(f"ds_write_b128 v{V_WO}, {v(TMP+16*tau+8*e2+4*hf,4)} offset:{half*16384+tau*4096+e2*2048+hf*1024}")
        k("s_waitcnt lgkmcnt(0)")
    k("s_barrier")
    k(f"""
    v_and_b32 v24, 15, v0
    v_lshlrev_b32 v24, 7, v24
    v_bfe_u32 v25, v0, 4, 1
    v_lshlrev_b32 v25, 24, v25
    s_lshl_b32 s5, s{S_W}, 11
    v_add_u32 v24, s5, v24
    v_add_u32 v{V_WARM}, v24, v25
    """)

def step_offsets(k):
    k(f"""
    s_and_b32 s5, s{S_STEP}, 3
    s_lshl_b32 s5, s5, 13
    s_add_u32 s{S_MEMC}, s5, {MEMR}
    s_add_u32 s5, s{S_STEP}, 1
    s_and_b32 s5, s5, 3
    s_lshl_b32 s5, s5, 13
    s_add_u32 s{S_MEMN}, s5, {MEMR}
    s_add_u32 s5, s{S_STEP}, 3
    s_and_b32 s5, s5, 3
    s_lshl_b32 s5, s5, 13
    s_add_u32 s{S_MEMP}, s5, {MEMR}
    s_and_b32 s5, s{S_STEP}, 1
    s_lshl_b32 s6, s5, 18
    s_add_u32 s{S_INBC}, s6, {INBOX}
    s_add_u32 s{S_INBC1}, s{S_INBC}, 32768
    s_xor_b32 s6, s6, 0x40000
    s_add_u32 s{S_INBP}, s6, {INBOX}
    s_lshl_b32 s6, s5, 13
    s_add_u32 s{S_KSLOT}, s6, {L_KS}
    s_xor_b32 s6, s6, 8192
    s_lshl_b32 s7, s{S_W}, 11
    s_add_u32 s6, s6, s7
    s_add_u32 s{S_KSM0}, s6, {L_KS}
    s_lshl_b32 s5, s{S_H}, 6
    s_add_u32 s5, s5, s{S_STEP}
    s_add_u32 s5, s5, 1
    s_lshl_b32 s5, s5, 13
    s_add_u32 s{S_KFN}, s5, {KF}
    s_add_u32 s{S_VFN}, s5, {VF}
    s_lshl_b32 s5, s{S_STEP}, 5
    s_add_u32 s5, s5, s{S_H}
    s_lshl_b32 s5, s5, 11
    s_add_u32 s{S_KM}, s5, {KM}
    s_add_u32 s{S_VM}, s5, {VM}
    """)

def poll(k, P, name, r0, voff, soff, tmp, tmp2, cnt=None):
    L = f"{P}_{name}"
    k(f"s_mov_b32 s{S_SPIN}, 0")
    k.label(L)
    k(f"buffer_load_dwordx4 {v(r0,4)}, v{voff}, s[{WS}:{WS+3}], s{soff} offen sc1")
    k(f"buffer_load_dwordx4 {v(r0+4,4)}, v{voff}, s[{WS}:{WS+3}], s{soff} offen offset:1024 sc1")
    k(f"s_add_u32 s{S_SPIN}, s{S_SPIN}, 1")
    if cnt is not None: k(f"s_add_u32 s{cnt}, s{cnt}, 1")
    k(f"s_cmp_gt_u32 s{S_SPIN}, 20000")
    k(f"s_cbranch_scc1 {L}_fail")
    k("s_waitcnt vmcnt(0)")
    k(f"v_max3_u32 v{tmp}, v{r0}, v{r0+1}, v{r0+2}")
    k(f"v_max3_u32 v{tmp2}, v{r0+3}, v{r0+4}, v{r0+5}")
    k(f"v_max3_u32 v{tmp}, v{tmp}, v{r0+6}, v{r0+7}")
    k(f"v_max_u32 v{tmp}, v{tmp}, v{tmp2}")
    k(f"v_cmp_eq_u32 vcc, -1, v{tmp}")
    k(f"s_cbranch_vccnz {L}")
    k(f"s_branch {L}_ok")
    k.label(f"{L}_fail")
    k(f"s_add_u32 s{S_ERR}, s{S_ERR}, 1")
    k("s_waitcnt vmcnt(0)")
    k.label(f"{L}_ok")

def ilv(k, main, fill, start=0, per=1):
    fill = list(fill)
    for i, m in enumerate(main):
        k(m)
        if i >= start:
            for _ in range(per):
                if fill: k(fill.pop(0))
    for f in fill: k(f)

def smt(mat, t, u):
    acc = [AQ, AK, AV][mat] + 4 * t
    return f"v_smfmac_f32_16x16x64_bf16 {v(acc,4)}, {v(MA[u],4)}, {wfrag(mat,t,u)}, v{V_IDX}"

def chain_loop(k, P, stamps=False, dbg=True, D1=0, D2=0, X='', flags=False, sc=''):
    ST = Stamps(k, stamps)
    WSs = f"s[{WS}:{WS+3}]"
    c = (128 ** -0.5) * math.log2(math.e)
    S_ONES = 41 if not stamps else 62
    S_RST = 18
    k(f"s_mov_b32 s{S_C}, {f2u(c):#x}")
    k(f"s_mov_b32 s{S_ONES}, 0x3f803f80")
    k(f"s_mov_b32 s{S_ERR}, 0")
    k(f"s_lshl_b32 s5, s{S_W}, 8\ns_add_u32 s{S_JUNK}, s5, {L_OX + 2048}")
    S_FR, S_FC, S_FNEED, S_FOFF, S_KVMF = 16, 17, 39, 7, 6
    S_FOFF = 63 if not stamps else 61
    S_KVMF = 60
    def flag_spin(tag):
        L = k.newlabel(f"{P}_{tag}")
        k(f"v_readfirstlane_b32 s5, v{V_FLV}")
        k(f"s_cmp_ge_u32 s5, s{S_FNEED}\ns_cbranch_scc1 {L}_ok")
        k(f"s_mov_b32 s{S_SPIN}, 0")
        k.label(L)
        k(f"v_mov_b32 v{V_FLV}, 0")
        k(f"buffer_load_dword v{V_FLV}, v{V_FLV}, {WSs}, s{S_FOFF} offen sc1")
        k(f"s_add_u32 s{S_SPIN}, s{S_SPIN}, 1\ns_cmp_gt_u32 s{S_SPIN}, 0x8000\ns_cbranch_scc1 {L}_fail")
        k(f"s_waitcnt vmcnt(0)\nv_readfirstlane_b32 s5, v{V_FLV}")
        k(f"s_cmp_ge_u32 s5, s{S_FNEED}\ns_cbranch_scc0 {L}\ns_branch {L}_ok")
        k.label(f"{L}_fail")
        k(f"s_add_u32 s{S_ERR}, s{S_ERR}, 1\ns_waitcnt vmcnt(0)")
        k.label(f"{L}_ok")
    def flag_load():
        return [f"s_lshl_b32 s5, s{S_H}, 4", f"s_lshl_b32 s{S_FOFF}, s{S_FR}, 2", f"s_add_u32 s{S_FOFF}, s{S_FOFF}, s5",
                f"s_add_u32 s{S_FOFF}, s{S_FOFF}, {FLAGS + F_KV}", f"s_mov_b32 s{S_FNEED}, s{S_FC}",
                f"s_add_u32 s5, s{S_STEP}, 2", f"s_cmp_ge_u32 s5, {NSEG}", f"s_cselect_b32 s{S_FNEED}, 0, s{S_FNEED}",
                f"v_mov_b32 v{V_FLV}, 0",
                f"buffer_load_dword v{V_FLV}, v{V_FLV}, {WSs}, s{S_FOFF} offen sc1",
                f"s_add_u32 s{S_FR}, s{S_FR}, 1", f"s_cmp_eq_u32 s{S_FR}, {RQ}",
                f"s_cselect_b32 s{S_FR}, 0, s{S_FR}", f"s_addc_u32 s{S_FC}, s{S_FC}, 0"]
    if flags:
        k(f"s_lshl_b32 s5, s{S_H}, 4\ns_lshl_b32 s6, s{S_W}, 2\ns_add_u32 s5, s5, s6\ns_add_u32 s{S_KVMF}, s5, {FLAGS + F_KVM}")
        k(f"s_lshl_b32 s5, s{S_H}, 4\ns_add_u32 s{S_FOFF}, s5, {FLAGS + F_KV}\ns_mov_b32 s{S_FNEED}, 1\nv_mov_b32 v{V_FLV}, 0")
        flag_spin("f0")
        k(f"s_add_u32 s{S_FOFF}, s{S_FOFF}, 4\nv_mov_b32 v{V_FLV}, 0")
        k(f"buffer_load_dword v{V_FLV}, v{V_FLV}, {WSs}, s{S_FOFF} offen sc1")
        k(f"s_mov_b32 s{S_FR}, {2 % RQ}\ns_mov_b32 s{S_FC}, {2 // RQ + 1}")
    k(f"""
    s_lshl_b32 s5, s{S_H}, 19
    s_add_u32 s6, s5, {KF}
    s_lshl_b32 s7, s{S_W}, 11
    s_add_u32 s7, s7, {L_KS}
    s_mov_b32 m0, s7
    buffer_load_dwordx4 v{V_MEMP}, {WSs}, s6 offen lds
    buffer_load_dwordx4 v{V_MEMP}, {WSs}, s6 offen offset:1024 lds
    s_mov_b32 s{S_STEP}, 0
    """)
    for r in range(AQ, AQ + 24): k(f"v_mov_b32 v{r}, 0")
    SENT = 116
    for r in range(4): k(f"v_mov_b32 v{SENT+r}, -1")
    def offsets():
        step_offsets(k)
        k(f"s_lshl_b32 s5, s{S_H}, 13\ns_add_u32 s{S_RST}, s{S_INBP}, s5")
        k(f"s_sub_u32 s{S_T0}, s{S_VFN}, 8192")
    offsets()
    k("s_waitcnt vmcnt(0)")
    ST.init()
    k.label(f"{P}_step")
    poll(k, P, "pm", MA[0], V_MEMP, S_MEMC, V_TMP, MA[2], cnt=58 if stamps else None)
    ST(0)
    k(f"ds_write_b128 v{V_MEMW}, {v(MA[0],4)}")
    k(f"ds_write_b128 v{V_MEMW}, {v(MA[1],4)} offset:1024")
    if dbg:
        k(f"s_lshl_b32 s5, s{S_STEP}, 13\ns_add_u32 s5, s5, {MEMDBG}")
        k(f"buffer_store_dwordx4 {v(MA[0],4)}, v{V_MEMP}, {WSs}, s5 offen")
        k(f"buffer_store_dwordx4 {v(MA[1],4)}, v{V_MEMP}, {WSs}, s5 offen offset:1024")
    own = [smt(mat, t, u) for u in (0, 1) for mat in range(3) for t in range(2)]
    VM_ = [[f"buffer_load_dwordx4 {v(VSEG,4)}, v{V_MEMP}, {WSs}, s{S_T0} offen"],
           [f"buffer_load_dwordx4 {v(VSEG+4,4)}, v{V_MEMP}, {WSs}, s{S_T0} offen offset:1024"],
           [f"buffer_store_dwordx4 {v(SENT,4)}, v{V_MEMP}, {WSs}, s{S_RST} offen {sc}"],
           [f"buffer_store_dwordx4 {v(SENT,4)}, v{V_MEMP}, {WSs}, s{S_RST} offen offset:1024 {sc}"],
           [f"s_cmp_ge_u32 s{S_W}, 2", f"s_cbranch_scc1 {P}_nomr",
            f"buffer_store_dwordx2 {v(SENT,2)}, v{V_PUB}, {WSs}, s{S_MEMP} offen {sc}", f"{P}_nomr:"] +
           ([f"v_mov_b32 v{MA[0]}, s{S_STEP}", "s_mov_b64 exec, 1",
             f"buffer_store_dword v{MA[0]}, v{V_L16}, {WSs}, s{S_KVMF} offen sc1", "s_mov_b64 exec, -1"] if flags else []),
           (["@spin"] if flags else []) + [f"s_mov_b32 m0, s{S_KSM0}", f"buffer_load_dwordx4 v{V_MEMP}, {WSs}, s{S_KFN} offen lds"],
           [f"buffer_load_dwordx4 v{V_MEMP}, {WSs}, s{S_KFN} offen offset:1024 lds"],
           [f"s_mov_b32 m0, s{S_JUNK}", "s_mov_b64 exec, 0xffff0000",
            f"buffer_load_dword v{V_WARM}, {WSs}, s{S_KFN} offen lds", "s_mov_b64 exec, -1"] + (flag_load() if flags else [])]
    def bgop():
        if VM_:
            for x in VM_.pop(0):
                if x == "@spin": flag_spin("fs")
                else: k(x)
    for i, m in enumerate(own[:6]):
        k(m)
        if i in (0, 4): bgop()
    k("s_waitcnt lgkmcnt(0)\ns_barrier")
    ST(1)
    rd = [f"ds_read_b128 {v(MA[uu],4)}, v{V_MR + uu//2 - 1} offset:{1024*(uu&1)}" for uu in range(2, 8)]
    k(rd[0])
    ilv(k, own[6:], rd[1:])
    k(f"v_add_u32 v{V_TMP}, s{S_KSLOT}, v{V_L16}")
    ST(2)
    krd = [f"ds_read_b128 {v(KSEG+16*T+4*ks,4)}, v{V_TMP} offset:{(4*T+ks)*1024}" for T in range(2) for ks in range(4)]
    nrd = 0
    for u in range(2, 8):
        k(f"s_waitcnt lgkmcnt({min(15, (7 - u) + nrd)})")
        for t in range(2):
            k(smt(0, t, u))
            if krd and u >= 3: k(krd.pop(0)); nrd += 1
        if u in (2, 4, 6): bgop()
    qe = [f"v_add_f32 v{AQ}, v{AQ}, v{AQ+1}", f"v_add_f32 v{AQ+2}, v{AQ+2}, v{AQ+3}",
          f"v_add_f32 v{AQ+4}, v{AQ+4}, v{AQ+5}", f"v_add_f32 v{AQ+6}, v{AQ+6}, v{AQ+7}",
          f"v_cvt_pk_bf16_f32 v{AQ}, v{AQ}, v{AQ+2}", f"v_cvt_pk_bf16_f32 v{AQ+4}, v{AQ+4}, v{AQ+6}",
          f"ds_write_b16 v{V_QW}, v{AQ}", f"ds_write_b16_d16_hi v{V_QW}, v{AQ} offset:{RSX}",
          f"ds_write_b16 v{V_QW}, v{AQ+4} offset:8", f"ds_write_b16_d16_hi v{V_QW}, v{AQ+4} offset:{RSX+8}"]
    km = [smt(1, t, u) for u in range(2, 8) for t in range(2)]
    for i, m in enumerate(km):
        k(m)
        if 1 <= i <= 5:
            for _ in range(2):
                if qe: k(qe.pop(0))
        if i in (6, 8): bgop()
        if i == 9:
            k("s_waitcnt lgkmcnt(0)\ns_barrier")
            for ks in range(2): k(f"ds_read_b128 {v(QB[ks],4)}, v{V_QR} offset:{64*ks}")
        if i == 10:
            for ks in range(2, 4): k(f"ds_read_b128 {v(QB[ks],4)}, v{V_QR} offset:{64*ks}")
        if i == 11: bgop()
    ST(3)
    vm = [smt(2, t, u) for u in range(2, 8) for t in range(2)]
    ke = [f"v_add_f32 v{AK}, v{AK}, v{AK+1}", f"v_add_f32 v{AK+2}, v{AK+2}, v{AK+3}",
          f"v_add_f32 v{AK+4}, v{AK+4}, v{AK+5}", f"v_add_f32 v{AK+6}, v{AK+6}, v{AK+7}",
          f"v_cvt_pk_bf16_f32 v{AK}, v{AK}, v{AK+2}", f"v_cvt_pk_bf16_f32 v{AK+4}, v{AK+4}, v{AK+6}"]
    D = L_KX - L_QX
    ke += [f"ds_write_b16 v{V_QW}, v{AK} offset:{D}", f"ds_write_b16_d16_hi v{V_QW}, v{AK} offset:{D+RSX}",
           f"ds_write_b16 v{V_QW}, v{AK+4} offset:{D+8}", f"ds_write_b16_d16_hi v{V_QW}, v{AK+4} offset:{D+RSX+8}"]
    k(vm[0]); k(vm[1])
    ilv(k, vm[2:4], ke[:4], per=2)
    k("s_waitcnt lgkmcnt(0)")
    sg = []
    for ks in range(4):
        for T in range(2):
            acc = AQ + 4 * T
            sg.append(f"v_mfma_f32_16x16x32_bf16 {v(acc,4)}, {v(KSEG+16*T+4*ks,4)}, {v(QB[ks],4)}, {'0' if ks == 0 else v(acc,4)}")
    ilv(k, sg[:3], ke[4:], per=2)
    for m in sg[3:]: k(m)
    bgop()
    k("s_waitcnt lgkmcnt(0)\ns_barrier")
    ST(4)
    for ks in range(4):
        k(f"ds_read_b128 {v(KA[ks],4)}, v{V_KR} offset:{64*ks}")
    k(f"s_lshl_b32 s5, s{S_W}, 6")
    k(f"v_add_u32 v{V_TMP}, s5, v{V_KR}")
    k(f"ds_read_b128 {v(AK+4,4)}, v{V_TMP}")
    def wo_off(f):
        u, eb, tau = f >> 3, (f & 7) >> 1, 2 * (f >> 3) + (f & 1)
        return (eb >> 1) * 16384 + tau * 4096 + (eb & 1) * 2048
    def wo_read(f):
        slot = WSLOT[f % 9]
        return [f"ds_read_b128 {v(slot+4*half,4)}, v{V_WO} offset:{wo_off(f)+half*1024}" for half in range(2)]
    w01 = wo_read(0) + wo_read(1)
    t2i = [f"v_mov_b32 v{AK}, 0", f"v_mov_b32 v{AK+1}, 0", f"v_mov_b32 v{AK+2}, 0xf149f2ca", f"v_mov_b32 v{AK+3}, 0xf149f2ca"]
    for i, m in enumerate(vm[4:8]):
        k(m); k(t2i[i])
    k("s_waitcnt lgkmcnt(1)")
    for ks in range(4):
        k(f"v_mfma_f32_16x16x32_bf16 {v(AK,4)}, {v(KA[ks],4)}, {v(QB[ks],4)}, {v(AK,4)}")
        k(w01[ks])
    k("s_waitcnt lgkmcnt(4)")
    if 'nokm' not in X: k(f"buffer_store_dwordx4 {v(AK+4,4)}, v{V_KMO}, {WSs}, s{S_KM} offen sc1")
    ST(5)
    early = [x for f in (2, 3, 4) for x in wo_read(f)]
    late = [x for f in (5, 6, 7) for x in wo_read(f)]
    S = [AQ + i for i in range(8)] + [AK, AK + 1]
    M, M2 = AK + 4, AK + 5
    X1, X2 = AK + 6, AK + 7
    pre = [f"v_max3_f32 v{X1}, v{S[0]}, v{S[1]}, v{S[2]}", f"v_max3_f32 v{X2}, v{S[3]}, v{S[4]}, v{S[5]}",
           f"v_max3_f32 v{X1}, v{X1}, v{S[6]}, v{S[7]}", f"v_max_f32 v{X1}, v{X1}, v{X2}"]
    fl = []
    for i in range(4): fl += [pre[i], early.pop(0)]
    ilv(k, vm[8:], fl, per=2)
    k(f"v_max3_f32 v{M}, v{X1}, v{S[8]}, v{S[9]}")
    k(early.pop(0))
    k(f"v_mov_b32 v{M2}, v{M}")
    k(f"v_permlane32_swap_b32 v{M}, v{M2}")
    k(early.pop(0))
    k(f"v_max_f32 v{M}, v{M}, v{M2}")
    k(f"v_mov_b32 v{M2}, v{M}")
    k(f"v_permlane16_swap_b32 v{M}, v{M2}")
    k(f"v_max_f32 v{M}, v{M}, v{M2}")
    k(f"v_mul_f32 v{M}, {f2u(-c):#x}, v{M}")
    rest = early + late
    for i, r in enumerate(S):
        k(f"v_fma_f32 v{r}, v{r}, s{S_C}, v{M}")
        if i % 4 == 3 and rest: k(rest.pop(0))
    ve = [f"v_add_f32 v{AV}, v{AV}, v{AV+1}", f"v_add_f32 v{AV+2}, v{AV+2}, v{AV+3}",
          f"v_add_f32 v{AV+4}, v{AV+4}, v{AV+5}", f"v_add_f32 v{AV+6}, v{AV+6}, v{AV+7}",
          f"v_cvt_pk_bf16_f32 v{AV}, v{AV}, v{AV+2}", f"v_cvt_pk_bf16_f32 v{AV+1}, v{AV+4}, v{AV+6}"]
    for i, r in enumerate(S):
        k(f"v_exp_f32 v{r}, v{r}")
        if i % 2 == 1 and rest: k(rest.pop(0))
    for i in range(4): k(f"v_cvt_pk_bf16_f32 v{AQ+i}, v{AQ+2*i}, v{AQ+2*i+1}")
    k(f"v_cvt_pk_bf16_f32 v{AK}, v{AK}, v{AK+1}\nv_mov_b32 v{AK+1}, 0")
    ST(6)
    O0, O1 = AQ + 4, AV + 4
    k(f"s_waitcnt vmcnt({8 if flags else 6})")
    k(f"v_mfma_f32_16x16x32_bf16 {v(O0,4)}, {v(VSEG,4)}, {v(AQ,4)}, 0")
    for x in ve: k(x)
    k(f"v_mfma_f32_16x16x32_bf16 {v(O1,4)}, {v(VSEG+4,4)}, {v(AQ,4)}, 0")
    if 'nokm' not in X: k(f"buffer_store_dwordx2 {v(AV,2)}, v{V_VMO}, {WSs}, s{S_VM} offen sc1")
    k(f"v_mov_b32 v{AV+2}, v{AV+1}\nv_mov_b32 v{AV+3}, 0")
    k(f"s_cmp_eq_u32 s{S_STEP}, {NSEG-1}\ns_cbranch_scc1 {P}_done")
    k(f"v_mfma_f32_16x16x16_bf16 {v(O0,4)}, {v(AV,2)}, {v(AK,2)}, {v(O0,4)}")
    k(f"v_mfma_f32_16x16x16_bf16 {v(O1,4)}, {v(AV+2,2)}, {v(AK,2)}, {v(O1,4)}")
    Lr, L2 = AK + 2, AK + 3
    k(f"v_dot2_f32_bf16 v{Lr}, v{AQ}, s{S_ONES}, 0")
    k(f"v_dot2_f32_bf16 v{L2}, v{AQ+1}, s{S_ONES}, 0")
    k(f"v_dot2_f32_bf16 v{Lr}, v{AQ+2}, s{S_ONES}, v{Lr}")
    k(f"v_dot2_f32_bf16 v{L2}, v{AQ+3}, s{S_ONES}, v{L2}")
    k(f"v_dot2_f32_bf16 v{Lr}, v{AK}, s{S_ONES}, v{Lr}")
    rest += wo_read(8)
    for x in rest[:2]: k(x)
    rest = rest[2:]
    k(f"v_add_f32 v{Lr}, v{Lr}, v{L2}")
    k(f"v_mov_b32 v{L2}, v{Lr}")
    k(f"v_permlane32_swap_b32 v{Lr}, v{L2}")
    k(f"v_add_f32 v{Lr}, v{Lr}, v{L2}")
    k(f"v_mov_b32 v{L2}, v{Lr}")
    k(f"v_permlane16_swap_b32 v{Lr}, v{L2}")
    k(f"v_add_f32 v{Lr}, v{Lr}, v{L2}")
    k(f"v_rcp_f32 v{Lr}, v{Lr}")
    for x in rest: k(x)
    for r in range(4): k(f"v_mul_f32 v{O0+r}, v{O0+r}, v{Lr}")
    k(f"v_cvt_pk_bf16_f32 v{O0}, v{O0}, v{O0+1}\nv_cvt_pk_bf16_f32 v{O0+1}, v{O0+2}, v{O0+3}")
    k(f"ds_write_b64 v{V_OW}, {v(O0,2)}")
    for r in range(4): k(f"v_mul_f32 v{O1+r}, v{O1+r}, v{Lr}")
    k(f"v_cvt_pk_bf16_f32 v{O1}, v{O1}, v{O1+1}\nv_cvt_pk_bf16_f32 v{O1+1}, v{O1+2}, v{O1+3}")
    k(f"ds_write_b64 v{V_OW}, {v(O1,2)} offset:256")
    ST(7)
    k(f"v_and_b32 v{V_TMP}, 0x3e0, v{V_L16}\nv_lshrrev_b32 v{V_TMP}, 1, v{V_TMP}\nv_add_u32 v{V_TMP}, {L_OX}, v{V_TMP}")
    for s_ in (WACC[1], WACC[2]):
        for r in range(4): k(f"v_mov_b32 v{s_+r}, 0")
    k(f"s_waitcnt vmcnt({3 if 'nokm' in X else (7 if flags else 5)}) lgkmcnt(0)\ns_barrier")
    for eb in range(4): k(f"ds_read_b128 {v(OA[eb],4)}, v{V_TMP} offset:{512*eb}")
    for s_ in (WACC[0], WACC[3]):
        for r in range(4): k(f"v_mov_b32 v{s_+r}, 0")
    ST(8)
    pending = [('oa', eb) for eb in range(4)]
    out_list = [1, 1, 1, 1]
    inflight = [('oa', 0), ('oa', 1), ('oa', 2), ('oa', 3)]
    def wait_for(tag):
        if tag in inflight:
            last = max(i for i, x in enumerate(inflight) if x == tag)
            k(f"s_waitcnt lgkmcnt({len(inflight) - 1 - last})")
            del inflight[:last + 1]
    def epi(u):
        a0, a1 = WACC[2*u], WACC[2*u+1]
        return [f"v_cvt_pk_bf16_f32 v{a0}, v{a0}, v{a0+2}", f"v_cvt_pk_bf16_f32 v{a0+1}, v{a0+1}, v{a0+3}",
                f"v_cvt_pk_bf16_f32 v{a0+2}, v{a1}, v{a1+2}", f"v_cvt_pk_bf16_f32 v{a0+3}, v{a1+1}, v{a1+3}"]
    for f in range(16):
        u, eb, tau = f >> 3, (f & 7) >> 1, 2 * (f >> 3) + (f & 1)
        wait_for(('oa', eb)); wait_for(('w', f))
        k(f"v_smfmac_f32_16x16x64_bf16 {v(WACC[tau],4)}, {v(OA[eb],4)}, {v(WSLOT[f%9],8)}, v{V_IDX}")
        if f + 9 < 16:
            for x in wo_read(f + 9): k(x)
            inflight += [('w', f + 9)] * 2
        if f == 9:
            for x in epi(0): k(x)
        if f == 10:
            k(f"buffer_store_dwordx4 {v(WACC[0],4)}, v{V_PART}, {WSs}, s{S_INBC} offen {sc}")
    for x in epi(1): k(x)
    k(f"buffer_store_dwordx4 {v(WACC[2],4)}, v{V_PART}, {WSs}, s{S_INBC1} offen {sc}")
    ST(9)
    for r in range(AQ, AQ + 16): k(f"v_mov_b32 v{r}, 0")
    for r in range(4): k(f"v_mov_b32 v{SENT+r}, -1")
    for r in range(AQ + 16, AQ + 24): k(f"v_mov_b32 v{r}, 0")
    k(f"s_add_u32 s{S_STEP}, s{S_STEP}, 1")
    k(f"s_mov_b32 s{S_T1}, s{S_MEMN}\ns_mov_b32 s{S_T2}, s{S_INBC}")
    offsets()
    if D1: k(f"s_sleep {D1}")
    ST(12)
    k(f"s_cmp_ge_u32 s{S_W}, 2\ns_cbranch_scc1 {P}_nored")
    L = f"{P}_pi"
    k(f"s_mov_b32 s{S_SPIN}, 0")
    k.label(L)
    for i in range(4):
        k(f"buffer_load_dwordx4 {v(56+4*i,4)}, v{V_INB}, {WSs}, s{S_T2} offen offset:{1024*i} sc1")
    k(f"s_add_u32 s{S_SPIN}, s{S_SPIN}, 1")
    if stamps: k("s_add_u32 s59, s59, 1")
    k(f"s_cmp_gt_u32 s{S_SPIN}, 20000\ns_cbranch_scc1 {L}_fail")
    k("s_waitcnt vmcnt(2)")
    k("v_max3_u32 v72, v56, v57, v58\nv_max3_u32 v73, v59, v60, v61\nv_max3_u32 v72, v72, v62, v63")
    k("s_waitcnt vmcnt(0)")
    k("v_max3_u32 v73, v73, v64, v65\nv_max3_u32 v72, v72, v66, v67\nv_max3_u32 v73, v73, v68, v69")
    k("v_max3_u32 v72, v72, v70, v71\nv_max_u32 v72, v72, v73")
    k(f"v_cmp_eq_u32 vcc, -1, v72\ns_cbranch_vccnz {L}\ns_branch {L}_ok")
    k.label(f"{L}_fail")
    k(f"s_add_u32 s{S_ERR}, s{S_ERR}, 1\ns_waitcnt vmcnt(0)")
    k.label(f"{L}_ok")
    ST(10)
    k(f"v_mfma_f32_16x16x32_bf16 v[72:75], {v(V_SEL,4)}, v[56:59], 0")
    for i in range(1, 4):
        k(f"v_mfma_f32_16x16x32_bf16 v[72:75], {v(V_SEL,4)}, v[{56+4*i}:{59+4*i}], v[72:75]")
    for r in range(4):
        k(f"v_add_f32_dpp v{72+r}, v{72+r}, v{72+r} row_ror:8 row_mask:0xf bank_mask:0xf")
    k("v_cvt_pk_bf16_f32 v72, v72, v73\nv_cvt_pk_bf16_f32 v73, v74, v75")
    k(f"buffer_store_dwordx2 v[72:73], v{V_PUB}, {WSs}, s{S_T1} offen {sc}")
    k.label(f"{P}_nored")
    if stamps:
        k(f"s_cmp_lt_u32 s{S_W}, 2\ns_cbranch_scc1 {P}_st10\ns_memtime s[84:85]")
        k.label(f"{P}_st10")
    k("s_barrier")
    ST(11)
    ST.collect()
    if D2: k(f"s_sleep {D2}")
    k(f"s_branch {P}_step")
    k.label(f"{P}_done")
    k("s_waitcnt vmcnt(0)")
    if flags:
        k(f"v_mov_b32 v{MA[0]}, {NSEG}\ns_mov_b64 exec, 1")
        k(f"buffer_store_dword v{MA[0]}, v{V_L16}, {WSs}, s{S_KVMF} offen sc1")
        k("s_mov_b64 exec, -1\ns_waitcnt vmcnt(0)")
    return ST


def xcc_announce(k, P):
    k(f"s_load_dwordx2 s[68:69], s[0:1], {D_DBG}\ns_getreg_b32 s70, hwreg(HW_REG_XCC_ID, 0, 4)\ns_waitcnt lgkmcnt(0)")
    srd(k, 64, 68, 256)
    L = f"{P}_xa"
    k(f"v_lshrrev_b32 v24, 6, v0\nv_readfirstlane_b32 s5, v24\ns_cmp_lg_u32 s5, 0\ns_cbranch_scc1 {L}")
    k("s_lshl_b32 s70, 1, s70\nv_mov_b32 v24, s70\nv_mov_b32 v25, 0\nv_mov_b32 v26, 1\ns_mov_b64 exec, 1")
    k("buffer_atomic_or v24, v25, s[64:67], 0 offen offset:4 sc1\ns_waitcnt vmcnt(0)")
    k("buffer_atomic_add v26, v25, s[64:67], 0 offen sc1\ns_mov_b64 exec, -1")
    k.label(L)

def xcc_decide(k, P, slow_label):
    L = f"{P}_xd"
    k("s_mov_b32 s71, 0\nv_mov_b32 v25, 0")
    k.label(L)
    k("buffer_load_dwordx2 v[26:27], v25, s[64:67], 0 offen sc1")
    k(f"s_add_u32 s71, s71, 1\ns_cmp_gt_u32 s71, 0x8000\ns_cbranch_scc1 {slow_label}")
    k("s_waitcnt vmcnt(0)\nv_readfirstlane_b32 s5, v26")
    k(f"s_cmp_lt_u32 s5, 32\ns_cbranch_scc1 {L}")
    k("buffer_load_dword v27, v25, s[64:67], 0 offen offset:4 sc1\ns_waitcnt vmcnt(0)\nv_readfirstlane_b32 s5, v27")
    k(f"s_bcnt1_i32_b32 s5, s5\ns_cmp_lg_u32 s5, 1\ns_cbranch_scc1 {slow_label}")
```

```python
from asm import *
from layout import *
import math, struct
def f2u(x): return struct.unpack("<I", struct.pack("<f", x))[0]
def srd(k, r, ptr, nbytes):
    k(f"s_mov_b32 s{r}, s{ptr}")
    k(f"s_and_b32 s{r+1}, s{ptr+1}, 0xffff")
    k(f"s_mov_b32 s{r+2}, {nbytes}")
    k(f"s_mov_b32 s{r+3}, 0x20000")
def S4(r): return f"s[{r}:{r+3}]"

def bf16_round(k, dst, src, tmp):
    k(f"v_cvt_pk_bf16_f32 v{tmp}, v{src}, v{src}")
    k(f"v_lshlrev_b32 v{dst}, 16, v{tmp}")
```

```python
from common import *
from qkv import wait_flag, post_flag, xs_dma, S_ERR, S_SPIN, WS, WSRD, S_W
import qkv
S_JB, S_R = 3, 16
S_J, S_SEG, S_XB, S_T0, S_T1, S_T2 = 17, 18, 20, 22, 23, 24
V_L16, V_T = 1, 4
assert qkv.V_L16 == V_L16
BIAS = 8
ACC = 24
XF = 72

def f1_setup(k, P):
    k(f"""
    s_load_dwordx4 s[36:39], s[0:1], {B_W1}
    s_load_dwordx2 s[42:43], s[0:1], {D_WS}
    v_lshrrev_b32 v24, 6, v0
    v_and_b32 v0, 63, v0
    v_readfirstlane_b32 s{S_W}, v24
    v_lshlrev_b32 v{V_L16}, 4, v0
    v_lshrrev_b32 v25, 4, v0        ; g
    s_waitcnt lgkmcnt(0)
    """)
    srd(k, WS, 42, WS_BYTES)
    srd(k, WSRD, 38, 1792 * 2)
    k(f"""
    s_lshl_b32 s5, s{S_JB}, 9
    s_lshl_b32 s6, s{S_W}, 7
    s_add_u32 s5, s5, s6
    v_lshlrev_b32 v26, 3, v25
    """)
    for nt in range(4): k(f"buffer_load_dwordx2 {v(40+2*nt,2)}, v26, {S4(WSRD)}, s5 offen offset:{32*nt}")
    k("s_waitcnt vmcnt(0)")
    for nt in range(4):
        k(f"v_lshlrev_b32 v{BIAS+4*nt}, 16, v{40+2*nt}\nv_and_b32 v{BIAS+4*nt+1}, 0xffff0000, v{40+2*nt}")
        k(f"v_lshlrev_b32 v{BIAS+4*nt+2}, 16, v{41+2*nt}\nv_and_b32 v{BIAS+4*nt+3}, 0xffff0000, v{41+2*nt}")
    srd(k, WSRD, 36, 512 * 3584)
    k(f"""
    v_lshrrev_b32 v26, 3, v0
    v_mul_u32_u24 v26, 3584, v26
    v_bfe_u32 v27, v0, 4, 1
    v_lshlrev_b32 v27, 1, v27
    v_and_b32 v28, 7, v0
    v_xor_b32 v27, v27, v28
    v_lshlrev_b32 v27, 4, v27
    v_add_u32 v24, v26, v27
    v_xor_b32 v28, 64, v27
    v_add_u32 v25, v26, v28
    v_bfe_u32 v28, v0, 2, 2         ; r
    v_lshrrev_b32 v29, 4, v0        ; g
    v_lshl_add_u32 v30, v29, 3, v28
    v_lshlrev_b32 v30, 7, v30
    v_lshrrev_b32 v31, 1, v28
    v_and_b32 v32, 1, v29
    v_lshl_add_u32 v31, v32, 1, v31
    v_lshlrev_b32 v31, 1, v31       ; 2F
    v_bfe_u32 v32, v0, 1, 1
    v_xor_b32 v31, v31, v32
    v_lshl_add_u32 v30, v31, 4, v30
    v_and_b32 v32, 1, v0
    v_lshl_add_u32 v30, v32, 3, v30
    s_lshl_b32 s5, s{S_W}, 15
    v_add_u32 v26, s5, v30
    """)
    for rd in range(2):
        k(f"s_lshl_b32 s5, s{S_JB}, 9\ns_lshl_b32 s6, s{S_W}, 7\ns_add_u32 s5, s5, s6")
        if rd: k(f"s_add_u32 s5, s5, {256*3584}")
        k(f"s_lshl_b32 s6, s{S_W}, 15")
        for y in range(32):
            k("s_mov_b32 m0, s6")
            k(f"buffer_load_dwordx4 v{24 + (y & 1)}, {S4(WSRD)}, s5 offen lds")
            if y < 31: k(f"s_add_u32 s5, s5, {8*3584}\ns_add_u32 s6, s6, 1024")
        k("s_waitcnt vmcnt(0)")
        for nt in range(4):
            k(f"v_xor_b32 v27, {32*nt}, v26")
            for ksl in range(8):
                for rp in range(2):
                    f = nt * 16 + rd * 8 + ksl
                    k(f"ds_read_b64_tr_b16 {a(4*f+2*rp,2)}, v27 offset:{4096*ksl+512*rp}")
                if ksl % 4 == 3: k("s_waitcnt lgkmcnt(4)")
        k("s_waitcnt lgkmcnt(0)")
    k("s_barrier")

def f1_loop(k, P):
    k(f"s_mov_b32 s{S_ERR}, 0\ns_mov_b32 s{S_J}, 0\ns_mov_b32 s{S_SEG}, s{S_R}\ns_mov_b32 s{S_XB}, 0")
    tr_init(k, (104, 105, 106)); tr_imm(k, 106, 1)
    xs_dma(k, S_SEG, S_XB)
    k.label(f"{P}_loop")
    k(f"s_add_u32 s{S_T0}, s{S_SEG}, {RH}\ns_xor_b32 s{S_T1}, s{S_XB}, 32768")
    k(f"s_cmp_lt_u32 s{S_T0}, {NSEG}\ns_cbranch_scc0 {P}_nopf")
    xs_dma(k, S_T0, S_T1)
    k(f"s_waitcnt vmcnt(8)\ns_branch {P}_pf_done")
    k.label(f"{P}_nopf")
    k("s_waitcnt vmcnt(0)")
    k.label(f"{P}_pf_done")
    k("s_barrier")
    k(f"v_add_u32 v{V_T}, s{S_XB}, v{V_L16}")
    def xrd(ks):
        b = XF + 8 * (ks & 1)
        return [f"ds_read_b128 {v(b,4)}, v{V_T} offset:{ks*1024}", f"ds_read_b128 {v(b+4,4)}, v{V_T} offset:{16384+ks*1024}"]
    for x in xrd(0): k(x)
    for ks in range(16):
        if ks < 15:
            for x in xrd(ks + 1): k(x)
            k("s_waitcnt lgkmcnt(2)")
        else:
            k("s_waitcnt lgkmcnt(0)")
        b = XF + 8 * (ks & 1)
        for nt in range(4):
            for T in range(2):
                A_ = ACC + 8 * nt + 4 * T
                C_ = v(BIAS + 4 * nt, 4) if ks == 0 else v(A_, 4)
                k(f"v_mfma_f32_16x16x32_bf16 {v(A_,4)}, {a(4*(nt*16+ks),4)}, {v(b+4*T,4)}, {C_}")
    T0, T1, T2, T3 = 88, 92, 96, 100
    nl2e = f2u(-math.log2(math.e))
    k(f"s_mov_b32 s{S_T2}, {nl2e:#x}")
    for grp in range(8):
        A_ = ACC + 4 * grp
        k(f"v_cvt_pk_bf16_f32 v{T0}, v{A_}, v{A_+1}\nv_cvt_pk_bf16_f32 v{T0+1}, v{A_+2}, v{A_+3}")
        k(f"v_lshlrev_b32 v{A_}, 16, v{T0}\nv_and_b32 v{A_+1}, 0xffff0000, v{T0}")
        k(f"v_lshlrev_b32 v{A_+2}, 16, v{T0+1}\nv_and_b32 v{A_+3}, 0xffff0000, v{T0+1}")
        for r in range(4): k(f"v_mul_f32 v{T0+r}, s{S_T2}, abs(v{A_+r})")
        for r in range(4): k(f"v_exp_f32 v{T0+r}, v{T0+r}")
        for r in range(4): k(f"v_mul_f32 v{T1+r}, v{T0+r}, v{T0+r}")
        for r in range(4):
            k(f"v_cmp_le_f32 vcc, 0, v{A_+r}")
            k(f"v_cndmask_b32 v{T2+r}, v{T1+r}, 1.0, vcc")
            k(f"v_cndmask_b32 v{T3+r}, 1.0, v{T1+r}, vcc")
        for r in range(4): k(f"v_fma_f32 v{T2+r}, v{T0+r}, 2.0, v{T2+r}")
        for r in range(4): k(f"v_fma_f32 v{T3+r}, v{T3+r}, 2.0, v{T2+r}")
        for r in range(4): k(f"v_rcp_f32 v{T3+r}, v{T3+r}")
        for r in range(4): k(f"v_mul_f32 v{T2+r}, v{T2+r}, v{A_+r}")
        for r in range(4): k(f"v_mul_f32 v{A_+r}, v{T2+r}, v{T3+r}")
    PK = 72
    for x in range(2):
        for T in range(2):
            for h in range(2):
                A_ = ACC + 8 * (2 * x + h) + 4 * T
                k(f"v_cvt_pk_bf16_f32 v{PK+8*x+4*T+2*h}, v{A_}, v{A_+1}\nv_cvt_pk_bf16_f32 v{PK+8*x+4*T+2*h+1}, v{A_+2}, v{A_+3}")
    k(f"""
    s_mul_i32 s5, s{S_SEG}, {2*56*1024}
    s_lshl_b32 s6, s{S_JB}, 13
    s_add_u32 s5, s5, s6
    s_lshl_b32 s6, s{S_W}, 11
    s_add_u32 s5, s5, s6
    s_add_u32 s5, s5, {HF}
    s_add_u32 s6, s5, {56*1024}
    buffer_store_dwordx4 {v(PK,4)}, v{V_L16}, {S4(WS)}, s5 offen sc1
    buffer_store_dwordx4 {v(PK+8,4)}, v{V_L16}, {S4(WS)}, s5 offen offset:1024 sc1
    buffer_store_dwordx4 {v(PK+4,4)}, v{V_L16}, {S4(WS)}, s6 offen sc1
    buffer_store_dwordx4 {v(PK+12,4)}, v{V_L16}, {S4(WS)}, s6 offen offset:1024 sc1
    s_add_u32 s{S_J}, s{S_J}, 1
    s_waitcnt vmcnt(0)
    s_barrier
    s_lshl_b32 s5, s{S_R}, 5
    s_lshl_b32 s6, s{S_JB}, 2
    s_add_u32 s5, s5, s6
    s_add_u32 s{S_T2}, s5, {FLAGS + F_H}
    """)
    post_flag(k, P, S_T2, S_J)
    tr(k, 104, S_J)
    k(f"s_add_u32 s{S_SEG}, s{S_SEG}, {RH}\ns_xor_b32 s{S_XB}, s{S_XB}, 32768\ns_cmp_lt_u32 s{S_SEG}, {NSEG}\ns_cbranch_scc1 {P}_loop")
    k("s_waitcnt vmcnt(0)")
    tr_dump(k, (104, 105, 106), WS, S_W)
```

```python
from common import *
from qkv import wait_flag, post_flag, S_ERR, S_SPIN, WS, WSRD, S_W
import qkv

S_JB, S_RHO = 3, 16
S_SEG, S_CNT, S_AB, S_T0, S_T1, S_T2 = 17, 18, 19, 20, 21, 22
XSRD, OSRD = 24, 32
V_L16, V_ROW, V_FLG, V_T = 1, 2, 3, 4
AW = 32
NWIN = 16
ACC = 8
L_RED = 0

def gk_setup(k, P, kind):
    KW = 32 if kind == "wo" else 14
    wptr = A_WO if kind == "wo" else B_W2
    wbytes = (4096 if kind == "wo" else 1792) * 1024
    k(f"""
    s_load_dwordx2 s[36:37], s[0:1], {wptr}
    s_load_dwordx2 s[38:39], s[0:1], {D_WS}
    s_load_dwordx2 s[40:41], s[0:1], {A_X}
    s_load_dwordx2 s[42:43], s[0:1], {D_OUT}
    v_lshrrev_b32 v24, 6, v0
    v_and_b32 v0, 63, v0
    v_readfirstlane_b32 s{S_W}, v24
    v_lshlrev_b32 v{V_L16}, 4, v0
    v_and_b32 v24, 15, v0           ; tok
    v_lshrrev_b32 v25, 4, v0        ; g
    v_lshlrev_b32 v26, 10, v24
    v_lshl_add_u32 v26, v25, 3, v26
    s_and_b32 s5, s{S_W}, 1
    s_lshl_b32 s5, s5, 5
    s_lshl_b32 s6, s{S_JB}, 6
    s_add_u32 s5, s5, s6
    s_lshr_b32 s6, s{S_W}, 1
    s_lshl_b32 s6, s6, 14
    s_add_u32 s5, s5, s6
    v_add_u32 v{V_ROW}, s5, v26
    s_waitcnt lgkmcnt(0)
    """)
    srd(k, WS, 38, WS_BYTES)
    srd(k, WSRD, 36, wbytes)
    srd(k, XSRD, 40, 2048 * 1024)
    srd(k, OSRD, 42, 2048 * 1024)
    if kind == "wo":
        k(f"v_and_b32 v26, 31, v0\nv_lshlrev_b32 v26, 2, v26\nv_add_u32 v{V_FLG}, {FLAGS + F_O}, v26")
    else:
        k(f"v_and_b32 v26, 7, v0\nv_min_u32 v26, 6, v26\nv_lshlrev_b32 v26, 2, v26\nv_add_u32 v{V_FLG}, {FLAGS + F_H}, v26")
    k(f"""
    v_lshrrev_b32 v26, 2, v0
    v_lshlrev_b32 v26, 10, v26
    v_bfe_u32 v27, v0, 4, 1
    v_lshlrev_b32 v27, 1, v27
    v_and_b32 v28, 3, v0
    v_xor_b32 v27, v27, v28
    v_lshl_add_u32 v24, v27, 4, v26
    v_bfe_u32 v28, v0, 2, 2
    v_lshl_add_u32 v28, v25, 2, v28
    v_lshlrev_b32 v28, 6, v28
    v_and_b32 v29, 1, v25
    v_lshlrev_b32 v29, 1, v29
    v_bfe_u32 v30, v0, 1, 1
    v_xor_b32 v29, v29, v30
    v_lshl_add_u32 v28, v29, 4, v28
    v_and_b32 v29, 1, v0
    v_lshl_add_u32 v28, v29, 3, v28
    s_lshl_b32 s5, s{S_W}, 15
    v_add_u32 v26, s5, v28
    v_xor_b32 v27, 32, v26
    """)
    nround = 2 if KW == 32 else 1
    kpr = KW // nround
    for rd in range(nround):
        k(f"s_mul_i32 s5, s{S_W}, {KW*32*1024}\ns_lshl_b32 s6, s{S_JB}, 6\ns_add_u32 s5, s5, s6")
        if rd: k(f"s_add_u32 s5, s5, {rd*kpr*32*1024}")
        k(f"s_lshl_b32 s6, s{S_W}, 15")
        n = kpr * 2
        for y in range(n):
            k("s_mov_b32 m0, s6")
            k(f"buffer_load_dwordx4 v24, {S4(WSRD)}, s5 offen lds")
            if y < n - 1: k("s_add_u32 s5, s5, 16384\ns_add_u32 s6, s6, 1024")
        k("s_waitcnt vmcnt(0)")
        m = 0
        for kk in range(kpr):
            for nt in range(2):
                for rp in range(2):
                    f = 2 * (rd * kpr + kk) + nt
                    k(f"ds_read_b64_tr_b16 {a(4*f+2*rp,2)}, v{26+nt} offset:{2048*kk+1024*rp}")
                    m += 1
                    if m % 8 == 0: k("s_waitcnt lgkmcnt(4)")
        k("s_waitcnt lgkmcnt(0)")
    k("s_barrier")

def gk_loop(k, P, kind):
    KW = 32 if kind == "wo" else 14
    NKS = 128 if kind == "wo" else 56
    ABUF = OF if kind == "wo" else HF
    NREP = RW if kind == "wo" else RG
    RPROD = RQ if kind == "wo" else RH
    FSTR = 128 if kind == "wo" else 32
    k(f"s_mov_b32 s{S_ERR}, 0\ns_mov_b32 s{S_SEG}, s{S_RHO}\ns_mov_b32 s{S_CNT}, 0")
    k.label(f"{P}_loop")
    k(f"s_mul_hi_u32 s{S_T0}, s{S_SEG}, {-(-(1 << 32) // RPROD)}")
    k(f"s_mul_i32 s5, s{S_T0}, {RPROD}\ns_sub_u32 s5, s{S_SEG}, s5\ns_mul_i32 s{S_T1}, s5, {FSTR}\ns_add_u32 s{S_T0}, s{S_T0}, 1")
    wait_flag(k, P, "a", V_FLG, f"s{S_T1}", S_T0)
    k(f"s_mul_i32 s{S_AB}, s{S_SEG}, {2*NKS*1024}\ns_mul_i32 s5, s{S_W}, {KW*1024}\ns_add_u32 s{S_AB}, s{S_AB}, s5\ns_add_u32 s{S_AB}, s{S_AB}, {ABUF}")
    k(f"s_add_u32 s{S_T2}, s{S_AB}, {NKS*1024}")
    nfr = 2 * KW
    def ld(i):
        kk, T = i >> 1, i & 1
        base = S_AB if T == 0 else S_T2
        r = AW + 4 * (i % NWIN)
        q, o = divmod(kk * 1024, 4096)
        if q == 0:
            return [f"buffer_load_dwordx4 {v(r,4)}, v{V_L16}, {S4(WS)}, s{base} offen offset:{o} sc1"]
        return [f"s_add_u32 s5, s{base}, {q*4096}", f"buffer_load_dwordx4 {v(r,4)}, v{V_L16}, {S4(WS)}, s5 offen offset:{o} sc1"]
    for i in range(min(NWIN, nfr)):
        for x in ld(i): k(x)
    issued = min(NWIN, nfr)
    if kind == "wo":
        pass
    for kk in range(KW):
        k(f"s_waitcnt vmcnt({issued - (2*kk+2)})")
        for T in range(2):
            for nt in range(2):
                A_ = ACC + 8 * nt + 4 * T
                C_ = "0" if kk == 0 else v(A_, 4)
                k(f"v_mfma_f32_16x16x32_bf16 {v(A_,4)}, {a(4*(2*kk+nt),4)}, {v(AW+4*((2*kk+T)%NWIN),4)}, {C_}")
        for T in range(2):
            if issued < nfr:
                for x in ld(issued): k(x)
                issued += 1
    k(f"s_lshl_b32 s5, s{S_W}, 12\ns_add_u32 s5, s5, {L_RED}\nv_add_u32 v{V_T}, s5, v{V_L16}")
    for nt in range(2):
        for T in range(2):
            k(f"ds_write_b128 v{V_T}, {v(ACC+8*nt+4*T,4)} offset:{(2*T+nt)*1024}")
    k(f"s_lshl_b32 s{S_T2}, s{S_SEG}, 15")
    if kind == "wo":
        k(f"s_mul_hi_u32 s{S_T0}, s{S_SEG}, {-(-(1 << 32) // RG)}\ns_mul_i32 s5, s{S_T0}, {RG}\ns_sub_u32 s5, s{S_SEG}, s5\ns_lshl_b32 s5, s5, 6")
        k(f"s_lshl_b32 s6, s{S_JB}, 2\ns_add_u32 s5, s5, s6\ns_add_u32 s{S_T1}, s5, {FLAGS + F_G}\ns_add_u32 s{S_T0}, s{S_T0}, 1\nv_mov_b32 v5, 0")
        wait_flag(k, P, "g", 5, f"s{S_T1}", S_T0)
        k(f"s_add_u32 s5, s{S_T2}, {GBUF}")
        k(f"buffer_load_dwordx2 v[32:33], v{V_ROW}, {S4(WS)}, s5 offen sc1")
        k(f"buffer_load_dwordx2 v[34:35], v{V_ROW}, {S4(XSRD)}, s{S_T2} offen")
    k("s_waitcnt lgkmcnt(0)\ns_barrier")
    k(f"s_lshl_b32 s5, s{S_W}, 10\ns_add_u32 s5, s5, {L_RED}\nv_add_u32 v{V_T}, s5, v{V_L16}")
    for w in range(4): k(f"ds_read_b128 {v(40+4*w,4)}, v{V_T} offset:{4096*w}")
    k("s_waitcnt lgkmcnt(0)\ns_barrier")
    for r in range(4):
        k(f"v_add_f32 v{40+r}, v{40+r}, v{44+r}\nv_add_f32 v{48+r}, v{48+r}, v{52+r}\nv_add_f32 v{40+r}, v{40+r}, v{48+r}")
    k("v_cvt_pk_bf16_f32 v44, v40, v41\nv_cvt_pk_bf16_f32 v45, v42, v43")
    k("v_lshlrev_b32 v40, 16, v44\nv_and_b32 v41, 0xffff0000, v44\nv_lshlrev_b32 v42, 16, v45\nv_and_b32 v43, 0xffff0000, v45")
    if kind == "wo":
        k("s_waitcnt vmcnt(0)")
        k("v_lshlrev_b32 v44, 16, v32\nv_and_b32 v45, 0xffff0000, v32\nv_lshlrev_b32 v46, 16, v33\nv_and_b32 v47, 0xffff0000, v33")
        for r in range(4): k(f"v_mul_f32 v{40+r}, v{40+r}, v{44+r}")
        k("v_cvt_pk_bf16_f32 v44, v40, v41\nv_cvt_pk_bf16_f32 v45, v42, v43")
        k("v_lshlrev_b32 v40, 16, v44\nv_and_b32 v41, 0xffff0000, v44\nv_lshlrev_b32 v42, 16, v45\nv_and_b32 v43, 0xffff0000, v45")
        k("v_lshlrev_b32 v44, 16, v34\nv_and_b32 v45, 0xffff0000, v34\nv_lshlrev_b32 v46, 16, v35\nv_and_b32 v47, 0xffff0000, v35")
        for r in range(4): k(f"v_add_f32 v{40+r}, v{40+r}, v{44+r}")
        k("v_cvt_pk_bf16_f32 v44, v40, v41\nv_cvt_pk_bf16_f32 v45, v42, v43")
        k(f"buffer_store_dwordx2 v[44:45], v{V_ROW}, {S4(OSRD)}, s{S_T2} offen")
    else:
        for r in range(4):
            k(f"v_mul_f32 v{44+r}, {f2u(-math.log2(math.e)):#x}, v{40+r}")
        for r in range(4): k(f"v_exp_f32 v{44+r}, v{44+r}")
        for r in range(4): k(f"v_add_f32 v{44+r}, 1.0, v{44+r}")
        for r in range(4): k(f"v_rcp_f32 v{44+r}, v{44+r}")
        for r in range(4): k(f"v_mul_f32 v{40+r}, v{40+r}, v{44+r}")
        k("v_cvt_pk_bf16_f32 v44, v40, v41\nv_cvt_pk_bf16_f32 v45, v42, v43")
        k(f"s_add_u32 s5, s{S_T2}, {GBUF}")
        k(f"buffer_store_dwordx2 v[44:45], v{V_ROW}, {S4(WS)}, s5 offen sc1")
        k(f"s_add_u32 s{S_CNT}, s{S_CNT}, 1\ns_waitcnt vmcnt(0)\ns_barrier")
        k(f"s_lshl_b32 s5, s{S_JB}, 2\ns_lshl_b32 s6, s{S_RHO}, 6\ns_add_u32 s5, s5, s6\ns_add_u32 s{S_T1}, s5, {FLAGS + F_G}")
        post_flag(k, P, S_T1, S_CNT)
    k(f"s_add_u32 s{S_SEG}, s{S_SEG}, {NREP}\ns_cmp_lt_u32 s{S_SEG}, {NSEG}\ns_cbranch_scc1 {P}_loop")
    k("s_waitcnt vmcnt(0)")
```

```python
WS_BYTES = 268435456
FLAGS  = 0x0
MEMR   = 0x10000
INBOX  = 0x20000
XN     = 0x100000
GBUF   = 0x300000
KM     = 0x500000
VM     = 0x900000
HF     = 0x1000000
KF     = 0x2000000
VF     = 0x3000000
OF     = 0x4000000
MEMDBG = 0x5000000
A_X, A_MEM0, A_WQ, A_WK, A_WV, A_WO, A_SEG, B_X, B_W1, B_B1, B_W2, D_OUT, D_DBG, D_WS = [8*i for i in range(14)]
NSEG = 64
F_KV  = 0x0000
F_KVM = 0x0400
F_O   = 0x0800
F_H   = 0x0C00
F_G   = 0x0D00
RQ = 3
RW = 4
RG = 2
RH = 2
TRACE = 0x5800000
```

```python
from common import *

def ln_role(k, P, tile_sreg, WS, XSRD):
    X = 8
    k(f"""
    v_and_b32 v1, 15, v0
    v_lshrrev_b32 v2, 4, v0
    v_lshlrev_b32 v3, 10, v1
    v_lshl_add_u32 v3, v2, 4, v3          ; tok*1024 + 16g
    s_lshl_b32 s5, s{tile_sreg}, 14
    """)
    for ks in range(16):
        k(f"buffer_load_dwordx4 {v(X+4*ks,4)}, v3, {S4(XSRD)}, s5 offen offset:{64*ks}")
    k("s_mov_b32 s6, 0x3f803f80")
    k("v_mov_b32 v4, 0\nv_mov_b32 v5, 0")
    for ks in range(16):
        k(f"s_waitcnt vmcnt({15-ks})")
        for r in range(4):
            k(f"v_dot2_f32_bf16 v{4+(r&1)}, v{X+4*ks+r}, s6, v{4+(r&1)}")
    k("v_add_f32 v4, v4, v5")
    for sw in ("v_permlane32_swap_b32", "v_permlane16_swap_b32"):
        k(f"v_mov_b32 v5, v4\n{sw} v4, v5\nv_add_f32 v4, v4, v5")
    k(f"v_mul_f32 v4, {f2u(1/512):#x}, v4")
    k("v_mov_b32 v6, 0\nv_mov_b32 v7, 0")
    for i in range(64):
        k(f"v_lshlrev_b32 v72, 16, v{X+i}\nv_and_b32 v73, 0xffff0000, v{X+i}")
        k("v_sub_f32 v72, v72, v4\nv_sub_f32 v73, v73, v4")
        k("v_fmac_f32 v6, v72, v72\nv_fmac_f32 v7, v73, v73")
    k("v_add_f32 v6, v6, v7")
    for sw in ("v_permlane32_swap_b32", "v_permlane16_swap_b32"):
        k(f"v_mov_b32 v7, v6\n{sw} v6, v7\nv_add_f32 v6, v6, v7")
    k(f"v_mul_f32 v6, {f2u(1/512):#x}, v6")
    bf16_round(k, 6, 6, 7)
    k(f"v_add_f32 v6, {f2u(1e-5):#x}, v6")
    bf16_round(k, 6, 6, 7)
    k("v_sqrt_f32 v6, v6")
    bf16_round(k, 6, 6, 7)
    k("v_rcp_f32 v6, v6")
    bf16_round(k, 4, 4, 7)
    for i in range(64):
        k(f"v_lshlrev_b32 v72, 16, v{X+i}\nv_and_b32 v73, 0xffff0000, v{X+i}")
        k("v_sub_f32 v72, v72, v4\nv_sub_f32 v73, v73, v4")
        k("v_cvt_pk_bf16_f32 v72, v72, v73")
        k("v_and_b32 v73, 0xffff0000, v72\nv_lshlrev_b32 v72, 16, v72")
        k("v_mul_f32 v72, v72, v6\nv_mul_f32 v73, v73, v6")
        k(f"v_cvt_pk_bf16_f32 v{X+i}, v72, v73")
    k(f"v_lshlrev_b32 v3, 4, v0\ns_lshl_b32 s5, s{tile_sreg}, 14\ns_add_u32 s5, s5, {XN}")
    for ks in range(16):
        k(f"buffer_store_dwordx4 {v(X+4*ks,4)}, v3, {S4(WS)}, s5 offen offset:{1024*(ks&3)} sc1")
        if ks & 3 == 3 and ks < 15: k("s_add_u32 s5, s5, 4096")

def init_kernel(k, P):
    k(f"""
    s_cmp_ge_u32 s2, 128
    s_cbranch_scc1 {P}_exit
    s_load_dwordx2 s[16:17], s[0:1], {A_X}
    s_load_dwordx2 s[18:19], s[0:1], {D_WS}
    s_waitcnt lgkmcnt(0)
    """)
    srd(k, 8, 18, WS_BYTES)
    srd(k, 12, 16, 2048 * 1024)
    k(f"""
    v_mov_b32 v76, -1
    v_mov_b32 v77, -1
    v_mov_b32 v78, -1
    v_mov_b32 v79, -1
    v_lshlrev_b32 v80, 4, v0
    s_lshl_b32 s5, s2, 12
    s_add_u32 s5, s5, {INBOX}
    """)
    for i in range(4): k(f"buffer_store_dwordx4 v[76:79], v80, {S4(8)}, s5 offen offset:{1024*i}")
    k(f"""
    s_cmp_ge_u32 s2, 32
    s_cbranch_scc1 {P}_nomem
    s_lshl_b32 s5, s2, 10
    s_add_u32 s5, s5, {MEMR}
    buffer_store_dwordx4 v[76:79], v80, {S4(8)}, s5 offen
    s_cmp_ge_u32 s2, 4
    s_cbranch_scc1 {P}_nomem
    v_mov_b32 v84, 0
    v_mov_b32 v85, 0
    v_mov_b32 v86, 0
    v_mov_b32 v87, 0
    s_lshl_b32 s5, s2, 10
    s_add_u32 s5, s5, {FLAGS}
    buffer_store_dwordx4 v[84:87], v80, {S4(8)}, s5 offen
    """)
    k.label(f"{P}_nomem")
    ln_role(k, P, 2, 8, 12)
    k("s_waitcnt vmcnt(0)")
    k.label(f"{P}_exit")
    k("s_endpgm")
```

```python
from common import *

WS, WSRD = 8, 12
S_H, S_W, S_R = 3, 4, 16
S_J, S_SEG, S_NJ = 17, 18, 19
S_XB, S_RING, S_T0, S_T1, S_T2 = 20, 21, 22, 23, 24
S_AJ, S_ASEG, S_ARING, S_C, S_ONES, S_ERR, S_SPIN = 25, 26, 27, 28, 29, 30, 31
S_TQ, S_EH = 32, 33
L_XS = 0
L_RING = 65536
RING_E = 24576
NRING = 3
LAG = NRING - 1

V_L16, V_KMR, V_VMR, V_T = 1, 2, 3, 4
V_FLG = 5
MASK = 8
ACC = 24
XF = 72
WV0 = 128

def wf(mat, t, ks):
    f = t * 16 + ks
    if mat == 0: return a(4 * f, 4)
    if mat == 1: return a(128 + 4 * f, 4)
    return v(WV0 + 4 * f, 4)
def wfp(mat, t, ks, rp):
    f = t * 16 + ks
    if mat == 0: return a(4 * f + 2 * rp, 2)
    if mat == 1: return a(128 + 4 * f + 2 * rp, 2)
    return v(WV0 + 4 * f + 2 * rp, 2)
def acc(mat, t, T): return ACC + 16 * mat + 8 * t + 4 * T

def wait_flag(k, P, name, voff, soff, sval, dst=6):
    L = k.newlabel(f"{P}_{name}")
    k(f"s_mov_b32 s{S_SPIN}, 0")
    k.label(L)
    k(f"buffer_load_dword v{dst}, v{voff}, {S4(WS)}, {soff} offen sc1")
    k(f"s_add_u32 s{S_SPIN}, s{S_SPIN}, 1")
    k(f"s_cmp_gt_u32 s{S_SPIN}, 0x8000\ns_cbranch_scc1 {L}_fail")
    k("s_waitcnt vmcnt(0)")
    k(f"v_cmp_gt_u32 vcc, s{sval}, v{dst}")
    k(f"s_cbranch_vccz {L}_ok")
    k("s_sleep 2")
    k(f"s_branch {L}")
    k.label(f"{L}_fail")
    k(f"s_add_u32 s{S_ERR}, s{S_ERR}, 1\ns_waitcnt vmcnt(0)")
    k.label(f"{L}_ok")

def post_flag(k, P, off_sreg, val_sreg):
    L = k.newlabel(f"{P}_pf")
    k(f"s_cmp_lg_u32 s{S_W}, 0\ns_cbranch_scc1 {L}")
    k(f"v_mov_b32 v6, s{val_sreg}\nv_mov_b32 v7, 0")
    k("s_mov_b64 exec, 1")
    k(f"buffer_store_dword v6, v7, {S4(WS)}, s{off_sreg} offen sc1")
    k("s_mov_b64 exec, -1")
    k.label(L)

def qkv_setup(k, P):
    k(f"""
    s_load_dwordx4 s[36:39], s[0:1], {A_WQ}
    s_load_dwordx2 s[40:41], s[0:1], {A_WV}
    s_load_dwordx2 s[42:43], s[0:1], {D_WS}
    v_lshrrev_b32 v24, 6, v0
    v_and_b32 v0, 63, v0
    v_readfirstlane_b32 s{S_W}, v24
    v_lshlrev_b32 v{V_L16}, 4, v0
    v_and_b32 v24, 15, v0          ; n / x
    v_lshrrev_b32 v25, 4, v0       ; g
    s_and_b32 s{S_TQ}, s{S_W}, 1
    s_lshr_b32 s{S_EH}, s{S_W}, 1
    v_lshrrev_b32 v26, 2, v24
    v_lshlrev_b32 v26, 1, v26
    v_and_b32 v27, 1, v24
    v_add_u32 v26, v26, v27
    v_lshlrev_b32 v26, 8, v26
    v_lshl_add_u32 v{V_KMR}, v25, 4, v26
    v_lshlrev_b32 v26, 3, v0
    s_lshl_b32 s5, s{S_EH}, 10
    v_add_u32 v{V_VMR}, s5, v26
    v_and_b32 v26, 3, v0
    v_lshlrev_b32 v26, 2, v26
    s_lshl_b32 s5, s{S_H}, 4
    s_add_u32 s5, s5, {FLAGS + F_KVM}
    v_add_u32 v{V_FLG}, s5, v26
    s_lshl_b32 s5, s{S_TQ}, 4
    v_add_u32 v26, s5, v24          ; qq
    v_lshlrev_b32 v27, 2, v25       ; 4g
    v_mov_b32 v29, 0xf149f2ca
    """)
    for T in range(2):
        for r in range(4):
            k(f"v_add_u32 v28, {16*T+r}, v27\nv_cmp_gt_u32 vcc, v28, v26\nv_cndmask_b32 v{MASK+4*T+r}, 0, v29, vcc")
    k(f"v_mov_b32 v{MASK+8}, 0\nv_mov_b32 v{MASK+9}, 0\nv_mov_b32 v{MASK+10}, v29\nv_mov_b32 v{MASK+11}, v29")
    k("s_waitcnt lgkmcnt(0)")
    srd(k, WS, 42, WS_BYTES)
    k(f"""
    v_lshrrev_b32 v26, 4, v0
    v_lshlrev_b32 v27, 1, v26
    v_and_b32 v28, 15, v0
    v_xor_b32 v27, v27, v28
    v_lshlrev_b32 v27, 4, v27
    v_lshlrev_b32 v26, 13, v26
    v_add_u32 v26, v26, v27
    s_lshl_b32 s5, s{S_H}, 8
    v_add_u32 v24, s5, v26
    v_xor_b32 v25, 128, v24
    v_bfe_u32 v28, v0, 2, 2        ; r
    v_and_b32 v29, 3, v0           ; c
    v_lshrrev_b32 v30, 4, v0       ; g
    v_lshl_add_u32 v31, v30, 3, v28
    v_lshlrev_b32 v31, 8, v31
    v_and_b32 v32, 1, v30
    v_lshl_add_u32 v32, v32, 2, v28
    v_lshlrev_b32 v32, 1, v32      ; 2F
    v_lshrrev_b32 v33, 1, v29
    s_lshl_b32 s5, s{S_W}, 2
    v_add_u32 v33, s5, v33
    v_xor_b32 v33, v33, v32
    v_lshlrev_b32 v33, 4, v33
    v_and_b32 v34, 1, v29
    v_lshl_add_u32 v33, v34, 3, v33
    v_add_u32 v26, v31, v33        ; t=0, ks<8
    v_xor_b32 v27, 32, v26         ; t=1
    v_add_u32 v28, 0x10000, v26
    v_add_u32 v29, 0x10000, v27
    """)
    for mat, ptr in enumerate((36, 38, 40)):
        srd(k, WSRD, ptr, 512 * 4096 * 2)
        k(f"s_lshl_b32 s5, s{S_W}, 20\ns_lshl_b32 s6, s{S_W}, 15")
        for y in range(32):
            k("s_mov_b32 m0, s6")
            k(f"buffer_load_dwordx4 v{24 + ((y >> 1) & 1)}, {S4(WSRD)}, s5 offen lds")
            if y < 31: k("s_add_u32 s5, s5, 32768\ns_add_u32 s6, s6, 1024")
        k("s_waitcnt vmcnt(0)\ns_barrier")
        n = 0
        for t in range(2):
            for ks in range(16):
                for rp in range(2):
                    k(f"ds_read_b64_tr_b16 {wfp(mat,t,ks,rp)}, v{26 + t + 2*(ks >> 3)} offset:{8192*(ks & 7) + 1024*rp}")
                    n += 1
                    if n % 8 == 0: k("s_waitcnt lgkmcnt(4)")
        k("s_waitcnt lgkmcnt(0)\ns_barrier")

def xs_dma(k, seg_sreg, buf_sreg):
    k(f"s_lshl_b32 s5, s{seg_sreg}, 15\ns_lshl_b32 s6, s{S_W}, 13\ns_add_u32 s5, s5, s6\ns_add_u32 s5, s5, {XN}")
    k(f"s_add_u32 s6, s6, s{buf_sreg}")
    for half in range(2):
        k("s_mov_b32 m0, s6")
        for i in range(4):
            k(f"buffer_load_dwordx4 v{V_L16}, {S4(WS)}, s5 offen offset:{1024*i} lds")
        if half == 0: k("s_add_u32 s5, s5, 4096\ns_add_u32 s6, s6, 4096")

def qkv_loop(k, P):
    c = (128 ** -0.5) * math.log2(math.e)
    k(f"s_mov_b32 s{S_C}, {f2u(c):#x}\ns_mov_b32 s{S_ONES}, 0x3f803f80\ns_mov_b32 s{S_ERR}, 0")
    k(f"s_sub_u32 s5, {NSEG + RQ - 1}, s{S_R}")
    k(f"s_mul_hi_u32 s{S_NJ}, s5, {-(-(1 << 32) // RQ)}")
    k(f"s_mov_b32 s{S_J}, 0\ns_mov_b32 s{S_SEG}, s{S_R}\ns_mov_b32 s{S_XB}, {L_XS}\ns_mov_b32 s{S_RING}, {L_RING}")
    k(f"s_mov_b32 s{S_AJ}, 0\ns_mov_b32 s{S_ASEG}, s{S_R}\ns_mov_b32 s{S_ARING}, {L_RING}")
    xs_dma(k, S_SEG, S_XB)
    k.label(f"{P}_loop")
    k(f"s_add_u32 s{S_T0}, s{S_SEG}, {RQ}\ns_xor_b32 s{S_T1}, s{S_XB}, 32768")
    k(f"s_cmp_lt_u32 s{S_T0}, {NSEG}\ns_cbranch_scc0 {P}_nopf")
    xs_dma(k, S_T0, S_T1)
    k(f"s_waitcnt vmcnt(8)\ns_branch {P}_pf_done")
    k.label(f"{P}_nopf")
    k("s_waitcnt vmcnt(0)")
    k.label(f"{P}_pf_done")
    k("s_barrier")
    k(f"v_add_u32 v{V_T}, s{S_XB}, v{V_L16}")
    def xrd(ks):
        b = XF + 8 * (ks & 1)
        return [f"ds_read_b128 {v(b,4)}, v{V_T} offset:{ks*1024}", f"ds_read_b128 {v(b+4,4)}, v{V_T} offset:{16384+ks*1024}"]
    for x in xrd(0): k(x)
    for ks in range(16):
        if ks < 15:
            for x in xrd(ks + 1): k(x)
            k("s_waitcnt lgkmcnt(2)")
        else:
            k("s_waitcnt lgkmcnt(0)")
        b = XF + 8 * (ks & 1)
        for mat in range(3):
            for t in range(2):
                for T in range(2):
                    A_ = acc(mat, t, T)
                    C_ = "0" if ks == 0 else v(A_, 4)
                    if mat < 2: k(f"v_mfma_f32_16x16x32_bf16 {v(A_,4)}, {wf(mat,t,ks)}, {v(b+4*T,4)}, {C_}")
                    else:       k(f"v_mfma_f32_16x16x32_bf16 {v(A_,4)}, {v(b+4*T,4)}, {wf(mat,t,ks)}, {C_}")
    PK = 72
    ops = []
    for T in range(2):
        for mat, base in ((1, PK), (0, PK + 8)):
            for t in range(2):
                A_ = acc(mat, t, T)
                k(f"v_cvt_pk_bf16_f32 v{base+4*T+2*t}, v{A_}, v{A_+1}\nv_cvt_pk_bf16_f32 v{base+4*T+2*t+1}, v{A_+2}, v{A_+3}")
    for t in range(2):
        for T in range(2):
            A_ = acc(2, t, T)
            k(f"v_cvt_pk_bf16_f32 v{PK+16+4*t+2*T}, v{A_}, v{A_+1}\nv_cvt_pk_bf16_f32 v{PK+16+4*t+2*T+1}, v{A_+2}, v{A_+3}")
    k(f"""
    s_lshl_b32 s5, s{S_H}, 6
    s_add_u32 s5, s5, s{S_SEG}
    s_lshl_b32 s5, s5, 13
    s_lshl_b32 s6, s{S_W}, 10
    s_add_u32 s7, s5, s6
    s_add_u32 s7, s7, {KF}
    buffer_store_dwordx4 {v(PK,4)}, v{V_L16}, {S4(WS)}, s7 offen sc1
    s_add_u32 s7, s7, 4096
    buffer_store_dwordx4 {v(PK+4,4)}, v{V_L16}, {S4(WS)}, s7 offen sc1
    s_lshl_b32 s6, s{S_W}, 11
    s_add_u32 s7, s5, s6
    s_add_u32 s7, s7, {VF}
    buffer_store_dwordx4 {v(PK+16,4)}, v{V_L16}, {S4(WS)}, s7 offen sc1
    buffer_store_dwordx4 {v(PK+20,4)}, v{V_L16}, {S4(WS)}, s7 offen offset:1024 sc1
    s_lshl_b32 s6, s{S_W}, 10
    s_add_u32 s5, s6, s{S_RING}
    v_add_u32 v{V_T}, s5, v{V_L16}
    ds_write_b128 v{V_T}, {v(PK+8,4)}
    ds_write_b128 v{V_T}, {v(PK+12,4)} offset:4096
    ds_write_b128 v{V_T}, {v(PK,4)} offset:8192
    ds_write_b128 v{V_T}, {v(PK+4,4)} offset:12288
    v_add_u32 v{V_T}, s6, v{V_T}
    ds_write_b128 v{V_T}, {v(PK+16,4)} offset:16384
    ds_write_b128 v{V_T}, {v(PK+20,4)} offset:17408
    s_add_u32 s{S_J}, s{S_J}, 1
    s_waitcnt vmcnt(0) lgkmcnt(0)
    s_barrier
    s_lshl_b32 s5, s{S_H}, 4
    s_lshl_b32 s6, s{S_R}, 2
    s_add_u32 s5, s5, s6
    s_add_u32 s{S_T2}, s5, {FLAGS + F_KV}
    """)
    post_flag(k, P, S_T2, S_J)
    k(f"""
    s_add_u32 s{S_SEG}, s{S_SEG}, {RQ}
    s_xor_b32 s{S_XB}, s{S_XB}, 32768
    s_add_u32 s{S_RING}, s{S_RING}, {RING_E}
    s_cmp_lt_u32 s{S_RING}, {L_RING + NRING*RING_E}
    s_cselect_b32 s{S_RING}, s{S_RING}, {L_RING}
    s_cmp_gt_u32 s{S_J}, {LAG}
    s_cbranch_scc1 {P}_att
    s_cmp_lt_u32 s{S_J}, s{S_NJ}
    s_cbranch_scc1 {P}_loop
    """)
    k.label(f"{P}_att")
    attend(k, P)
    k(f"""
    s_add_u32 s{S_AJ}, s{S_AJ}, 1
    s_waitcnt vmcnt(0)
    s_barrier
    s_lshl_b32 s5, s{S_R}, 7
    s_lshl_b32 s6, s{S_H}, 2
    s_add_u32 s5, s5, s6
    s_add_u32 s{S_T2}, s5, {FLAGS + F_O}
    """)
    post_flag(k, P, S_T2, S_AJ)
    k(f"""
    s_add_u32 s{S_ASEG}, s{S_ASEG}, {RQ}
    s_add_u32 s{S_ARING}, s{S_ARING}, {RING_E}
    s_cmp_lt_u32 s{S_ARING}, {L_RING + NRING*RING_E}
    s_cselect_b32 s{S_ARING}, s{S_ARING}, {L_RING}
    s_cmp_lt_u32 s{S_J}, s{S_NJ}
    s_cbranch_scc1 {P}_loop
    s_cmp_lt_u32 s{S_AJ}, s{S_NJ}
    s_cbranch_scc1 {P}_att
    """)

def attend(k, P):
    Q, KK, KM_, VV, VMr = 24, 40, 72, 88, 104
    SS = 112
    k(f"s_lshl_b32 s5, s{S_TQ}, 12\ns_add_u32 s5, s5, s{S_ARING}\nv_add_u32 v{V_T}, s5, v{V_L16}")
    for ks in range(4): k(f"ds_read_b128 {v(Q+4*ks,4)}, v{V_T} offset:{1024*ks}")
    k(f"v_add_u32 v{V_T}, s{S_ARING}, v{V_L16}")
    for T in range(2):
        for ks in range(4): k(f"ds_read_b128 {v(KK+16*T+4*ks,4)}, v{V_T} offset:{8192+4096*T+1024*ks}")
    k("s_waitcnt lgkmcnt(0)")
    for ks in range(4):
        for T in range(2):
            C_ = v(MASK + 4 * T, 4) if ks == 0 else v(SS + 4 * T, 4)
            k(f"v_mfma_f32_16x16x32_bf16 {v(SS+4*T,4)}, {v(KK+16*T+4*ks,4)}, {v(Q+4*ks,4)}, {C_}")
    k(f"s_lshl_b32 s5, s{S_EH}, 12\ns_add_u32 s5, s5, s{S_ARING}\nv_add_u32 v{V_T}, s5, v{V_L16}")
    for i in range(4): k(f"ds_read_b128 {v(VV+4*i,4)}, v{V_T} offset:{16384+1024*i}")
    k(f"s_add_u32 s{S_T0}, s{S_ASEG}, 1")
    wait_flag(k, P, "kvm", V_FLG, "0", S_T0)
    k(f"s_lshl_b32 s5, s{S_ASEG}, 5\ns_add_u32 s5, s5, s{S_H}\ns_lshl_b32 s5, s5, 11\ns_add_u32 s6, s5, {KM}\ns_add_u32 s7, s5, {VM}")
    for ks in range(4): k(f"buffer_load_dwordx4 {v(KM_+4*ks,4)}, v{V_KMR}, {S4(WS)}, s6 offen offset:{64*ks} sc1")
    k(f"buffer_load_dwordx2 {v(VMr,2)}, v{V_VMR}, {S4(WS)}, s7 offen sc1")
    k(f"buffer_load_dwordx2 {v(VMr+2,2)}, v{V_VMR}, {S4(WS)}, s7 offen offset:512 sc1")
    k("s_waitcnt vmcnt(2)")
    for ks in range(4):
        C_ = v(MASK + 8, 4) if ks == 0 else v(SS + 8, 4)
        k(f"v_mfma_f32_16x16x32_bf16 {v(SS+8,4)}, {v(KM_+4*ks,4)}, {v(Q+4*ks,4)}, {C_}")
    S = [SS + i for i in range(10)]
    M, M2 = 6, 7
    k(f"v_max3_f32 v{M}, v{S[0]}, v{S[1]}, v{S[2]}\nv_max3_f32 v{M2}, v{S[3]}, v{S[4]}, v{S[5]}")
    k(f"v_max3_f32 v{M}, v{M}, v{S[6]}, v{S[7]}\nv_max3_f32 v{M2}, v{M2}, v{S[8]}, v{S[9]}\nv_max_f32 v{M}, v{M}, v{M2}")
    for sw in ("v_permlane32_swap_b32", "v_permlane16_swap_b32"):
        k(f"v_mov_b32 v{M2}, v{M}\n{sw} v{M}, v{M2}\nv_max_f32 v{M}, v{M}, v{M2}")
    k(f"v_mul_f32 v{M}, {f2u(-(128 ** -0.5) * math.log2(math.e)):#x}, v{M}")
    for r in S: k(f"v_fma_f32 v{r}, v{r}, s{S_C}, v{M}")
    for r in S: k(f"v_exp_f32 v{r}, v{r}")
    PF, P2 = 40, 44
    for i in range(4): k(f"v_cvt_pk_bf16_f32 v{PF+i}, v{SS+2*i}, v{SS+2*i+1}")
    k(f"v_cvt_pk_bf16_f32 v{P2}, v{SS+8}, v{SS+9}\nv_mov_b32 v{P2+1}, 0")
    k("s_waitcnt vmcnt(0) lgkmcnt(0)")
    ZP = 48
    for i in range(4): k(f"v_mov_b32 v{ZP+2*i}, v{VMr+i}\nv_mov_b32 v{ZP+2*i+1}, 0")
    O = 56
    for i in range(4): k(f"v_mfma_f32_16x16x32_bf16 {v(O+4*i,4)}, {v(VV+4*i,4)}, {v(PF,4)}, 0")
    for i in range(4): k(f"v_mfma_f32_16x16x16_bf16 {v(O+4*i,4)}, {v(ZP+2*i,2)}, {v(P2,2)}, {v(O+4*i,4)}")
    k(f"v_dot2_f32_bf16 v{M}, v{PF}, s{S_ONES}, 0\nv_dot2_f32_bf16 v{M2}, v{PF+1}, s{S_ONES}, 0")
    k(f"v_dot2_f32_bf16 v{M}, v{PF+2}, s{S_ONES}, v{M}\nv_dot2_f32_bf16 v{M2}, v{PF+3}, s{S_ONES}, v{M2}")
    k(f"v_dot2_f32_bf16 v{M}, v{P2}, s{S_ONES}, v{M}\nv_add_f32 v{M}, v{M}, v{M2}")
    for sw in ("v_permlane32_swap_b32", "v_permlane16_swap_b32"):
        k(f"v_mov_b32 v{M2}, v{M}\n{sw} v{M}, v{M2}\nv_add_f32 v{M}, v{M}, v{M2}")
    k(f"v_rcp_f32 v{M}, v{M}")
    for r in range(16): k(f"v_mul_f32 v{O+r}, v{O+r}, v{M}")
    PK = 72
    for i in range(4):
        k(f"v_cvt_pk_bf16_f32 v{PK+2*i}, v{O+4*i}, v{O+4*i+1}\nv_cvt_pk_bf16_f32 v{PK+2*i+1}, v{O+4*i+2}, v{O+4*i+3}")
    k(f"""
    s_lshl_b32 s5, s{S_ASEG}, 18
    s_lshl_b32 s6, s{S_TQ}, 17
    s_add_u32 s5, s5, s6
    s_lshl_b32 s6, s{S_H}, 12
    s_add_u32 s5, s5, s6
    s_lshl_b32 s6, s{S_EH}, 11
    s_add_u32 s5, s5, s6
    s_add_u32 s5, s5, {OF}
    buffer_store_dwordx4 {v(PK,4)}, v{V_L16}, {S4(WS)}, s5 offen sc1
    buffer_store_dwordx4 {v(PK+4,4)}, v{V_L16}, {S4(WS)}, s5 offen offset:1024 sc1
    """)
```

```python
import sys
from common import *
import chain, qkv, gemmk, ffn1, ln

NAME = "recurrent_scan__memory_aug_recurrent_mem_tr__dense_activation_mish__prompt_kernel"

def build(stamps=False, opts=''):
    k = K()
    k(f"""
    s_cmp_ge_u32 s2, 256
    s_cbranch_scc1 mg_exit
    {"s_and_b32 s5, s2, 7" if 'spread' not in opts else "s_lshr_b32 s5, s2, 5"}
    {"s_lshr_b32 s6, s2, 3" if 'spread' not in opts else "s_and_b32 s6, s2, 31"}
    s_cmp_eq_u32 s5, 0
    s_cbranch_scc1 mg_chain
    s_cmp_le_u32 s5, 2
    s_cbranch_scc1 mg_wo
    s_cmp_eq_u32 s5, 3
    s_cbranch_scc1 mg_f2
    s_sub_u32 s5, s5, 4
    s_lshl_b32 s5, s5, 5
    s_add_u32 s5, s5, s6
    s_cmp_lt_u32 s5, {32*RQ}
    s_cbranch_scc1 mg_qkv
    s_sub_u32 s5, s5, {32*RQ}
    s_cmp_lt_u32 s5, {7*RH}
    s_cbranch_scc1 mg_f1
    s_endpgm
    """)
    k.label("mg_chain")
    k("s_mov_b32 s3, s6")
    chain.xcc_announce(k, "ch")
    chain.chain_setup(k, "ch")
    if 'forceslow' in opts: k("s_branch mg_chain_slow")
    chain.xcc_decide(k, "ch", "mg_chain_slow")
    chain.chain_loop(k, "ch", stamps=False, dbg=('dbg' in opts), flags=True)
    k("s_endpgm")
    k.label("mg_chain_slow")
    k("s_waitcnt vmcnt(0)")
    chain.chain_loop(k, "cs", stamps=False, dbg=('dbg' in opts), flags=True, sc='sc1')
    k("s_endpgm")
    k.label("mg_wo")
    k("s_and_b32 s3, s6, 15\ns_lshr_b32 s6, s6, 4\ns_sub_u32 s5, s5, 1\ns_lshl_b32 s5, s5, 1\ns_add_u32 s16, s5, s6")
    gemmk.gk_setup(k, "wo", "wo"); gemmk.gk_loop(k, "wo", "wo")
    k("s_endpgm")
    k.label("mg_f2")
    k("s_and_b32 s3, s6, 15\ns_lshr_b32 s16, s6, 4")
    gemmk.gk_setup(k, "f2", "f2"); gemmk.gk_loop(k, "f2", "f2")
    k("s_endpgm")
    k.label("mg_qkv")
    k(f"s_mul_hi_u32 s3, s5, {-(-(1 << 32) // RQ)}\ns_mul_i32 s6, s3, {RQ}\ns_sub_u32 s16, s5, s6")
    qkv.qkv_setup(k, "qk"); qkv.qkv_loop(k, "qk")
    k("s_endpgm")
    k.label("mg_f1")
    k(f"s_lshr_b32 s3, s5, 1\ns_and_b32 s16, s5, 1")
    ffn1.f1_setup(k, "f1"); ffn1.f1_loop(k, "f1")
    k.label("mg_exit")
    k("s_endpgm")
    mega = k.finish()
    k0 = K(); ln.init_kernel(k0, "ln"); init = k0.finish()
    hdr = open('recurrent_scan__memory_aug_recurrent_mem_tr__dense_activation_mish__prompt.s.ref').read().split("; Override launch")[0]
    txt = hdr
    txt += "; @launch kernel=init_kernel grid=(128,1,1) block=(64,1,1) lds=0\n"
    txt += f"; @launch kernel={NAME} grid=(256,1,1) block=(256,1,1) lds=163840\n"
    txt += '.amdgcn_target "amdgcn-amd-amdhsa--gfx950"\n.text\n'
    txt += kernel_text("init_kernel", init, 96, 96)
    txt += kernel_text(NAME, mega, 512, 256)
    print("mega instrs", len(k.ins), "nops", k.nops, file=sys.stderr)
    return txt
if __name__ == "__main__":
    open(sys.argv[1], "w").write(build(opts=" ".join(sys.argv[2:])))
```

```python
from asm import *
from layout import *
import common
import math, struct

def f2u(x): return struct.unpack("<I", struct.pack("<f", x))[0]

L_WO = 0
L_KS = 131072
L_MX = 147456
L_QX = 155648
L_KX = L_QX + 2304
L_OX = L_KX + 2304
RSX = 288
S_H, S_W = 3, 4
WS = 8
WSRD = 12
S_STEP = 20
S_MEMC, S_MEMN, S_MEMP = 21, 22, 23
S_INBC, S_INBC1, S_INBP = 24, 25, 26
S_KFN, S_VFN, S_KM, S_VM = 27, 28, 29, 30
S_KSM0 = 31
S_SPIN = 32
S_C = 33
S_T0, S_T1, S_T2 = 34, 35, 36
S_ERR = 37
S_KSLOT = 38
S_FLG = 39
S_JUNK = 19
V_IDX, V_L16, V_FLV, V_MEMP, V_MEMW = 1, 2, 3, 4, 5
V_MR = 6
V_PART, V_INB, V_PUB = 9, 10, 11
V_SEL = 12
V_QW, V_QR, V_KR, V_OW, V_WO, V_KMO, V_VMO = 16, 17, 18, 19, 20, 21, 22
V_TMP = 23
V_WARM = 0
AQ, AK, AV = 24, 32, 40
MA = [48, 52, 56, 60, 64, 68, 72, 76]
KSEG = 80
QB = [48, 52, 112, 116]
KA = [80, 84, 88, 92]
VSEG = 120
WSLOT = [96, 104, 80, 88, 112, 56, 64, 72, 120]
WACC = [28, 36, 40, 44]
OA = [24, 32, 48, 52]
OUT = [120, 124]
WV0 = 128

def wfrag(mat, t, u):
    f = t * 8 + u
    if mat == 0: return a(8 * f, 8)
    if mat == 1: return a(128 + 8 * f, 8)
    return v(WV0 + 8 * f, 8)
def wfrag_pair(mat, t, u, rp):
    f = t * 8 + u
    if mat == 0: return a(8 * f + 2 * rp, 2)
    if mat == 1: return a(128 + 8 * f + 2 * rp, 2)
    return v(WV0 + 8 * f + 2 * rp, 2)

def srd(k, r, ptr, nbytes):
    k(f"s_mov_b32 s{r}, s{ptr}")
    k(f"s_and_b32 s{r+1}, s{ptr+1}, 0xffff")
    k(f"s_mov_b32 s{r+2}, {nbytes}")
    k(f"s_mov_b32 s{r+3}, 0x20000")

class Stamps:
    def __init__(self, k, on): self.k = k; self.on = on; self.used = []
    def init(self, n=16):
        if not self.on: return
        for i in range(n): self.k(f"s_mov_b32 s{44+i}, 0")
        self.k("s_memtime s[40:41]\ns_waitcnt lgkmcnt(0)\ns_mov_b32 s42, s40")
    def __call__(self, i):
        if not self.on: return
        self.used.append(i)
        self.k(f"s_memtime s[{64+2*i}:{65+2*i}]")
    def collect(self):
        if not self.on: return
        self.k("s_waitcnt lgkmcnt(0)")
        prev = 42
        for i in self.used:
            self.k(f"s_sub_u32 s43, s{64+2*i}, s{prev}\ns_add_u32 s{44+i}, s{44+i}, s43")
            prev = 64 + 2 * i
        self.k(f"s_mov_b32 s42, s{prev}")

def sm(k, mat, t, u):
    acc = [AQ, AK, AV][mat] + 4 * t
    k(f"v_smfmac_f32_16x16x64_bf16 {v(acc,4)}, {v(MA[u],4)}, {wfrag(mat,t,u)}, v{V_IDX}")

def chain_setup(k, P):
    k(f"""
    s_load_dwordx8 s[16:23], s[0:1], {A_WQ}
    s_load_dwordx2 s[24:25], s[0:1], {A_MEM0}
    s_load_dwordx2 s[26:27], s[0:1], {D_WS}
    v_lshrrev_b32 v24, 6, v0
    v_and_b32 v0, 63, v0
    v_readfirstlane_b32 s{S_W}, v24
    v_and_b32 v24, 15, v0          ; n
    v_lshrrev_b32 v25, 4, v0       ; g
    v_lshlrev_b32 v{V_L16}, 4, v0
    v_and_b32 v26, 1, v0
    v_mul_u32_u24 v26, 0xaaaa, v26
    v_add_u32 v{V_IDX}, 0x4444, v26
    s_lshl_b32 s5, s{S_W}, 11
    v_add_u32 v{V_MEMP}, s5, v{V_L16}
    v_add_u32 v{V_MEMW}, {L_MX}, v{V_MEMP}
    v_xor_b32 v{V_MR}, 2048, v{V_MEMW}
    v_xor_b32 v{V_MR+1}, 4096, v{V_MEMW}
    v_xor_b32 v{V_MR+2}, 6144, v{V_MEMW}
    s_lshl_b32 s5, s{S_W}, 4
    v_lshrrev_b32 v26, 1, v24
    v_add_u32 v26, s5, v26
    v_lshlrev_b32 v26, 12, v26
    s_lshl_b32 s5, s{S_H}, 7
    v_add_u32 v26, s5, v26
    v_and_b32 v27, 1, v24
    v_lshlrev_b32 v27, 6, v27
    v_add_u32 v26, v26, v27
    v_lshlrev_b32 v27, 4, v25
    v_add_u32 v{V_PART}, v26, v27
    s_and_b32 s7, s{S_W}, 1
    s_lshl_b32 s6, s{S_H}, 1
    s_add_u32 s6, s6, s7
    s_lshl_b32 s5, s6, 12
    v_add_u32 v{V_INB}, s5, v{V_L16}
    s_lshr_b32 s5, s6, 3
    s_lshl_b32 s5, s5, 10
    s_bfe_u32 s7, s6, 0x20001
    s_lshl_b32 s7, s7, 8
    s_add_u32 s5, s5, s7
    s_and_b32 s7, s6, 1
    s_lshl_b32 s7, s7, 4
    s_add_u32 s5, s5, s7
    v_and_b32 v26, 3, v24
    v_lshlrev_b32 v26, 1, v26
    v_and_b32 v27, 1, v25
    v_add_u32 v28, v26, v27          ; m
    v_lshlrev_b32 v26, 5, v28
    v_bfe_u32 v30, v24, 2, 1         ; nb
    v_lshl_add_u32 v26, v30, 3, v26
    v_add_u32 v{V_PUB}, s5, v26
    v_and_b32 v26, 3, v24
    v_bfe_u32 v27, v24, 2, 1
    v_lshlrev_b32 v27, 4, v27
    v_mov_b32 v29, 0x3f80
    v_lshlrev_b32 v29, v27, v29
    """)
    for r in range(4):
        k(f"v_cmp_eq_u32 vcc, {r}, v26\nv_cndmask_b32 v{V_SEL+r}, 0, v29, vcc")
    k(f"""
    v_mul_u32_u24 v26, {2*RSX}, v25
    v_lshrrev_b32 v27, 2, v24
    v_lshlrev_b32 v27, 4, v27
    v_add_u32 v26, v26, v27
    v_and_b32 v27, 3, v24
    v_lshlrev_b32 v27, 1, v27
    v_add_u32 v26, v26, v27
    s_lshl_b32 s5, s{S_W}, 6
    s_add_u32 s5, s5, {L_QX}
    v_add_u32 v{V_QW}, s5, v26
    v_and_b32 v26, 7, v24
    v_mul_u32_u24 v26, {RSX}, v26
    v_lshlrev_b32 v27, 4, v25
    v_add_u32 v26, v26, v27
    v_add_u32 v{V_QR}, {L_QX}, v26
    ; m'(x) = 2*(x>>2) + (x&1)
    v_lshrrev_b32 v26, 2, v24
    v_lshlrev_b32 v26, 1, v26
    v_and_b32 v29, 1, v24
    v_add_u32 v29, v26, v29
    v_mul_u32_u24 v26, {RSX}, v29
    v_add_u32 v26, v26, v27
    v_add_u32 v{V_KR}, {L_KX}, v26
    v_lshlrev_b32 v26, 8, v29
    v_add_u32 v26, v26, v27
    s_lshl_b32 s5, s{S_W}, 6
    v_add_u32 v{V_KMO}, s5, v26
    v_lshlrev_b32 v26, 3, v0
    s_lshl_b32 s5, s{S_W}, 9
    v_add_u32 v{V_VMO}, s5, v26
    v_and_b32 v26, 7, v24
    v_lshlrev_b32 v26, 4, v26
    v_lshrrev_b32 v27, 1, v25
    v_lshlrev_b32 v27, 7, v27
    v_add_u32 v26, v26, v27
    v_and_b32 v27, 1, v25
    v_lshlrev_b32 v27, 3, v27
    v_add_u32 v26, v26, v27
    s_lshl_b32 s5, s{S_W}, 9
    s_add_u32 s5, s5, {L_OX}
    v_add_u32 v{V_OW}, s5, v26
    s_lshl_b32 s5, s{S_W}, 15
    v_add_u32 v{V_WO}, s5, v{V_L16}
    s_waitcnt lgkmcnt(0)
    """)
    srd(k, WS, 26, WS_BYTES)
    srd(k, WSRD, 24, 8192)
    k(f"""
    s_cmp_ge_u32 s{S_W}, 2
    s_cbranch_scc1 {P}_nopub0
    s_lshr_b32 s5, s6, 3
    s_lshl_b32 s5, s5, 6
    s_and_b32 s7, s6, 7
    s_lshl_b32 s7, s7, 1
    s_add_u32 s5, s5, s7
    s_lshl_b32 s5, s5, 1
    v_lshlrev_b32 v26, 10, v28
    v_lshl_add_u32 v26, v30, 1, v26
    v_add_u32 v26, s5, v26
    buffer_load_ushort v30, v26, s[{WSRD}:{WSRD+3}], 0 offen
    buffer_load_ushort v31, v26, s[{WSRD}:{WSRD+3}], 0 offen offset:32
    buffer_load_ushort v32, v26, s[{WSRD}:{WSRD+3}], 0 offen offset:64
    buffer_load_ushort v33, v26, s[{WSRD}:{WSRD+3}], 0 offen offset:96
    s_waitcnt vmcnt(0)
    v_lshl_or_b32 v30, v31, 16, v30
    v_lshl_or_b32 v31, v33, 16, v32
    s_mov_b32 s5, {MEMR}
    buffer_store_dwordx2 v[30:31], v{V_PUB}, s[{WS}:{WS+3}], s5 offen sc1
    """)
    k.label(f"{P}_nopub0")
    k(f"""
    v_lshrrev_b32 v26, 4, v0
    v_lshlrev_b32 v27, 1, v26
    v_and_b32 v28, 15, v0
    v_xor_b32 v27, v27, v28
    v_lshlrev_b32 v27, 4, v27
    v_lshlrev_b32 v26, 13, v26
    v_add_u32 v26, v26, v27
    s_lshl_b32 s5, s{S_H}, 8
    v_add_u32 v24, s5, v26
    v_xor_b32 v25, 128, v24
    v_bfe_u32 v28, v0, 2, 2        ; r
    v_and_b32 v29, 3, v0           ; c
    v_lshrrev_b32 v30, 4, v0       ; gB
    v_and_b32 v31, 1, v28          ; r&1
    v_lshrrev_b32 v32, 1, v28      ; r>>1
    v_and_b32 v33, 1, v30          ; gB&1
    v_lshrrev_b32 v34, 1, v30      ; gB>>1
    v_lshlrev_b32 v35, 4, v31
    v_lshl_add_u32 v35, v34, 2, v35
    v_lshl_add_u32 v35, v32, 1, v35
    v_add_u32 v35, v35, v33        ; Lrow
    v_lshlrev_b32 v35, 8, v35
    v_lshlrev_b32 v36, 2, v31
    v_lshl_add_u32 v36, v32, 1, v36
    v_add_u32 v36, v36, v33        ; F
    v_lshlrev_b32 v36, 1, v36      ; 2F
    v_lshrrev_b32 v37, 1, v29      ; c>>1
    s_lshl_b32 s5, s{S_W}, 2
    v_add_u32 v37, s5, v37
    v_xor_b32 v37, v37, v36
    v_lshlrev_b32 v37, 4, v37
    v_and_b32 v38, 1, v29
    v_lshl_add_u32 v37, v38, 3, v37
    v_add_u32 v35, v35, v37
    s_lshl_b32 s5, s{S_W}, 15
    v_add_u32 v26, s5, v35
    v_xor_b32 v27, 32, v26
    """)
    for mat in range(3):
        srd(k, WSRD, 16 + 2 * mat, 512 * 4096 * 2)
        k(f"s_lshl_b32 s5, s{S_W}, 20\ns_lshl_b32 s6, s{S_W}, 15")
        for y in range(32):
            k(f"s_mov_b32 m0, s6")
            k(f"buffer_load_dwordx4 v{24 + ((y >> 2) & 1)}, s[{WSRD}:{WSRD+3}], s5 offen lds")
            if y < 31: k(f"s_add_u32 s5, s5, 32768\ns_add_u32 s6, s6, 1024")
        k("s_waitcnt vmcnt(0)\ns_barrier")
        for t in range(2):
            for u in range(8):
                k(f"v_xor_b32 v28, {u*16384}, v{26+t}")
                for rp in range(4):
                    off = 8192 * (rp & 1) + 2048 * (rp >> 1)
                    k(f"ds_read_b64_tr_b16 {wfrag_pair(mat,t,u,rp)}, v28 offset:{off}")
                if u % 2 == 1: k("s_waitcnt lgkmcnt(0)")
        k("s_waitcnt lgkmcnt(0)\ns_barrier")
    srd(k, WSRD, 22, 4096 * 512 * 2)
    k(f"""
    v_lshrrev_b32 v26, 4, v0
    v_and_b32 v27, 1, v26
    v_lshlrev_b32 v27, 2, v27        ; 4*(row&1)
    v_and_b32 v28, 15, v0
    v_xor_b32 v27, v27, v28
    v_lshlrev_b32 v27, 4, v27
    v_lshlrev_b32 v26, 10, v26
    v_add_u32 v26, v26, v27
    s_lshl_b32 s5, s{S_W}, 8
    v_add_u32 v24, s5, v26
    v_xor_b32 v25, 128, v24
    s_lshl_b32 s5, s{S_H}, 17
    s_lshl_b32 s6, s{S_W}, 15
    """)
    for y in range(32):
        k("s_mov_b32 m0, s6")
        k(f"buffer_load_dwordx4 v{24 + (y & 1)}, s[{WSRD}:{WSRD+3}], s5 offen lds")
        if y < 31: k("s_add_u32 s5, s5, 4096\ns_add_u32 s6, s6, 1024")
    k(f"""
    v_lshlrev_b32 v35, 3, v34
    v_lshl_add_u32 v35, v33, 2, v35
    v_add_u32 v35, v35, v31
    v_lshlrev_b32 v35, 8, v35
    v_lshlrev_b32 v36, 2, v31
    v_lshl_add_u32 v36, v33, 3, v36
    v_lshrrev_b32 v37, 1, v29
    v_lshl_add_u32 v37, v32, 1, v37
    v_xor_b32 v37, v37, v36
    v_lshlrev_b32 v37, 4, v37
    v_lshl_add_u32 v37, v38, 3, v37
    v_add_u32 v35, v35, v37
    s_lshl_b32 s5, s{S_W}, 15
    v_add_u32 v28, s5, v35
    s_waitcnt vmcnt(0)
    """)
    TMP = 48
    for half in range(2):
        for tau in range(4):
            k(f"v_xor_b32 v29, {64*tau}, v28")
            for e2 in range(2):
                eb = 2 * half + e2
                for rp in range(4):
                    off = (32 * eb + 16 * (rp >> 1) + 2 * (rp & 1)) * 256
                    k(f"ds_read_b64_tr_b16 {v(TMP+16*tau+8*e2+2*rp,2)}, v29 offset:{off}")
            k("s_waitcnt lgkmcnt(0)")
        for tau in range(4):
            for e2 in range(2):
                for hf in range(2):
                    k(f"ds_write_b128 v{V_WO}, {v(TMP+16*tau+8*e2+4*hf,4)} offset:{half*16384+tau*4096+e2*2048+hf*1024}")
        k("s_waitcnt lgkmcnt(0)")
    k("s_barrier")
    k(f"""
    v_lshlrev_b32 v24, 7, v0
    v_add_u32 v{V_WARM}, {1 << 24}, v24
    """)

def step_offsets(k):
    k(f"""
    s_and_b32 s5, s{S_STEP}, 3
    s_lshl_b32 s5, s5, 13
    s_add_u32 s{S_MEMC}, s5, {MEMR}
    s_add_u32 s5, s{S_STEP}, 1
    s_and_b32 s5, s5, 3
    s_lshl_b32 s5, s5, 13
    s_add_u32 s{S_MEMN}, s5, {MEMR}
    s_add_u32 s5, s{S_STEP}, 3
    s_and_b32 s5, s5, 3
    s_lshl_b32 s5, s5, 13
    s_add_u32 s{S_MEMP}, s5, {MEMR}
    s_and_b32 s5, s{S_STEP}, 1
    s_lshl_b32 s6, s5, 18
    s_add_u32 s{S_INBC}, s6, {INBOX}
    s_add_u32 s{S_INBC1}, s{S_INBC}, 32768
    s_xor_b32 s6, s6, 0x40000
    s_add_u32 s{S_INBP}, s6, {INBOX}
    s_lshl_b32 s6, s5, 13
    s_add_u32 s{S_KSLOT}, s6, {L_KS}
    s_xor_b32 s6, s6, 8192
    s_lshl_b32 s7, s{S_W}, 11
    s_add_u32 s6, s6, s7
    s_add_u32 s{S_KSM0}, s6, {L_KS}
    s_lshl_b32 s5, s{S_H}, 6
    s_add_u32 s5, s5, s{S_STEP}
    s_add_u32 s5, s5, 1
    s_lshl_b32 s5, s5, 13
    s_add_u32 s{S_KFN}, s5, {KF}
    s_add_u32 s{S_VFN}, s5, {VF}
    s_lshl_b32 s5, s{S_STEP}, 5
    s_add_u32 s5, s5, s{S_H}
    s_lshl_b32 s5, s5, 11
    s_add_u32 s{S_KM}, s5, {KM}
    s_add_u32 s{S_VM}, s5, {VM}
    """)

def poll(k, P, name, r0, voff, soff, tmp, tmp2, cnt=None):
    L = f"{P}_{name}"
    k(f"s_mov_b32 s{S_SPIN}, 0")
    k.label(L)
    k(f"buffer_load_dwordx4 {v(r0,4)}, v{voff}, s[{WS}:{WS+3}], s{soff} offen sc1")
    k(f"buffer_load_dwordx4 {v(r0+4,4)}, v{voff}, s[{WS}:{WS+3}], s{soff} offen offset:1024 sc1")
    k(f"s_add_u32 s{S_SPIN}, s{S_SPIN}, 1")
    if cnt is not None: k(f"s_add_u32 s{cnt}, s{cnt}, 1")
    k(f"s_cmp_gt_u32 s{S_SPIN}, 20000")
    k(f"s_cbranch_scc1 {L}_fail")
    k("s_waitcnt vmcnt(0)")
    k(f"v_max3_u32 v{tmp}, v{r0}, v{r0+1}, v{r0+2}")
    k(f"v_max3_u32 v{tmp2}, v{r0+3}, v{r0+4}, v{r0+5}")
    k(f"v_max3_u32 v{tmp}, v{tmp}, v{r0+6}, v{r0+7}")
    k(f"v_max_u32 v{tmp}, v{tmp}, v{tmp2}")
    k(f"v_cmp_eq_u32 vcc, -1, v{tmp}")
    k(f"s_cbranch_vccnz {L}")
    k(f"s_branch {L}_ok")
    k.label(f"{L}_fail")
    k(f"s_add_u32 s{S_ERR}, s{S_ERR}, 1")
    k("s_waitcnt vmcnt(0)")
    k.label(f"{L}_ok")

def ilv(k, main, fill, start=0, per=1):
    fill = list(fill)
    for i, m in enumerate(main):
        k(m)
        if i >= start:
            for _ in range(per):
                if fill: k(fill.pop(0))
    for f in fill: k(f)

def smt(mat, t, u):
    acc = [AQ, AK, AV][mat] + 4 * t
    return f"v_smfmac_f32_16x16x64_bf16 {v(acc,4)}, {v(MA[u],4)}, {wfrag(mat,t,u)}, v{V_IDX}"

def chain_loop(k, P, stamps=False, dbg=True, D1=0, D2=0, X='', flags=False, sc=''):
    ST = Stamps(k, stamps)
    WSs = f"s[{WS}:{WS+3}]"
    c = (128 ** -0.5) * math.log2(math.e)
    S_ONES = 41 if not stamps else 62
    S_RST = 18
    S_FR, S_FC = 16, 17
    S_FNEED, S_FOFF, S_FNEED2, S_FOFF2 = 39, 38, 26, 31
    S_INBPv = 28
    S_KVMF = 60 if stamps else 42
    INB_SLOT = 0x40000
    k(f"s_mov_b32 s{S_C}, {f2u(c):#x}")
    k(f"s_mov_b32 s{S_ONES}, 0x3f803f80")
    k(f"s_mov_b32 s{S_ERR}, 0")
    k(f"s_lshl_b32 s5, s{S_W}, 8\ns_add_u32 s{S_JUNK}, s5, {L_OX + 2048}")
    SENT = 116
    def flag_spin(tag):
        L = k.newlabel(f"{P}_{tag}")
        k(f"v_readfirstlane_b32 s5, v{V_FLV}")
        k(f"s_cmp_ge_u32 s5, s{S_FNEED}\ns_cbranch_scc1 {L}_ok")
        k(f"s_mov_b32 s{S_SPIN}, 0")
        k.label(L)
        k(f"v_mov_b32 v{V_FLV}, 0")
        k(f"buffer_load_dword v{V_FLV}, v{V_FLV}, {WSs}, s{S_FOFF} offen sc1")
        k(f"s_add_u32 s{S_SPIN}, s{S_SPIN}, 1\ns_cmp_gt_u32 s{S_SPIN}, 0x8000\ns_cbranch_scc1 {L}_fail")
        k(f"s_waitcnt vmcnt(0)\nv_readfirstlane_b32 s5, v{V_FLV}")
        k(f"s_cmp_ge_u32 s5, s{S_FNEED}\ns_cbranch_scc0 {L}\ns_branch {L}_ok")
        k.label(f"{L}_fail")
        k(f"s_add_u32 s{S_ERR}, s{S_ERR}, 1\ns_waitcnt vmcnt(0)")
        k.label(f"{L}_ok")
    def flag_next(seg_plus):
        k(f"s_lshl_b32 s5, s{S_H}, 4\ns_lshl_b32 s{S_FOFF2}, s{S_FR}, 2\ns_add_u32 s{S_FOFF2}, s{S_FOFF2}, s5")
        k(f"s_add_u32 s{S_FOFF2}, s{S_FOFF2}, {FLAGS + F_KV}")
        k(f"s_add_u32 s5, s{S_STEP}, {seg_plus}\ns_cmp_ge_u32 s5, {NSEG}\ns_cselect_b32 s{S_FNEED2}, 0, s{S_FC}")
        k(f"s_add_u32 s{S_FR}, s{S_FR}, 1\ns_cmp_eq_u32 s{S_FR}, {RQ}\ns_cselect_b32 s{S_FR}, 0, s{S_FR}\ns_addc_u32 s{S_FC}, s{S_FC}, 0")
    S_KSM0v = 29 + 0
    def k_dma01():
        return [f"buffer_load_dwordx4 v{V_MEMP}, {WSs}, s{S_KFN} offen lds",
                f"buffer_load_dwordx4 v{V_MEMP}, {WSs}, s{S_KFN} offen offset:1024 lds"]
    S_KM0 = 28
    S_KRD = 61 if not stamps else 63
    k(f"""
    s_mov_b32 s{S_STEP}, 0
    s_mov_b32 s{S_MEMC}, {MEMR}
    s_mov_b32 s{S_MEMN}, {MEMR + 8192}
    s_mov_b32 s{S_MEMP}, {MEMR + 3*8192}
    s_mov_b32 s{S_INBC}, {INBOX}
    s_mov_b32 s{S_INBC1}, {INBOX + 32768}
    s_lshl_b32 s5, s{S_H}, 13
    s_add_u32 s{S_RST}, s5, {INBOX + 2*INB_SLOT}
    s_lshl_b32 s5, s{S_H}, 11
    s_add_u32 s{S_KM}, s5, {KM}
    s_add_u32 s{S_VM}, s5, {VM}
    s_lshl_b32 s5, s{S_H}, 19
    s_add_u32 s{S_KFN}, s5, {KF}
    s_lshl_b32 s5, s{S_H}, 4
    s_add_u32 s{S_KVMF}, s5, {FLAGS + F_KVM}
    s_lshl_b32 s5, s{S_W}, 11
    s_add_u32 s{S_KM0}, s5, {L_KS}
    s_mov_b32 s{S_KRD}, {L_KS}
    """)
    if flags:
        k(f"s_lshl_b32 s5, s{S_H}, 4\ns_add_u32 s{S_FOFF}, s5, {FLAGS + F_KV}\ns_mov_b32 s{S_FNEED}, 1\nv_mov_b32 v{V_FLV}, 0")
        flag_spin("f0")
    k(f"s_mov_b32 m0, s{S_KM0}")
    for x in k_dma01(): k(x)
    if flags:
        k(f"s_add_u32 s{S_FOFF}, s{S_FOFF}, 4\nv_mov_b32 v{V_FLV}, 0")
        k(f"buffer_load_dword v{V_FLV}, v{V_FLV}, {WSs}, s{S_FOFF} offen sc1")
        k(f"s_mov_b32 s{S_FR}, {2 % RQ}\ns_mov_b32 s{S_FC}, {2 // RQ + 1}")
        flag_next(2)
    k(f"s_add_u32 s{S_T0}, s{S_KFN}, {VF - KF}")
    k(f"s_add_u32 s{S_KFN}, s{S_KFN}, 8192\ns_xor_b32 s{S_KM0}, s{S_KM0}, 8192")
    for r in range(AQ, AQ + 24): k(f"v_mov_b32 v{r}, 0")
    k("s_waitcnt vmcnt(0)")
    ST.init()
    k.label(f"{P}_step")
    poll(k, P, "pm", MA[0], V_MEMP, S_MEMC, V_TMP, MA[2], cnt=58 if stamps else None)
    ST(0)
    if common.TRACE_ON: k("s_memrealtime s[96:97]")
    k(f"ds_write_b128 v{V_MEMW}, {v(MA[0],4)}")
    k(f"ds_write_b128 v{V_MEMW}, {v(MA[1],4)} offset:1024")
    if dbg:
        k(f"s_lshl_b32 s5, s{S_STEP}, 13\ns_add_u32 s5, s5, {MEMDBG}")
        k(f"buffer_store_dwordx4 {v(MA[0],4)}, v{V_MEMP}, {WSs}, s5 offen")
        k(f"buffer_store_dwordx4 {v(MA[1],4)}, v{V_MEMP}, {WSs}, s5 offen offset:1024")
    own = [smt(mat, t, u) for u in (0, 1) for mat in range(3) for t in range(2)]
    k(own[0])
    k(f"buffer_load_dwordx4 {v(VSEG,4)}, v{V_MEMP}, {WSs}, s{S_T0} offen")
    k(own[1]); k(own[2]); k(own[3])
    k(f"buffer_load_dwordx4 {v(VSEG+4,4)}, v{V_MEMP}, {WSs}, s{S_T0} offen offset:1024")
    k(own[4]); k(own[5])
    if flags: flag_spin("fs")
    k("s_waitcnt lgkmcnt(0)\ns_barrier")
    ST(1)
    rd = [f"ds_read_b128 {v(MA[uu],4)}, v{V_MR + uu//2 - 1} offset:{1024*(uu&1)}" for uu in range(2, 8)]
    k(rd[0])
    ilv(k, own[6:], rd[1:])
    k(f"v_add_u32 v{V_TMP}, s{S_KRD}, v{V_L16}")
    ST(2)
    krd = [f"ds_read_b128 {v(KSEG+16*T+4*ks,4)}, v{V_TMP} offset:{(4*T+ks)*1024}" for T in range(2) for ks in range(4)]
    nrd = 0
    for u in range(2, 8):
        k(f"s_waitcnt lgkmcnt({min(15, (7 - u) + nrd)})")
        for t in range(2):
            k(smt(0, t, u))
            if krd and u >= 3: k(krd.pop(0)); nrd += 1
    qe = [f"v_add_f32 v{AQ}, v{AQ}, v{AQ+1}", f"v_add_f32 v{AQ+2}, v{AQ+2}, v{AQ+3}",
          f"v_add_f32 v{AQ+4}, v{AQ+4}, v{AQ+5}", f"v_add_f32 v{AQ+6}, v{AQ+6}, v{AQ+7}",
          f"v_cvt_pk_bf16_f32 v{AQ}, v{AQ}, v{AQ+2}", f"v_cvt_pk_bf16_f32 v{AQ+4}, v{AQ+4}, v{AQ+6}",
          f"ds_write_b16 v{V_QW}, v{AQ}", f"ds_write_b16_d16_hi v{V_QW}, v{AQ} offset:{RSX}",
          f"ds_write_b16 v{V_QW}, v{AQ+4} offset:8", f"ds_write_b16_d16_hi v{V_QW}, v{AQ+4} offset:{RSX+8}"]
    km = [smt(1, t, u) for u in range(2, 8) for t in range(2)]
    for i, m in enumerate(km):
        k(m)
        if 1 <= i <= 5:
            for _ in range(2):
                if qe: k(qe.pop(0))
        if i == 6:
            k(f"s_mov_b32 m0, s{S_KM0}"); k(k_dma01()[0])
        if i == 8:
            k(k_dma01()[1])
            k(f"s_cmp_lg_u32 s{S_W}, 3\ns_cbranch_scc1 {P}_nw\ns_mov_b32 m0, s{S_JUNK}")
            k(f"buffer_load_dword v{V_WARM}, {WSs}, s{S_KFN} offen lds")
            k.label(f"{P}_nw")
            if flags:
                k(f"v_mov_b32 v{V_FLV}, 0\nbuffer_load_dword v{V_FLV}, v{V_FLV}, {WSs}, s{S_FOFF2} offen sc1")
        if i == 9:
            k("s_waitcnt lgkmcnt(0)\ns_barrier")
            for ks in range(2): k(f"ds_read_b128 {v(QB[ks],4)}, v{V_QR} offset:{64*ks}")
        if i == 10:
            for ks in range(2, 4): k(f"ds_read_b128 {v(QB[ks],4)}, v{V_QR} offset:{64*ks}")
    ST(3)
    vm = [smt(2, t, u) for u in range(2, 8) for t in range(2)]
    ke = [f"v_add_f32 v{AK}, v{AK}, v{AK+1}", f"v_add_f32 v{AK+2}, v{AK+2}, v{AK+3}",
          f"v_add_f32 v{AK+4}, v{AK+4}, v{AK+5}", f"v_add_f32 v{AK+6}, v{AK+6}, v{AK+7}",
          f"v_cvt_pk_bf16_f32 v{AK}, v{AK}, v{AK+2}", f"v_cvt_pk_bf16_f32 v{AK+4}, v{AK+4}, v{AK+6}"]
    D = L_KX - L_QX
    ke += [f"ds_write_b16 v{V_QW}, v{AK} offset:{D}", f"ds_write_b16_d16_hi v{V_QW}, v{AK} offset:{D+RSX}",
           f"ds_write_b16 v{V_QW}, v{AK+4} offset:{D+8}", f"ds_write_b16_d16_hi v{V_QW}, v{AK+4} offset:{D+RSX+8}"]
    k(vm[0]); k(vm[1])
    ilv(k, vm[2:4], ke[:4], per=2)
    k("s_waitcnt lgkmcnt(0)")
    sg = []
    for ks in range(4):
        for T in range(2):
            acc = AQ + 4 * T
            sg.append(f"v_mfma_f32_16x16x32_bf16 {v(acc,4)}, {v(KSEG+16*T+4*ks,4)}, {v(QB[ks],4)}, {'0' if ks == 0 else v(acc,4)}")
    ilv(k, sg[:3], ke[4:], per=2)
    for m in sg[3:]: k(m)
    k("s_waitcnt lgkmcnt(0)\ns_barrier")
    ST(4)
    for ks in range(4):
        k(f"ds_read_b128 {v(KA[ks],4)}, v{V_KR} offset:{64*ks}")
    k(f"s_lshl_b32 s5, s{S_W}, 6")
    k(f"v_add_u32 v{V_TMP}, s5, v{V_KR}")
    k(f"ds_read_b128 {v(AK+4,4)}, v{V_TMP}")
    def wo_off(f):
        u, eb, tau = f >> 3, (f & 7) >> 1, 2 * (f >> 3) + (f & 1)
        return (eb >> 1) * 16384 + tau * 4096 + (eb & 1) * 2048
    def wo_read(f):
        slot = WSLOT[f % 9]
        return [f"ds_read_b128 {v(slot+4*half,4)}, v{V_WO} offset:{wo_off(f)+half*1024}" for half in range(2)]
    w01 = wo_read(0) + wo_read(1)
    t2i = [f"v_mov_b32 v{AK}, 0", f"v_mov_b32 v{AK+1}, 0", f"v_mov_b32 v{AK+2}, 0xf149f2ca", f"v_mov_b32 v{AK+3}, 0xf149f2ca"]
    for i, m in enumerate(vm[4:8]):
        k(m); k(t2i[i])
    k("s_waitcnt lgkmcnt(1)")
    for ks in range(4):
        k(f"v_mfma_f32_16x16x32_bf16 {v(AK,4)}, {v(KA[ks],4)}, {v(QB[ks],4)}, {v(AK,4)}")
        k(w01[ks])
    k("s_waitcnt lgkmcnt(4)")
    k(f"buffer_store_dwordx4 {v(AK+4,4)}, v{V_KMO}, {WSs}, s{S_KM} offen sc1")
    ST(5)
    early = [x for f in (2, 3, 4) for x in wo_read(f)]
    late = [x for f in (5, 6, 7) for x in wo_read(f)]
    S = [AQ + i for i in range(8)] + [AK, AK + 1]
    M, M2 = AK + 4, AK + 5
    X1, X2 = AK + 6, AK + 7
    pre = [f"v_max3_f32 v{X1}, v{S[0]}, v{S[1]}, v{S[2]}", f"v_max3_f32 v{X2}, v{S[3]}, v{S[4]}, v{S[5]}",
           f"v_max3_f32 v{X1}, v{X1}, v{S[6]}, v{S[7]}", f"v_max_f32 v{X1}, v{X1}, v{X2}"]
    fl = []
    for i in range(4): fl += [pre[i], early.pop(0)]
    ilv(k, vm[8:], fl, per=2)
    k(f"v_max3_f32 v{M}, v{X1}, v{S[8]}, v{S[9]}")
    k(f"v_mov_b32 v{M2}, v{M}")
    k(early.pop(0)); k(early.pop(0))
    k(f"v_permlane32_swap_b32 v{M}, v{M2}")
    k(f"v_max_f32 v{M}, v{M}, v{M2}")
    k(f"v_mov_b32 v{M2}, v{M}")
    rest = early + late
    k(rest.pop(0)); k(rest.pop(0))
    k(f"v_permlane16_swap_b32 v{M}, v{M2}")
    k(f"v_max_f32 v{M}, v{M}, v{M2}")
    k(f"v_mul_f32 v{M}, {f2u(-c):#x}, v{M}")
    for i, r in enumerate(S):
        k(f"v_fma_f32 v{r}, v{r}, s{S_C}, v{M}")
    ve = [f"v_add_f32 v{AV}, v{AV}, v{AV+1}", f"v_add_f32 v{AV+2}, v{AV+2}, v{AV+3}",
          f"v_add_f32 v{AV+4}, v{AV+4}, v{AV+5}", f"v_add_f32 v{AV+6}, v{AV+6}, v{AV+7}",
          f"v_cvt_pk_bf16_f32 v{AV}, v{AV}, v{AV+2}", f"v_cvt_pk_bf16_f32 v{AV+1}, v{AV+4}, v{AV+6}"]
    for i, r in enumerate(S):
        k(f"v_exp_f32 v{r}, v{r}")
        if i % 2 == 1 and rest: k(rest.pop(0))
    for i in range(4): k(f"v_cvt_pk_bf16_f32 v{AQ+i}, v{AQ+2*i}, v{AQ+2*i+1}")
    k(f"v_cvt_pk_bf16_f32 v{AK}, v{AK}, v{AK+1}\nv_mov_b32 v{AK+1}, 0")
    ST(6)
    O0, O1 = AQ + 4, AV + 4
    k(f"s_waitcnt vmcnt({4 if flags else 3})")
    k(f"v_mfma_f32_16x16x32_bf16 {v(O0,4)}, {v(VSEG,4)}, {v(AQ,4)}, 0")
    for x in ve: k(x)
    k(f"v_mfma_f32_16x16x32_bf16 {v(O1,4)}, {v(VSEG+4,4)}, {v(AQ,4)}, 0")
    k(f"buffer_store_dwordx2 {v(AV,2)}, v{V_VMO}, {WSs}, s{S_VM} offen sc1")
    k(f"v_mov_b32 v{AV+2}, v{AV+1}\nv_mov_b32 v{AV+3}, 0")
    k(f"s_cmp_eq_u32 s{S_STEP}, {NSEG-1}\ns_cbranch_scc1 {P}_done")
    k(f"v_mfma_f32_16x16x16_bf16 {v(O0,4)}, {v(AV,2)}, {v(AK,2)}, {v(O0,4)}")
    k(f"v_mfma_f32_16x16x16_bf16 {v(O1,4)}, {v(AV+2,2)}, {v(AK,2)}, {v(O1,4)}")
    Lr, L2 = AK + 2, AK + 3
    k(f"v_dot2_f32_bf16 v{Lr}, v{AQ}, s{S_ONES}, 0")
    k(f"v_dot2_f32_bf16 v{L2}, v{AQ+1}, s{S_ONES}, 0")
    k(f"v_dot2_f32_bf16 v{Lr}, v{AQ+2}, s{S_ONES}, v{Lr}")
    k(f"v_dot2_f32_bf16 v{L2}, v{AQ+3}, s{S_ONES}, v{L2}")
    k(f"v_dot2_f32_bf16 v{Lr}, v{AK}, s{S_ONES}, v{Lr}")
    rest += wo_read(8)
    for x in rest[:2]: k(x)
    rest = rest[2:]
    k(f"v_add_f32 v{Lr}, v{Lr}, v{L2}")
    k(f"v_mov_b32 v{L2}, v{Lr}")
    k(f"v_permlane32_swap_b32 v{Lr}, v{L2}")
    k(f"v_add_f32 v{Lr}, v{Lr}, v{L2}")
    k(f"v_mov_b32 v{L2}, v{Lr}")
    k(f"v_permlane16_swap_b32 v{Lr}, v{L2}")
    k(f"v_add_f32 v{Lr}, v{Lr}, v{L2}")
    k(f"v_rcp_f32 v{Lr}, v{Lr}")
    for x in rest: k(x)
    for r in range(4): k(f"v_mul_f32 v{O0+r}, v{O0+r}, v{Lr}")
    k(f"v_cvt_pk_bf16_f32 v{O0}, v{O0}, v{O0+1}\nv_cvt_pk_bf16_f32 v{O0+1}, v{O0+2}, v{O0+3}")
    k(f"ds_write_b64 v{V_OW}, {v(O0,2)}")
    for r in range(4): k(f"v_mul_f32 v{O1+r}, v{O1+r}, v{Lr}")
    k(f"v_cvt_pk_bf16_f32 v{O1}, v{O1}, v{O1+1}\nv_cvt_pk_bf16_f32 v{O1+1}, v{O1+2}, v{O1+3}")
    k(f"ds_write_b64 v{V_OW}, {v(O1,2)} offset:256")
    ST(7)
    k(f"v_and_b32 v{V_TMP}, 0x3e0, v{V_L16}\nv_lshrrev_b32 v{V_TMP}, 1, v{V_TMP}\nv_add_u32 v{V_TMP}, {L_OX}, v{V_TMP}")
    RS = OA[2]
    for r in range(4): k(f"v_mov_b32 v{RS+r}, -1")
    k(f"buffer_store_dwordx4 {v(RS,4)}, v{V_MEMP}, {WSs}, s{S_RST} offen {sc}")
    for r in range(4): k(f"v_mov_b32 v{WACC[1]+r}, 0")
    k(f"buffer_store_dwordx4 {v(RS,4)}, v{V_MEMP}, {WSs}, s{S_RST} offen offset:1024 {sc}")
    for r in range(4): k(f"v_mov_b32 v{WACC[2]+r}, 0")
    k(f"s_cmp_lt_u32 s{S_W}, 2\ns_cbranch_scc1 {P}_nmr")
    k(f"buffer_store_dwordx2 {v(RS,2)}, v{V_PUB}, {WSs}, s{S_MEMP} offen {sc}")
    if flags:
        k(f"s_cmp_lg_u32 s{S_W}, 2\ns_cbranch_scc1 {P}_nmr\nv_mov_b32 v{RS+4}, s{S_STEP}\ns_mov_b64 exec, 1")
        k(f"buffer_store_dword v{RS+4}, v{V_L16}, {WSs}, s{S_KVMF} offen sc1\ns_mov_b64 exec, -1")
    k.label(f"{P}_nmr")
    k("s_waitcnt lgkmcnt(0)\ns_barrier")
    for eb in range(4): k(f"ds_read_b128 {v(OA[eb],4)}, v{V_TMP} offset:{512*eb}")
    for s_ in (WACC[0], WACC[3]):
        for r in range(4): k(f"v_mov_b32 v{s_+r}, 0")
    ST(8)
    inflight = [('oa', 0), ('oa', 1), ('oa', 2), ('oa', 3)]
    def wait_for(tag):
        if tag in inflight:
            last = max(i for i, x in enumerate(inflight) if x == tag)
            k(f"s_waitcnt lgkmcnt({len(inflight) - 1 - last})")
            del inflight[:last + 1]
    def epi(u):
        a0, a1 = WACC[2*u], WACC[2*u+1]
        return [f"v_cvt_pk_bf16_f32 v{a0}, v{a0}, v{a0+2}", f"v_cvt_pk_bf16_f32 v{a0+1}, v{a0+1}, v{a0+3}",
                f"v_cvt_pk_bf16_f32 v{a0+2}, v{a1}, v{a1+2}", f"v_cvt_pk_bf16_f32 v{a0+3}, v{a1+1}, v{a1+3}"]
    for f in range(16):
        u, eb, tau = f >> 3, (f & 7) >> 1, 2 * (f >> 3) + (f & 1)
        wait_for(('oa', eb)); wait_for(('w', f))
        k(f"v_smfmac_f32_16x16x64_bf16 {v(WACC[tau],4)}, {v(OA[eb],4)}, {v(WSLOT[f%9],8)}, v{V_IDX}")
        if f + 9 < 16:
            for x in wo_read(f + 9): k(x)
            inflight += [('w', f + 9)] * 2
        if f == 9:
            for x in epi(0): k(x)
        if f == 10:
            k(f"buffer_store_dwordx4 {v(WACC[0],4)}, v{V_PART}, {WSs}, s{S_INBC} offen {sc}")
    for x in epi(1): k(x)
    k(f"buffer_store_dwordx4 {v(WACC[2],4)}, v{V_PART}, {WSs}, s{S_INBC1} offen {sc}")
    ST(9)
    if common.TRACE_ON:
        k(f"s_waitcnt lgkmcnt(0)\ns_lshl_b32 s5, s{S_STEP}, 2\ns_add_u32 s5, s5, {L_OX + 2048 + 1024}\nv_mov_b32 v56, s5\nv_mov_b32 v57, s96\nds_write_b32 v56, v57")
    for r in range(AQ, AQ + 24): k(f"v_mov_b32 v{r}, 0")
    k(f"s_mov_b32 s{S_T1}, s{S_MEMN}\ns_mov_b32 s{S_T2}, s{S_INBC}")
    k(f"""
    s_mov_b32 s{S_MEMP}, s{S_MEMC}
    s_mov_b32 s{S_MEMC}, s{S_MEMN}
    s_add_u32 s5, s{S_MEMN}, 0x2000
    s_and_b32 s5, s5, 0x7fff
    s_or_b32 s{S_MEMN}, s5, {MEMR}
    s_lshl_b32 s6, s{S_H}, 13
    s_add_u32 s{S_RST}, s{S_INBC}, s6
    s_add_u32 s5, s{S_INBC}, {INB_SLOT}
    s_cmp_ge_u32 s5, {INBOX + 3*INB_SLOT}
    s_cselect_b32 s{S_INBC}, {INBOX}, s5
    s_add_u32 s{S_INBC1}, s{S_INBC}, 32768
    s_add_u32 s{S_KM}, s{S_KM}, 65536
    s_add_u32 s{S_VM}, s{S_VM}, 65536
    s_add_u32 s{S_T0}, s{S_KFN}, {VF - KF}
    s_add_u32 s{S_KFN}, s{S_KFN}, 8192
    s_xor_b32 s{S_KM0}, s{S_KM0}, 8192
    s_xor_b32 s{S_KRD}, s{S_KRD}, 8192
    """)
    assert MEMR == 0x10000 and L_KS % 16384 == 0
    if flags:
        k(f"s_mov_b32 s{S_FOFF}, s{S_FOFF2}\ns_mov_b32 s{S_FNEED}, s{S_FNEED2}")
        flag_next(3)
    k(f"s_add_u32 s{S_STEP}, s{S_STEP}, 1")
    k(f"s_cmp_ge_u32 s{S_W}, 2\ns_cbranch_scc1 {P}_w23")
    if D1: k(f"s_sleep {D1}")
    ST(12)
    L = f"{P}_pi"
    k(f"s_mov_b32 s{S_SPIN}, 0")
    k.label(L)
    for i in range(4):
        k(f"buffer_load_dwordx4 {v(56+4*i,4)}, v{V_INB}, {WSs}, s{S_T2} offen offset:{1024*i} sc1")
    k(f"s_add_u32 s{S_SPIN}, s{S_SPIN}, 1")
    if stamps: k("s_add_u32 s59, s59, 1")
    k(f"s_cmp_gt_u32 s{S_SPIN}, 20000\ns_cbranch_scc1 {L}_fail")
    chk = ["v_max3_u32 v76, v56, v57, v58", "v_max3_u32 v77, v59, v60, v61", "v_max3_u32 v76, v76, v62, v63",
           "v_max3_u32 v77, v77, v64, v65", "v_max3_u32 v76, v76, v66, v67", "v_max3_u32 v77, v77, v68, v69",
           "v_max3_u32 v76, v76, v70, v71", "v_max_u32 v76, v76, v77"]
    k(f"s_waitcnt vmcnt(3)")
    k(f"v_mfma_f32_16x16x32_bf16 v[72:75], {v(V_SEL,4)}, v[56:59], 0"); k(chk[0])
    k(f"s_waitcnt vmcnt(2)")
    k(f"v_mfma_f32_16x16x32_bf16 v[72:75], {v(V_SEL,4)}, v[60:63], v[72:75]"); k(chk[1]); k(chk[2])
    k(f"s_waitcnt vmcnt(1)")
    k(f"v_mfma_f32_16x16x32_bf16 v[72:75], {v(V_SEL,4)}, v[64:67], v[72:75]"); k(chk[3]); k(chk[4])
    k(f"s_waitcnt vmcnt(0)")
    k(f"v_mfma_f32_16x16x32_bf16 v[72:75], {v(V_SEL,4)}, v[68:71], v[72:75]"); k(chk[5]); k(chk[6]); k(chk[7])
    k(f"v_cmp_eq_u32 vcc, -1, v76\ns_cbranch_vccnz {L}\ns_branch {L}_ok")
    k.label(f"{L}_fail")
    k(f"s_add_u32 s{S_ERR}, s{S_ERR}, 1\ns_waitcnt vmcnt(0)")
    k.label(f"{L}_ok")
    ST(10)
    for r in range(4):
        k(f"v_add_f32_dpp v{72+r}, v{72+r}, v{72+r} row_ror:8 row_mask:0xf bank_mask:0xf")
    k("v_cvt_pk_bf16_f32 v72, v72, v73\nv_cvt_pk_bf16_f32 v73, v74, v75")
    k(f"buffer_store_dwordx2 v[72:73], v{V_PUB}, {WSs}, s{S_T1} offen {sc}")
    k(f"s_branch {P}_join")
    k.label(f"{P}_w23")
    if stamps: k("s_memtime s[88:89]\ns_memtime s[84:85]")
    k.label(f"{P}_join")
    k("s_barrier")
    ST(11)
    ST.collect()
    if D2: k(f"s_sleep {D2}")
    k(f"s_branch {P}_step")
    k.label(f"{P}_done")
    k("s_waitcnt vmcnt(0)\ns_barrier")
    if flags:
        k(f"s_cmp_lg_u32 s{S_W}, 2\ns_cbranch_scc1 {P}_nfin\nv_mov_b32 v{MA[0]}, {NSEG}\ns_mov_b64 exec, 1")
        k(f"buffer_store_dword v{MA[0]}, v{V_L16}, {WSs}, s{S_KVMF} offen sc1")
        k("s_mov_b64 exec, -1\ns_waitcnt vmcnt(0)")
        k.label(f"{P}_nfin")
    if stamps and flags:
        k(f"s_lshl_b32 s5, s2, 10\ns_lshl_b32 s6, s{S_W}, 6\ns_add_u32 s5, s5, s6\ns_add_u32 s5, s5, {TRACE + 256}\nv_mov_b32 v56, 0")
        for j in range(4):
            for r in range(4): k(f"v_mov_b32 v{60+4*j+r}, s{44+4*j+r}")
            k(f"buffer_store_dwordx4 {v(60+4*j,4)}, v56, {WSs}, s5 offen offset:{16*j}")
        k("s_waitcnt vmcnt(0)")
    if common.TRACE_ON:
        k(f"s_memrealtime s[98:99]\ns_waitcnt lgkmcnt(0)\nv_mov_b32 v56, {L_OX + 2048 + 1024 + 63*4}\nv_mov_b32 v57, s98\nds_write_b32 v56, v57\ns_waitcnt lgkmcnt(0)")
        k(f"v_lshrrev_b32 v56, 2, v{V_L16}\nv_add_u32 v57, {L_OX + 2048 + 1024}, v56\nds_read_b32 v58, v57\ns_waitcnt lgkmcnt(0)")
        k(f"s_lshl_b32 s5, s2, 10\ns_add_u32 s5, s5, {TRACE}\nbuffer_store_dword v58, v56, {WSs}, s5 offen\ns_waitcnt vmcnt(0)")
    return ST


def xcc_announce(k, P):
    k(f"s_load_dwordx2 s[68:69], s[0:1], {D_DBG}\ns_getreg_b32 s70, hwreg(HW_REG_XCC_ID, 0, 4)\ns_waitcnt lgkmcnt(0)")
    srd(k, 64, 68, 256)
    L = f"{P}_xa"
    k(f"v_lshrrev_b32 v24, 6, v0\nv_readfirstlane_b32 s5, v24\ns_cmp_lg_u32 s5, 0\ns_cbranch_scc1 {L}")
    k("s_lshl_b32 s70, 1, s70\nv_mov_b32 v24, s70\nv_mov_b32 v25, 0\nv_mov_b32 v26, 1\ns_mov_b64 exec, 1")
    k("buffer_atomic_or v24, v25, s[64:67], 0 offen offset:4 sc1\ns_waitcnt vmcnt(0)")
    k("buffer_atomic_add v26, v25, s[64:67], 0 offen sc1\ns_mov_b64 exec, -1")
    k.label(L)

def xcc_decide(k, P, slow_label):
    L = f"{P}_xd"
    k("s_mov_b32 s71, 0\nv_mov_b32 v25, 0")
    k.label(L)
    k("buffer_load_dwordx2 v[26:27], v25, s[64:67], 0 offen sc1")
    k(f"s_add_u32 s71, s71, 1\ns_cmp_gt_u32 s71, 0x8000\ns_cbranch_scc1 {slow_label}")
    k("s_waitcnt vmcnt(0)\nv_readfirstlane_b32 s5, v26")
    k(f"s_cmp_lt_u32 s5, 32\ns_cbranch_scc1 {L}")
    k("buffer_load_dword v27, v25, s[64:67], 0 offen offset:4 sc1\ns_waitcnt vmcnt(0)\nv_readfirstlane_b32 s5, v27")
    k(f"s_bcnt1_i32_b32 s5, s5\ns_cmp_lg_u32 s5, 1\ns_cbranch_scc1 {slow_label}")
```

```python
from asm import *
from layout import *
import math, struct
def f2u(x): return struct.unpack("<I", struct.pack("<f", x))[0]
def srd(k, r, ptr, nbytes):
    k(f"s_mov_b32 s{r}, s{ptr}")
    k(f"s_and_b32 s{r+1}, s{ptr+1}, 0xffff")
    k(f"s_mov_b32 s{r+2}, {nbytes}")
    k(f"s_mov_b32 s{r+3}, 0x20000")
def S4(r): return f"s[{r}:{r+3}]"

def bf16_round(k, dst, src, tmp):
    k(f"v_cvt_pk_bf16_f32 v{tmp}, v{src}, v{src}")
    k(f"v_lshlrev_b32 v{dst}, 16, v{tmp}")

TRACE_ON = False
def tr_init(k, regs):
    if not TRACE_ON: return
    for r in regs: k(f"v_mov_b32 v{r}, 0")
def tr(k, reg, idx_sreg):
    if not TRACE_ON: return
    k("s_memrealtime s[74:75]\ns_waitcnt lgkmcnt(0)")
    k(f"s_mov_b32 m0, s{idx_sreg}\ns_nop 0\nv_writelane_b32 v{reg}, s74, m0")
def tr_imm(k, reg, idx):
    if not TRACE_ON: return
    k("s_memrealtime s[74:75]\ns_waitcnt lgkmcnt(0)")
    k(f"v_writelane_b32 v{reg}, s74, {idx}")
def tr_dump(k, regs, ws, wave_sreg, lane_v=0):
    if not TRACE_ON: return
    L = k.newlabel("trd")
    k(f"s_waitcnt lgkmcnt(0)\nv_writelane_b32 v{regs[2]}, s78, 0")
    k(f"s_cmp_lg_u32 s{wave_sreg}, 0\ns_cbranch_scc1 {L}")
    k(f"s_lshl_b32 s5, s2, 10\ns_add_u32 s5, s5, {TRACE}\nv_lshlrev_b32 v{regs[0]+0 if False else 6}, 2, v{lane_v}")
    for i, r in enumerate(regs):
        k(f"buffer_store_dword v{r}, v6, s[{ws}:{ws+3}], s5 offen offset:{256*i}")
    k("s_waitcnt vmcnt(0)")
    k.label(L)
```

```python
from common import *
from qkv import wait_flag, post_flag, S_ERR, S_SPIN, WS, WSRD, S_W
import qkv

S_JB, S_RHO = 3, 16
S_SEG, S_CNT, S_AB, S_T0, S_T1, S_T2 = 17, 18, 19, 20, 21, 22
XSRD, OSRD = 24, 32
V_L16, V_ROW, V_FLG, V_T = 1, 2, 3, 4
AW = 32
NWIN = 16
ACC = 8
L_RED = 0

def gk_setup(k, P, kind):
    KW = 32 if kind == "wo" else 14
    wptr = A_WO if kind == "wo" else B_W2
    wbytes = (4096 if kind == "wo" else 1792) * 1024
    k(f"""
    s_load_dwordx2 s[36:37], s[0:1], {wptr}
    s_load_dwordx2 s[38:39], s[0:1], {D_WS}
    s_load_dwordx2 s[40:41], s[0:1], {A_X}
    s_load_dwordx2 s[42:43], s[0:1], {D_OUT}
    v_lshrrev_b32 v24, 6, v0
    v_and_b32 v0, 63, v0
    v_readfirstlane_b32 s{S_W}, v24
    v_lshlrev_b32 v{V_L16}, 4, v0
    v_and_b32 v24, 15, v0           ; tok
    v_lshrrev_b32 v25, 4, v0        ; g
    v_lshlrev_b32 v26, 10, v24
    v_lshl_add_u32 v26, v25, 3, v26
    s_and_b32 s5, s{S_W}, 1
    s_lshl_b32 s5, s5, 5
    s_lshl_b32 s6, s{S_JB}, 6
    s_add_u32 s5, s5, s6
    s_lshr_b32 s6, s{S_W}, 1
    s_lshl_b32 s6, s6, 14
    s_add_u32 s5, s5, s6
    v_add_u32 v{V_ROW}, s5, v26
    s_waitcnt lgkmcnt(0)
    """)
    srd(k, WS, 38, WS_BYTES)
    srd(k, WSRD, 36, wbytes)
    srd(k, XSRD, 40, 2048 * 1024)
    srd(k, OSRD, 42, 2048 * 1024)
    if kind == "wo":
        k(f"v_and_b32 v26, 31, v0\nv_lshlrev_b32 v26, 2, v26\nv_add_u32 v{V_FLG}, {FLAGS + F_O}, v26")
    else:
        k(f"v_and_b32 v26, 7, v0\nv_min_u32 v26, 6, v26\nv_lshlrev_b32 v26, 2, v26\nv_add_u32 v{V_FLG}, {FLAGS + F_H}, v26")
    k(f"""
    v_lshrrev_b32 v26, 2, v0
    v_lshlrev_b32 v26, 10, v26
    v_bfe_u32 v27, v0, 4, 1
    v_lshlrev_b32 v27, 1, v27
    v_and_b32 v28, 3, v0
    v_xor_b32 v27, v27, v28
    v_lshl_add_u32 v24, v27, 4, v26
    v_bfe_u32 v28, v0, 2, 2
    v_lshl_add_u32 v28, v25, 2, v28
    v_lshlrev_b32 v28, 6, v28
    v_and_b32 v29, 1, v25
    v_lshlrev_b32 v29, 1, v29
    v_bfe_u32 v30, v0, 1, 1
    v_xor_b32 v29, v29, v30
    v_lshl_add_u32 v28, v29, 4, v28
    v_and_b32 v29, 1, v0
    v_lshl_add_u32 v28, v29, 3, v28
    s_lshl_b32 s5, s{S_W}, 15
    v_add_u32 v26, s5, v28
    v_xor_b32 v27, 32, v26
    """)
    nround = 2 if KW == 32 else 1
    kpr = KW // nround
    for rd in range(nround):
        k(f"s_mul_i32 s5, s{S_W}, {KW*32*1024}\ns_lshl_b32 s6, s{S_JB}, 6\ns_add_u32 s5, s5, s6")
        if rd: k(f"s_add_u32 s5, s5, {rd*kpr*32*1024}")
        k(f"s_lshl_b32 s6, s{S_W}, 15")
        n = kpr * 2
        for y in range(n):
            k("s_mov_b32 m0, s6")
            k(f"buffer_load_dwordx4 v24, {S4(WSRD)}, s5 offen lds")
            if y < n - 1: k("s_add_u32 s5, s5, 16384\ns_add_u32 s6, s6, 1024")
        k("s_waitcnt vmcnt(0)")
        m = 0
        for kk in range(kpr):
            for nt in range(2):
                for rp in range(2):
                    f = 2 * (rd * kpr + kk) + nt
                    k(f"ds_read_b64_tr_b16 {a(4*f+2*rp,2)}, v{26+nt} offset:{2048*kk+1024*rp}")
                    m += 1
                    if m % 8 == 0: k("s_waitcnt lgkmcnt(4)")
        k("s_waitcnt lgkmcnt(0)")
    k("s_barrier")

def gk_loop(k, P, kind):
    KW = 32 if kind == "wo" else 14
    NKS = 128 if kind == "wo" else 56
    ABUF = OF if kind == "wo" else HF
    NREP = RW if kind == "wo" else RG
    RPROD = RQ if kind == "wo" else RH
    FSTR = 128 if kind == "wo" else 32
    k(f"s_mov_b32 s{S_ERR}, 0\ns_mov_b32 s{S_SEG}, s{S_RHO}\ns_mov_b32 s{S_CNT}, 0")
    tr_init(k, (28, 29, 30)); tr_imm(k, 30, 1)
    k.label(f"{P}_loop")
    k(f"s_mul_hi_u32 s{S_T0}, s{S_SEG}, {-(-(1 << 32) // RPROD)}")
    k(f"s_mul_i32 s5, s{S_T0}, {RPROD}\ns_sub_u32 s5, s{S_SEG}, s5\ns_mul_i32 s{S_T1}, s5, {FSTR}\ns_add_u32 s{S_T0}, s{S_T0}, 1")
    wait_flag(k, P, "a", V_FLG, f"s{S_T1}", S_T0)
    tr(k, 28, S_SEG)
    k(f"s_mul_i32 s{S_AB}, s{S_SEG}, {2*NKS*1024}\ns_mul_i32 s5, s{S_W}, {KW*1024}\ns_add_u32 s{S_AB}, s{S_AB}, s5\ns_add_u32 s{S_AB}, s{S_AB}, {ABUF}")
    k(f"s_add_u32 s{S_T2}, s{S_AB}, {NKS*1024}")
    nfr = 2 * KW
    def ld(i):
        kk, T = i >> 1, i & 1
        base = S_AB if T == 0 else S_T2
        r = AW + 4 * (i % NWIN)
        q, o = divmod(kk * 1024, 4096)
        if q == 0:
            return [f"buffer_load_dwordx4 {v(r,4)}, v{V_L16}, {S4(WS)}, s{base} offen offset:{o} sc1"]
        return [f"s_add_u32 s5, s{base}, {q*4096}", f"buffer_load_dwordx4 {v(r,4)}, v{V_L16}, {S4(WS)}, s5 offen offset:{o} sc1"]
    for i in range(min(NWIN, nfr)):
        for x in ld(i): k(x)
    issued = min(NWIN, nfr)
    if kind == "wo":
        pass
    for kk in range(KW):
        k(f"s_waitcnt vmcnt({issued - (2*kk+2)})")
        for T in range(2):
            for nt in range(2):
                A_ = ACC + 8 * nt + 4 * T
                C_ = "0" if kk == 0 else v(A_, 4)
                k(f"v_mfma_f32_16x16x32_bf16 {v(A_,4)}, {a(4*(2*kk+nt),4)}, {v(AW+4*((2*kk+T)%NWIN),4)}, {C_}")
        for T in range(2):
            if issued < nfr:
                for x in ld(issued): k(x)
                issued += 1
    k(f"s_lshl_b32 s5, s{S_W}, 12\ns_add_u32 s5, s5, {L_RED}\nv_add_u32 v{V_T}, s5, v{V_L16}")
    for nt in range(2):
        for T in range(2):
            k(f"ds_write_b128 v{V_T}, {v(ACC+8*nt+4*T,4)} offset:{(2*T+nt)*1024}")
    k(f"s_lshl_b32 s{S_T2}, s{S_SEG}, 15")
    if kind == "wo":
        k(f"s_mul_hi_u32 s{S_T0}, s{S_SEG}, {-(-(1 << 32) // RG)}\ns_mul_i32 s5, s{S_T0}, {RG}\ns_sub_u32 s5, s{S_SEG}, s5\ns_lshl_b32 s5, s5, 6")
        k(f"s_lshl_b32 s6, s{S_JB}, 2\ns_add_u32 s5, s5, s6\ns_add_u32 s{S_T1}, s5, {FLAGS + F_G}\ns_add_u32 s{S_T0}, s{S_T0}, 1\nv_mov_b32 v5, 0")
        wait_flag(k, P, "g", 5, f"s{S_T1}", S_T0)
        k(f"s_add_u32 s5, s{S_T2}, {GBUF}")
        k(f"buffer_load_dwordx2 v[32:33], v{V_ROW}, {S4(WS)}, s5 offen sc1")
        k(f"buffer_load_dwordx2 v[34:35], v{V_ROW}, {S4(XSRD)}, s{S_T2} offen")
    k("s_waitcnt lgkmcnt(0)\ns_barrier")
    k(f"s_lshl_b32 s5, s{S_W}, 10\ns_add_u32 s5, s5, {L_RED}\nv_add_u32 v{V_T}, s5, v{V_L16}")
    for w in range(4): k(f"ds_read_b128 {v(40+4*w,4)}, v{V_T} offset:{4096*w}")
    k("s_waitcnt lgkmcnt(0)\ns_barrier")
    for r in range(4):
        k(f"v_add_f32 v{40+r}, v{40+r}, v{44+r}\nv_add_f32 v{48+r}, v{48+r}, v{52+r}\nv_add_f32 v{40+r}, v{40+r}, v{48+r}")
    k("v_cvt_pk_bf16_f32 v44, v40, v41\nv_cvt_pk_bf16_f32 v45, v42, v43")
    k("v_lshlrev_b32 v40, 16, v44\nv_and_b32 v41, 0xffff0000, v44\nv_lshlrev_b32 v42, 16, v45\nv_and_b32 v43, 0xffff0000, v45")
    if kind == "wo":
        k("s_waitcnt vmcnt(0)")
        k("v_lshlrev_b32 v44, 16, v32\nv_and_b32 v45, 0xffff0000, v32\nv_lshlrev_b32 v46, 16, v33\nv_and_b32 v47, 0xffff0000, v33")
        for r in range(4): k(f"v_mul_f32 v{40+r}, v{40+r}, v{44+r}")
        k("v_cvt_pk_bf16_f32 v44, v40, v41\nv_cvt_pk_bf16_f32 v45, v42, v43")
        k("v_lshlrev_b32 v40, 16, v44\nv_and_b32 v41, 0xffff0000, v44\nv_lshlrev_b32 v42, 16, v45\nv_and_b32 v43, 0xffff0000, v45")
        k("v_lshlrev_b32 v44, 16, v34\nv_and_b32 v45, 0xffff0000, v34\nv_lshlrev_b32 v46, 16, v35\nv_and_b32 v47, 0xffff0000, v35")
        for r in range(4): k(f"v_add_f32 v{40+r}, v{40+r}, v{44+r}")
        k("v_cvt_pk_bf16_f32 v44, v40, v41\nv_cvt_pk_bf16_f32 v45, v42, v43")
        k(f"buffer_store_dwordx2 v[44:45], v{V_ROW}, {S4(OSRD)}, s{S_T2} offen")
    else:
        for r in range(4):
            k(f"v_mul_f32 v{44+r}, {f2u(-math.log2(math.e)):#x}, v{40+r}")
        for r in range(4): k(f"v_exp_f32 v{44+r}, v{44+r}")
        for r in range(4): k(f"v_add_f32 v{44+r}, 1.0, v{44+r}")
        for r in range(4): k(f"v_rcp_f32 v{44+r}, v{44+r}")
        for r in range(4): k(f"v_mul_f32 v{40+r}, v{40+r}, v{44+r}")
        k("v_cvt_pk_bf16_f32 v44, v40, v41\nv_cvt_pk_bf16_f32 v45, v42, v43")
        k(f"s_add_u32 s5, s{S_T2}, {GBUF}")
        k(f"buffer_store_dwordx2 v[44:45], v{V_ROW}, {S4(WS)}, s5 offen sc1")
        k(f"s_add_u32 s{S_CNT}, s{S_CNT}, 1\ns_waitcnt vmcnt(0)\ns_barrier")
        k(f"s_lshl_b32 s5, s{S_JB}, 2\ns_lshl_b32 s6, s{S_RHO}, 6\ns_add_u32 s5, s5, s6\ns_add_u32 s{S_T1}, s5, {FLAGS + F_G}")
        post_flag(k, P, S_T1, S_CNT)
    tr(k, 29, S_SEG)
    k(f"s_add_u32 s{S_SEG}, s{S_SEG}, {NREP}\ns_cmp_lt_u32 s{S_SEG}, {NSEG}\ns_cbranch_scc1 {P}_loop")
    k("s_waitcnt vmcnt(0)")
    tr_imm(k, 30, 2)
    tr_dump(k, (28, 29, 30), WS, S_W)
```

```python
from common import *

def ln_role(k, P, tile_sreg, WS, XSRD):
    X = 8
    k(f"""
    v_and_b32 v1, 15, v0
    v_lshrrev_b32 v2, 4, v0
    v_lshlrev_b32 v3, 10, v1
    v_lshl_add_u32 v3, v2, 4, v3          ; tok*1024 + 16g
    s_lshl_b32 s5, s{tile_sreg}, 14
    """)
    for ks in range(16):
        k(f"buffer_load_dwordx4 {v(X+4*ks,4)}, v3, {S4(XSRD)}, s5 offen offset:{64*ks}")
    k("s_mov_b32 s6, 0x3f803f80")
    k("v_mov_b32 v4, 0\nv_mov_b32 v5, 0")
    for ks in range(16):
        k(f"s_waitcnt vmcnt({15-ks})")
        for r in range(4):
            k(f"v_dot2_f32_bf16 v{4+(r&1)}, v{X+4*ks+r}, s6, v{4+(r&1)}")
    k("v_add_f32 v4, v4, v5")
    for sw in ("v_permlane32_swap_b32", "v_permlane16_swap_b32"):
        k(f"v_mov_b32 v5, v4\n{sw} v4, v5\nv_add_f32 v4, v4, v5")
    k(f"v_mul_f32 v4, {f2u(1/512):#x}, v4")
    k("v_mov_b32 v6, 0\nv_mov_b32 v7, 0")
    for i in range(64):
        k(f"v_lshlrev_b32 v72, 16, v{X+i}\nv_and_b32 v73, 0xffff0000, v{X+i}")
        k("v_sub_f32 v72, v72, v4\nv_sub_f32 v73, v73, v4")
        k("v_fmac_f32 v6, v72, v72\nv_fmac_f32 v7, v73, v73")
    k("v_add_f32 v6, v6, v7")
    for sw in ("v_permlane32_swap_b32", "v_permlane16_swap_b32"):
        k(f"v_mov_b32 v7, v6\n{sw} v6, v7\nv_add_f32 v6, v6, v7")
    k(f"v_mul_f32 v6, {f2u(1/512):#x}, v6")
    bf16_round(k, 6, 6, 7)
    k(f"v_add_f32 v6, {f2u(1e-5):#x}, v6")
    bf16_round(k, 6, 6, 7)
    k("v_sqrt_f32 v6, v6")
    bf16_round(k, 6, 6, 7)
    k("v_rcp_f32 v6, v6")
    bf16_round(k, 4, 4, 7)
    for i in range(64):
        k(f"v_lshlrev_b32 v72, 16, v{X+i}\nv_and_b32 v73, 0xffff0000, v{X+i}")
        k("v_sub_f32 v72, v72, v4\nv_sub_f32 v73, v73, v4")
        k("v_cvt_pk_bf16_f32 v72, v72, v73")
        k("v_and_b32 v73, 0xffff0000, v72\nv_lshlrev_b32 v72, 16, v72")
        k("v_mul_f32 v72, v72, v6\nv_mul_f32 v73, v73, v6")
        k(f"v_cvt_pk_bf16_f32 v{X+i}, v72, v73")
    k(f"v_lshlrev_b32 v3, 4, v0\ns_lshl_b32 s5, s{tile_sreg}, 14\ns_add_u32 s5, s5, {XN}")
    for ks in range(16):
        k(f"buffer_store_dwordx4 {v(X+4*ks,4)}, v3, {S4(WS)}, s5 offen offset:{1024*(ks&3)} sc1")
        if ks & 3 == 3 and ks < 15: k("s_add_u32 s5, s5, 4096")

def init_kernel(k, P):
    k(f"""
    s_cmp_ge_u32 s2, 128
    s_cbranch_scc1 {P}_exit
    s_load_dwordx2 s[16:17], s[0:1], {A_X}
    s_load_dwordx2 s[18:19], s[0:1], {D_WS}
    s_waitcnt lgkmcnt(0)
    """)
    srd(k, 8, 18, WS_BYTES)
    srd(k, 12, 16, 2048 * 1024)
    k(f"""
    v_mov_b32 v76, -1
    v_mov_b32 v77, -1
    v_mov_b32 v78, -1
    v_mov_b32 v79, -1
    v_lshlrev_b32 v80, 4, v0
    s_mul_i32 s5, s2, 6144
    s_add_u32 s5, s5, {INBOX}
    s_add_u32 s6, s5, 4096
    """)
    for i in range(4): k(f"buffer_store_dwordx4 v[76:79], v80, {S4(8)}, s5 offen offset:{1024*i}")
    for i in range(2): k(f"buffer_store_dwordx4 v[76:79], v80, {S4(8)}, s6 offen offset:{1024*i}")
    k(f"""
    s_cmp_ge_u32 s2, 32
    s_cbranch_scc1 {P}_nomem
    s_lshl_b32 s5, s2, 10
    s_add_u32 s5, s5, {MEMR}
    buffer_store_dwordx4 v[76:79], v80, {S4(8)}, s5 offen
    s_cmp_ge_u32 s2, 4
    s_cbranch_scc1 {P}_nomem
    v_mov_b32 v84, 0
    v_mov_b32 v85, 0
    v_mov_b32 v86, 0
    v_mov_b32 v87, 0
    s_lshl_b32 s5, s2, 10
    s_add_u32 s5, s5, {FLAGS}
    buffer_store_dwordx4 v[84:87], v80, {S4(8)}, s5 offen
    """)
    k.label(f"{P}_nomem")
    ln_role(k, P, 2, 8, 12)
    k("s_waitcnt vmcnt(0)")
    k.label(f"{P}_exit")
    k("s_endpgm")
```

```python
from common import *

WS, WSRD = 8, 12
S_H, S_W, S_R = 3, 4, 16
S_J, S_SEG, S_NJ = 17, 18, 19
S_XB, S_RING, S_T0, S_T1, S_T2 = 20, 21, 22, 23, 24
S_AJ, S_ASEG, S_ARING, S_C, S_ONES, S_ERR, S_SPIN = 25, 26, 27, 28, 29, 30, 31
S_TQ, S_EH = 32, 33
L_XS = 0
L_RING = 65536
RING_E = 24576
NRING = 3
LAG = NRING - 1

V_L16, V_KMR, V_VMR, V_T = 1, 2, 3, 4
V_FLG = 5
MASK = 8
ACC = 24
XF = 72
WV0 = 128

def wf(mat, t, ks):
    f = t * 16 + ks
    if mat == 0: return a(4 * f, 4)
    if mat == 1: return a(128 + 4 * f, 4)
    return v(WV0 + 4 * f, 4)
def wfp(mat, t, ks, rp):
    f = t * 16 + ks
    if mat == 0: return a(4 * f + 2 * rp, 2)
    if mat == 1: return a(128 + 4 * f + 2 * rp, 2)
    return v(WV0 + 4 * f + 2 * rp, 2)
def acc(mat, t, T): return ACC + 16 * mat + 8 * t + 4 * T

def wait_flag(k, P, name, voff, soff, sval, dst=6):
    L = k.newlabel(f"{P}_{name}")
    k(f"s_mov_b32 s{S_SPIN}, 0")
    k.label(L)
    k(f"buffer_load_dword v{dst}, v{voff}, {S4(WS)}, {soff} offen sc1")
    k(f"s_add_u32 s{S_SPIN}, s{S_SPIN}, 1")
    k(f"s_cmp_gt_u32 s{S_SPIN}, 0x8000\ns_cbranch_scc1 {L}_fail")
    k("s_waitcnt vmcnt(0)")
    k(f"v_cmp_gt_u32 vcc, s{sval}, v{dst}")
    k(f"s_cbranch_vccz {L}_ok")
    k("s_sleep 2")
    k(f"s_branch {L}")
    k.label(f"{L}_fail")
    k(f"s_add_u32 s{S_ERR}, s{S_ERR}, 1\ns_waitcnt vmcnt(0)")
    k.label(f"{L}_ok")

def post_flag(k, P, off_sreg, val_sreg):
    L = k.newlabel(f"{P}_pf")
    k(f"s_cmp_lg_u32 s{S_W}, 0\ns_cbranch_scc1 {L}")
    k(f"v_mov_b32 v6, s{val_sreg}\nv_mov_b32 v7, 0")
    k("s_mov_b64 exec, 1")
    k(f"buffer_store_dword v6, v7, {S4(WS)}, s{off_sreg} offen sc1")
    k("s_mov_b64 exec, -1")
    k.label(L)

def qkv_setup(k, P):
    k(f"""
    s_load_dwordx4 s[36:39], s[0:1], {A_WQ}
    s_load_dwordx2 s[40:41], s[0:1], {A_WV}
    s_load_dwordx2 s[42:43], s[0:1], {D_WS}
    v_lshrrev_b32 v24, 6, v0
    v_and_b32 v0, 63, v0
    v_readfirstlane_b32 s{S_W}, v24
    v_lshlrev_b32 v{V_L16}, 4, v0
    v_and_b32 v24, 15, v0          ; n / x
    v_lshrrev_b32 v25, 4, v0       ; g
    s_and_b32 s{S_TQ}, s{S_W}, 1
    s_lshr_b32 s{S_EH}, s{S_W}, 1
    v_lshrrev_b32 v26, 2, v24
    v_lshlrev_b32 v26, 1, v26
    v_and_b32 v27, 1, v24
    v_add_u32 v26, v26, v27
    v_lshlrev_b32 v26, 8, v26
    v_lshl_add_u32 v{V_KMR}, v25, 4, v26
    v_lshlrev_b32 v26, 3, v0
    s_lshl_b32 s5, s{S_EH}, 10
    v_add_u32 v{V_VMR}, s5, v26
    s_lshl_b32 s5, s{S_H}, 4
    s_add_u32 s5, s5, {FLAGS + F_KVM}
    v_mov_b32 v{V_FLG}, s5
    s_lshl_b32 s5, s{S_TQ}, 4
    v_add_u32 v26, s5, v24          ; qq
    v_lshlrev_b32 v27, 2, v25       ; 4g
    v_mov_b32 v29, 0xf149f2ca
    """)
    for T in range(2):
        for r in range(4):
            k(f"v_add_u32 v28, {16*T+r}, v27\nv_cmp_gt_u32 vcc, v28, v26\nv_cndmask_b32 v{MASK+4*T+r}, 0, v29, vcc")
    k(f"v_mov_b32 v{MASK+8}, 0\nv_mov_b32 v{MASK+9}, 0\nv_mov_b32 v{MASK+10}, v29\nv_mov_b32 v{MASK+11}, v29")
    k("s_waitcnt lgkmcnt(0)")
    srd(k, WS, 42, WS_BYTES)
    k(f"""
    v_lshrrev_b32 v26, 4, v0
    v_lshlrev_b32 v27, 1, v26
    v_and_b32 v28, 15, v0
    v_xor_b32 v27, v27, v28
    v_lshlrev_b32 v27, 4, v27
    v_lshlrev_b32 v26, 13, v26
    v_add_u32 v26, v26, v27
    s_lshl_b32 s5, s{S_H}, 8
    v_add_u32 v24, s5, v26
    v_xor_b32 v25, 128, v24
    v_bfe_u32 v28, v0, 2, 2        ; r
    v_and_b32 v29, 3, v0           ; c
    v_lshrrev_b32 v30, 4, v0       ; g
    v_lshl_add_u32 v31, v30, 3, v28
    v_lshlrev_b32 v31, 8, v31
    v_and_b32 v32, 1, v30
    v_lshl_add_u32 v32, v32, 2, v28
    v_lshlrev_b32 v32, 1, v32      ; 2F
    v_lshrrev_b32 v33, 1, v29
    s_lshl_b32 s5, s{S_W}, 2
    v_add_u32 v33, s5, v33
    v_xor_b32 v33, v33, v32
    v_lshlrev_b32 v33, 4, v33
    v_and_b32 v34, 1, v29
    v_lshl_add_u32 v33, v34, 3, v33
    v_add_u32 v26, v31, v33        ; t=0, ks<8
    v_xor_b32 v27, 32, v26         ; t=1
    v_add_u32 v28, 0x10000, v26
    v_add_u32 v29, 0x10000, v27
    """)
    for mat, ptr in enumerate((36, 38, 40)):
        srd(k, WSRD, ptr, 512 * 4096 * 2)
        k(f"s_lshl_b32 s5, s{S_W}, 20\ns_lshl_b32 s6, s{S_W}, 15")
        for y in range(32):
            k("s_mov_b32 m0, s6")
            k(f"buffer_load_dwordx4 v{24 + ((y >> 1) & 1)}, {S4(WSRD)}, s5 offen lds")
            if y < 31: k("s_add_u32 s5, s5, 32768\ns_add_u32 s6, s6, 1024")
        k("s_waitcnt vmcnt(0)\ns_barrier")
        n = 0
        for t in range(2):
            for ks in range(16):
                for rp in range(2):
                    k(f"ds_read_b64_tr_b16 {wfp(mat,t,ks,rp)}, v{26 + t + 2*(ks >> 3)} offset:{8192*(ks & 7) + 1024*rp}")
                    n += 1
                    if n % 8 == 0: k("s_waitcnt lgkmcnt(4)")
        k("s_waitcnt lgkmcnt(0)\ns_barrier")

def xs_dma(k, seg_sreg, buf_sreg):
    k(f"s_lshl_b32 s5, s{seg_sreg}, 15\ns_lshl_b32 s6, s{S_W}, 13\ns_add_u32 s5, s5, s6\ns_add_u32 s5, s5, {XN}")
    k(f"s_add_u32 s6, s6, s{buf_sreg}")
    for half in range(2):
        k("s_mov_b32 m0, s6")
        for i in range(4):
            k(f"buffer_load_dwordx4 v{V_L16}, {S4(WS)}, s5 offen offset:{1024*i} lds")
        if half == 0: k("s_add_u32 s5, s5, 4096\ns_add_u32 s6, s6, 4096")

def qkv_loop(k, P):
    c = (128 ** -0.5) * math.log2(math.e)
    k(f"s_mov_b32 s{S_C}, {f2u(c):#x}\ns_mov_b32 s{S_ONES}, 0x3f803f80\ns_mov_b32 s{S_ERR}, 0")
    k(f"s_sub_u32 s5, {NSEG + RQ - 1}, s{S_R}")
    k(f"s_mul_hi_u32 s{S_NJ}, s5, {-(-(1 << 32) // RQ)}")
    k(f"s_mov_b32 s{S_J}, 0\ns_mov_b32 s{S_SEG}, s{S_R}\ns_mov_b32 s{S_XB}, {L_XS}\ns_mov_b32 s{S_RING}, {L_RING}")
    k(f"s_mov_b32 s{S_AJ}, 0\ns_mov_b32 s{S_ASEG}, s{S_R}\ns_mov_b32 s{S_ARING}, {L_RING}")
    tr_init(k, (20, 21, 22)); tr_imm(k, 22, 1)
    xs_dma(k, S_SEG, S_XB)
    k.label(f"{P}_loop")
    k(f"s_add_u32 s{S_T0}, s{S_SEG}, {RQ}\ns_xor_b32 s{S_T1}, s{S_XB}, 32768")
    k(f"s_cmp_lt_u32 s{S_T0}, {NSEG}\ns_cbranch_scc0 {P}_nopf")
    xs_dma(k, S_T0, S_T1)
    k(f"s_waitcnt vmcnt(8)\ns_branch {P}_pf_done")
    k.label(f"{P}_nopf")
    k("s_waitcnt vmcnt(0)")
    k.label(f"{P}_pf_done")
    k("s_barrier")
    k(f"v_add_u32 v{V_T}, s{S_XB}, v{V_L16}")
    def xrd(ks):
        b = XF + 8 * (ks & 1)
        return [f"ds_read_b128 {v(b,4)}, v{V_T} offset:{ks*1024}", f"ds_read_b128 {v(b+4,4)}, v{V_T} offset:{16384+ks*1024}"]
    for x in xrd(0): k(x)
    for ks in range(16):
        if ks < 15:
            for x in xrd(ks + 1): k(x)
            k("s_waitcnt lgkmcnt(2)")
        else:
            k("s_waitcnt lgkmcnt(0)")
        b = XF + 8 * (ks & 1)
        for mat in range(3):
            for t in range(2):
                for T in range(2):
                    A_ = acc(mat, t, T)
                    C_ = "0" if ks == 0 else v(A_, 4)
                    if mat < 2: k(f"v_mfma_f32_16x16x32_bf16 {v(A_,4)}, {wf(mat,t,ks)}, {v(b+4*T,4)}, {C_}")
                    else:       k(f"v_mfma_f32_16x16x32_bf16 {v(A_,4)}, {v(b+4*T,4)}, {wf(mat,t,ks)}, {C_}")
    PK = 72
    ops = []
    for T in range(2):
        for mat, base in ((1, PK), (0, PK + 8)):
            for t in range(2):
                A_ = acc(mat, t, T)
                k(f"v_cvt_pk_bf16_f32 v{base+4*T+2*t}, v{A_}, v{A_+1}\nv_cvt_pk_bf16_f32 v{base+4*T+2*t+1}, v{A_+2}, v{A_+3}")
    for t in range(2):
        for T in range(2):
            A_ = acc(2, t, T)
            k(f"v_cvt_pk_bf16_f32 v{PK+16+4*t+2*T}, v{A_}, v{A_+1}\nv_cvt_pk_bf16_f32 v{PK+16+4*t+2*T+1}, v{A_+2}, v{A_+3}")
    k(f"""
    s_lshl_b32 s5, s{S_H}, 6
    s_add_u32 s5, s5, s{S_SEG}
    s_lshl_b32 s5, s5, 13
    s_lshl_b32 s6, s{S_W}, 10
    s_add_u32 s7, s5, s6
    s_add_u32 s7, s7, {KF}
    buffer_store_dwordx4 {v(PK,4)}, v{V_L16}, {S4(WS)}, s7 offen sc1
    s_add_u32 s7, s7, 4096
    buffer_store_dwordx4 {v(PK+4,4)}, v{V_L16}, {S4(WS)}, s7 offen sc1
    s_lshl_b32 s6, s{S_W}, 11
    s_add_u32 s7, s5, s6
    s_add_u32 s7, s7, {VF}
    buffer_store_dwordx4 {v(PK+16,4)}, v{V_L16}, {S4(WS)}, s7 offen sc1
    buffer_store_dwordx4 {v(PK+20,4)}, v{V_L16}, {S4(WS)}, s7 offen offset:1024 sc1
    s_lshl_b32 s6, s{S_W}, 10
    s_add_u32 s5, s6, s{S_RING}
    v_add_u32 v{V_T}, s5, v{V_L16}
    ds_write_b128 v{V_T}, {v(PK+8,4)}
    ds_write_b128 v{V_T}, {v(PK+12,4)} offset:4096
    ds_write_b128 v{V_T}, {v(PK,4)} offset:8192
    ds_write_b128 v{V_T}, {v(PK+4,4)} offset:12288
    v_add_u32 v{V_T}, s6, v{V_T}
    ds_write_b128 v{V_T}, {v(PK+16,4)} offset:16384
    ds_write_b128 v{V_T}, {v(PK+20,4)} offset:17408
    s_add_u32 s{S_J}, s{S_J}, 1
    s_waitcnt vmcnt(0) lgkmcnt(0)
    s_barrier
    s_lshl_b32 s5, s{S_H}, 4
    s_lshl_b32 s6, s{S_R}, 2
    s_add_u32 s5, s5, s6
    s_add_u32 s{S_T2}, s5, {FLAGS + F_KV}
    """)
    post_flag(k, P, S_T2, S_J)
    tr(k, 20, S_J)
    k(f"""
    s_add_u32 s{S_SEG}, s{S_SEG}, {RQ}
    s_xor_b32 s{S_XB}, s{S_XB}, 32768
    s_add_u32 s{S_RING}, s{S_RING}, {RING_E}
    s_cmp_lt_u32 s{S_RING}, {L_RING + NRING*RING_E}
    s_cselect_b32 s{S_RING}, s{S_RING}, {L_RING}
    s_cmp_gt_u32 s{S_J}, {LAG}
    s_cbranch_scc1 {P}_att
    s_cmp_lt_u32 s{S_J}, s{S_NJ}
    s_cbranch_scc1 {P}_loop
    """)
    k.label(f"{P}_att")
    attend(k, P)
    k(f"""
    s_add_u32 s{S_AJ}, s{S_AJ}, 1
    s_waitcnt vmcnt(0)
    s_barrier
    s_lshl_b32 s5, s{S_R}, 7
    s_lshl_b32 s6, s{S_H}, 2
    s_add_u32 s5, s5, s6
    s_add_u32 s{S_T2}, s5, {FLAGS + F_O}
    """)
    post_flag(k, P, S_T2, S_AJ)
    tr(k, 21, S_AJ)
    k(f"""
    s_add_u32 s{S_ASEG}, s{S_ASEG}, {RQ}
    s_add_u32 s{S_ARING}, s{S_ARING}, {RING_E}
    s_cmp_lt_u32 s{S_ARING}, {L_RING + NRING*RING_E}
    s_cselect_b32 s{S_ARING}, s{S_ARING}, {L_RING}
    s_cmp_lt_u32 s{S_J}, s{S_NJ}
    s_cbranch_scc1 {P}_loop
    s_cmp_lt_u32 s{S_AJ}, s{S_NJ}
    s_cbranch_scc1 {P}_att
    """)
    tr_dump(k, (20, 21, 22), WS, S_W)

def attend(k, P):
    Q, KK, KM_, VV, VMr = 24, 40, 72, 88, 104
    SS = 112
    k(f"s_lshl_b32 s5, s{S_TQ}, 12\ns_add_u32 s5, s5, s{S_ARING}\nv_add_u32 v{V_T}, s5, v{V_L16}")
    for ks in range(4): k(f"ds_read_b128 {v(Q+4*ks,4)}, v{V_T} offset:{1024*ks}")
    k(f"v_add_u32 v{V_T}, s{S_ARING}, v{V_L16}")
    for T in range(2):
        for ks in range(4): k(f"ds_read_b128 {v(KK+16*T+4*ks,4)}, v{V_T} offset:{8192+4096*T+1024*ks}")
    k("s_waitcnt lgkmcnt(0)")
    for ks in range(4):
        for T in range(2):
            C_ = v(MASK + 4 * T, 4) if ks == 0 else v(SS + 4 * T, 4)
            k(f"v_mfma_f32_16x16x32_bf16 {v(SS+4*T,4)}, {v(KK+16*T+4*ks,4)}, {v(Q+4*ks,4)}, {C_}")
    k(f"s_lshl_b32 s5, s{S_EH}, 12\ns_add_u32 s5, s5, s{S_ARING}\nv_add_u32 v{V_T}, s5, v{V_L16}")
    for i in range(4): k(f"ds_read_b128 {v(VV+4*i,4)}, v{V_T} offset:{16384+1024*i}")
    k(f"s_add_u32 s{S_T0}, s{S_ASEG}, 1")
    wait_flag(k, P, "kvm", V_FLG, "0", S_T0)
    k(f"s_lshl_b32 s5, s{S_ASEG}, 5\ns_add_u32 s5, s5, s{S_H}\ns_lshl_b32 s5, s5, 11\ns_add_u32 s6, s5, {KM}\ns_add_u32 s7, s5, {VM}")
    for ks in range(4): k(f"buffer_load_dwordx4 {v(KM_+4*ks,4)}, v{V_KMR}, {S4(WS)}, s6 offen offset:{64*ks} sc1")
    k(f"buffer_load_dwordx2 {v(VMr,2)}, v{V_VMR}, {S4(WS)}, s7 offen sc1")
    k(f"buffer_load_dwordx2 {v(VMr+2,2)}, v{V_VMR}, {S4(WS)}, s7 offen offset:512 sc1")
    k("s_waitcnt vmcnt(2)")
    for ks in range(4):
        C_ = v(MASK + 8, 4) if ks == 0 else v(SS + 8, 4)
        k(f"v_mfma_f32_16x16x32_bf16 {v(SS+8,4)}, {v(KM_+4*ks,4)}, {v(Q+4*ks,4)}, {C_}")
    S = [SS + i for i in range(10)]
    M, M2 = 6, 7
    k(f"v_max3_f32 v{M}, v{S[0]}, v{S[1]}, v{S[2]}\nv_max3_f32 v{M2}, v{S[3]}, v{S[4]}, v{S[5]}")
    k(f"v_max3_f32 v{M}, v{M}, v{S[6]}, v{S[7]}\nv_max3_f32 v{M2}, v{M2}, v{S[8]}, v{S[9]}\nv_max_f32 v{M}, v{M}, v{M2}")
    for sw in ("v_permlane32_swap_b32", "v_permlane16_swap_b32"):
        k(f"v_mov_b32 v{M2}, v{M}\n{sw} v{M}, v{M2}\nv_max_f32 v{M}, v{M}, v{M2}")
    k(f"v_mul_f32 v{M}, {f2u(-(128 ** -0.5) * math.log2(math.e)):#x}, v{M}")
    for r in S: k(f"v_fma_f32 v{r}, v{r}, s{S_C}, v{M}")
    for r in S: k(f"v_exp_f32 v{r}, v{r}")
    PF, P2 = 40, 44
    for i in range(4): k(f"v_cvt_pk_bf16_f32 v{PF+i}, v{SS+2*i}, v{SS+2*i+1}")
    k(f"v_cvt_pk_bf16_f32 v{P2}, v{SS+8}, v{SS+9}\nv_mov_b32 v{P2+1}, 0")
    k("s_waitcnt vmcnt(0) lgkmcnt(0)")
    ZP = 48
    for i in range(4): k(f"v_mov_b32 v{ZP+2*i}, v{VMr+i}\nv_mov_b32 v{ZP+2*i+1}, 0")
    O = 56
    for i in range(4): k(f"v_mfma_f32_16x16x32_bf16 {v(O+4*i,4)}, {v(VV+4*i,4)}, {v(PF,4)}, 0")
    for i in range(4): k(f"v_mfma_f32_16x16x16_bf16 {v(O+4*i,4)}, {v(ZP+2*i,2)}, {v(P2,2)}, {v(O+4*i,4)}")
    k(f"v_dot2_f32_bf16 v{M}, v{PF}, s{S_ONES}, 0\nv_dot2_f32_bf16 v{M2}, v{PF+1}, s{S_ONES}, 0")
    k(f"v_dot2_f32_bf16 v{M}, v{PF+2}, s{S_ONES}, v{M}\nv_dot2_f32_bf16 v{M2}, v{PF+3}, s{S_ONES}, v{M2}")
    k(f"v_dot2_f32_bf16 v{M}, v{P2}, s{S_ONES}, v{M}\nv_add_f32 v{M}, v{M}, v{M2}")
    for sw in ("v_permlane32_swap_b32", "v_permlane16_swap_b32"):
        k(f"v_mov_b32 v{M2}, v{M}\n{sw} v{M}, v{M2}\nv_add_f32 v{M}, v{M}, v{M2}")
    k(f"v_rcp_f32 v{M}, v{M}")
    for r in range(16): k(f"v_mul_f32 v{O+r}, v{O+r}, v{M}")
    PK = 72
    for i in range(4):
        k(f"v_cvt_pk_bf16_f32 v{PK+2*i}, v{O+4*i}, v{O+4*i+1}\nv_cvt_pk_bf16_f32 v{PK+2*i+1}, v{O+4*i+2}, v{O+4*i+3}")
    k(f"""
    s_lshl_b32 s5, s{S_ASEG}, 18
    s_lshl_b32 s6, s{S_TQ}, 17
    s_add_u32 s5, s5, s6
    s_lshl_b32 s6, s{S_H}, 12
    s_add_u32 s5, s5, s6
    s_lshl_b32 s6, s{S_EH}, 11
    s_add_u32 s5, s5, s6
    s_add_u32 s5, s5, {OF}
    buffer_store_dwordx4 {v(PK,4)}, v{V_L16}, {S4(WS)}, s5 offen sc1
    buffer_store_dwordx4 {v(PK+4,4)}, v{V_L16}, {S4(WS)}, s5 offen offset:1024 sc1
    """)
```

```python
import sys
from common import *
import chain, qkv, gemmk, ffn1, ln

NAME = "recurrent_scan__memory_aug_recurrent_mem_tr__dense_activation_mish__prompt_kernel"

def build(stamps=False, opts=''):
    import common
    common.TRACE_ON = 'trace' in opts
    import re as _re
    mm = _re.search(r'D=(\d+),(\d+),(\w*)', opts)
    D1, D2, XO = (int(mm.group(1)), int(mm.group(2)), mm.group(3)) if mm else (2, 2, 'gapgap2')
    k = K()
    k(f"""
    s_cmp_ge_u32 s2, 256
    s_cbranch_scc1 mg_exit
    {"s_memrealtime s[78:79]" if 'trace' in opts else ""}
    {"s_and_b32 s5, s2, 7" if 'spread' not in opts else "s_lshr_b32 s5, s2, 5"}
    {"s_lshr_b32 s6, s2, 3" if 'spread' not in opts else "s_and_b32 s6, s2, 31"}
    s_cmp_eq_u32 s5, 0
    s_cbranch_scc1 mg_chain
    s_cmp_le_u32 s5, 2
    s_cbranch_scc1 mg_wo
    s_cmp_eq_u32 s5, 3
    s_cbranch_scc1 mg_f2
    s_sub_u32 s5, s5, 4
    s_lshl_b32 s5, s5, 5
    s_add_u32 s5, s5, s6
    s_cmp_lt_u32 s5, {32*RQ}
    s_cbranch_scc1 mg_qkv
    s_sub_u32 s5, s5, {32*RQ}
    s_cmp_lt_u32 s5, {7*RH}
    s_cbranch_scc1 mg_f1
    s_endpgm
    """)
    k.label("mg_chain")
    k("s_mov_b32 s3, s6")
    chain.xcc_announce(k, "ch")
    chain.chain_setup(k, "ch")
    if 'forceslow' in opts: k("s_branch mg_chain_slow")
    chain.xcc_decide(k, "ch", "mg_chain_slow")
    chain.chain_loop(k, "ch", stamps=('st' in opts.split()), dbg=('dbg' in opts), flags=True)
    k("s_endpgm")
    k.label("mg_chain_slow")
    k("s_waitcnt vmcnt(0)")
    chain.chain_loop(k, "cs", stamps=False, dbg=('dbg' in opts), flags=True, sc='sc1')
    k("s_endpgm")
    k.label("mg_wo")
    k("s_and_b32 s3, s6, 15\ns_lshr_b32 s6, s6, 4\ns_sub_u32 s5, s5, 1\ns_lshl_b32 s5, s5, 1\ns_add_u32 s16, s5, s6")
    gemmk.gk_setup(k, "wo", "wo"); gemmk.gk_loop(k, "wo", "wo")
    k("s_endpgm")
    k.label("mg_f2")
    k("s_and_b32 s3, s6, 15\ns_lshr_b32 s16, s6, 4")
    gemmk.gk_setup(k, "f2", "f2"); gemmk.gk_loop(k, "f2", "f2")
    k("s_endpgm")
    k.label("mg_qkv")
    k(f"s_mul_hi_u32 s3, s5, {-(-(1 << 32) // RQ)}\ns_mul_i32 s6, s3, {RQ}\ns_sub_u32 s16, s5, s6")
    qkv.qkv_setup(k, "qk"); qkv.qkv_loop(k, "qk")
    k("s_endpgm")
    k.label("mg_f1")
    k(f"s_lshr_b32 s3, s5, 1\ns_and_b32 s16, s5, 1")
    ffn1.f1_setup(k, "f1"); ffn1.f1_loop(k, "f1")
    k.label("mg_exit")
    k("s_endpgm")
    mega = k.finish()
    k0 = K(); ln.init_kernel(k0, "ln"); init = k0.finish()
    hdr = open('recurrent_scan__memory_aug_recurrent_mem_tr__dense_activation_mish__prompt.s.ref').read().split("; Override launch")[0]
    txt = hdr
    txt += "; @launch kernel=init_kernel grid=(128,1,1) block=(64,1,1) lds=0\n"
    txt += f"; @launch kernel={NAME} grid=(256,1,1) block=(256,1,1) lds=163840\n"
    txt += '.amdgcn_target "amdgcn-amd-amdhsa--gfx950"\n.text\n'
    txt += kernel_text("init_kernel", init, 96, 96)
    txt += kernel_text(NAME, mega, 512, 256)
    print("mega instrs", len(k.ins), "nops", k.nops, file=sys.stderr)
    return txt
if __name__ == "__main__":
    open(sys.argv[1], "w").write(build(opts=" ".join(sys.argv[2:])))
```

```python
from asm import *
from layout import *
import common
import math, struct

def f2u(x): return struct.unpack("<I", struct.pack("<f", x))[0]

L_WO = 0
L_KS = 131072
L_MX = 147456
L_QX = 155648
L_KX = L_QX + 2304
L_OX = L_KX + 2304
RSX = 288
S_H, S_W = 3, 4
WS = 8
WSRD = 12
S_STEP = 20
S_MEMC, S_MEMN, S_MEMP = 21, 22, 23
S_INBC, S_INBC1, S_INBP = 24, 25, 26
S_KFN, S_VFN, S_KM, S_VM = 27, 28, 29, 30
S_KSM0 = 31
S_SPIN = 32
S_C = 33
S_T0, S_T1, S_T2 = 34, 35, 36
S_ERR = 37
S_KSLOT = 38
S_FLG = 39
S_JUNK = 19
V_IDX, V_L16, V_FLV, V_MEMP, V_MEMW = 1, 2, 3, 4, 5
V_MR = 6
V_PART, V_INB, V_PUB = 9, 10, 11
V_SEL = 12
V_QW, V_QR, V_KR, V_OW, V_WO, V_KMO, V_VMO = 16, 17, 18, 19, 20, 21, 22
V_TMP = 23
V_WARM = 0
AQ, AK, AV = 24, 32, 40
MA = [48, 52, 56, 60, 64, 68, 72, 76]
KSEG = 80
QB = [48, 52, 112, 116]
KA = [80, 84, 88, 92]
VSEG = 120
WSLOT = [96, 104, 80, 88, 112, 56, 64, 72, 120]
WACC = [28, 36, 40, 44]
OA = [24, 32, 48, 52]
OUT = [120, 124]
WV0 = 128

def wfrag(mat, t, u):
    f = t * 8 + u
    if mat == 0: return a(8 * f, 8)
    if mat == 1: return a(128 + 8 * f, 8)
    return v(WV0 + 8 * f, 8)
def wfrag_pair(mat, t, u, rp):
    f = t * 8 + u
    if mat == 0: return a(8 * f + 2 * rp, 2)
    if mat == 1: return a(128 + 8 * f + 2 * rp, 2)
    return v(WV0 + 8 * f + 2 * rp, 2)

def srd(k, r, ptr, nbytes):
    k(f"s_mov_b32 s{r}, s{ptr}")
    k(f"s_and_b32 s{r+1}, s{ptr+1}, 0xffff")
    k(f"s_mov_b32 s{r+2}, {nbytes}")
    k(f"s_mov_b32 s{r+3}, 0x20000")

class Stamps:
    def __init__(self, k, on): self.k = k; self.on = on; self.used = []
    def init(self, n=16):
        if not self.on: return
        for i in range(n): self.k(f"s_mov_b32 s{44+i}, 0")
        self.k("s_memtime s[40:41]\ns_waitcnt lgkmcnt(0)\ns_mov_b32 s42, s40")
    def __call__(self, i):
        if not self.on: return
        self.used.append(i)
        self.k(f"s_memtime s[{64+2*i}:{65+2*i}]")
    def collect(self):
        if not self.on: return
        self.k("s_waitcnt lgkmcnt(0)")
        prev = 42
        for i in self.used:
            self.k(f"s_sub_u32 s43, s{64+2*i}, s{prev}\ns_add_u32 s{44+i}, s{44+i}, s43")
            prev = 64 + 2 * i
        self.k(f"s_mov_b32 s42, s{prev}")

def sm(k, mat, t, u):
    acc = [AQ, AK, AV][mat] + 4 * t
    k(f"v_smfmac_f32_16x16x64_bf16 {v(acc,4)}, {v(MA[u],4)}, {wfrag(mat,t,u)}, v{V_IDX}")

def chain_setup(k, P):
    k(f"""
    s_load_dwordx8 s[16:23], s[0:1], {A_WQ}
    s_load_dwordx2 s[24:25], s[0:1], {A_MEM0}
    s_load_dwordx2 s[26:27], s[0:1], {D_WS}
    v_lshrrev_b32 v24, 6, v0
    v_and_b32 v0, 63, v0
    v_readfirstlane_b32 s{S_W}, v24
    v_and_b32 v24, 15, v0          ; n
    v_lshrrev_b32 v25, 4, v0       ; g
    v_lshlrev_b32 v{V_L16}, 4, v0
    v_and_b32 v26, 1, v0
    v_mul_u32_u24 v26, 0xaaaa, v26
    v_add_u32 v{V_IDX}, 0x4444, v26
    s_lshl_b32 s5, s{S_W}, 11
    v_add_u32 v{V_MEMP}, s5, v{V_L16}
    v_add_u32 v{V_MEMW}, {L_MX}, v{V_MEMP}
    v_xor_b32 v{V_MR}, 2048, v{V_MEMW}
    v_xor_b32 v{V_MR+1}, 4096, v{V_MEMW}
    v_xor_b32 v{V_MR+2}, 6144, v{V_MEMW}
    s_lshl_b32 s5, s{S_W}, 4
    v_lshrrev_b32 v26, 1, v24
    v_add_u32 v26, s5, v26
    v_lshlrev_b32 v26, 12, v26
    s_lshl_b32 s5, s{S_H}, 7
    v_add_u32 v26, s5, v26
    v_and_b32 v27, 1, v24
    v_lshlrev_b32 v27, 6, v27
    v_add_u32 v26, v26, v27
    v_lshlrev_b32 v27, 4, v25
    v_add_u32 v{V_PART}, v26, v27
    s_and_b32 s7, s{S_W}, 1
    s_lshl_b32 s6, s{S_H}, 1
    s_add_u32 s6, s6, s7
    s_lshl_b32 s5, s6, 12
    v_add_u32 v{V_INB}, s5, v{V_L16}
    s_lshr_b32 s5, s6, 3
    s_lshl_b32 s5, s5, 10
    s_bfe_u32 s7, s6, 0x20001
    s_lshl_b32 s7, s7, 8
    s_add_u32 s5, s5, s7
    s_and_b32 s7, s6, 1
    s_lshl_b32 s7, s7, 4
    s_add_u32 s5, s5, s7
    v_and_b32 v26, 3, v24
    v_lshlrev_b32 v26, 1, v26
    v_and_b32 v27, 1, v25
    v_add_u32 v28, v26, v27          ; m
    v_lshlrev_b32 v26, 5, v28
    v_bfe_u32 v30, v24, 2, 1         ; nb
    v_lshl_add_u32 v26, v30, 3, v26
    v_add_u32 v{V_PUB}, s5, v26
    v_and_b32 v26, 3, v24
    v_bfe_u32 v27, v24, 2, 1
    v_lshlrev_b32 v27, 4, v27
    v_mov_b32 v29, 0x3f80
    v_lshlrev_b32 v29, v27, v29
    """)
    for r in range(4):
        k(f"v_cmp_eq_u32 vcc, {r}, v26\nv_cndmask_b32 v{V_SEL+r}, 0, v29, vcc")
    k(f"""
    v_mul_u32_u24 v26, {2*RSX}, v25
    v_lshrrev_b32 v27, 2, v24
    v_lshlrev_b32 v27, 4, v27
    v_add_u32 v26, v26, v27
    v_and_b32 v27, 3, v24
    v_lshlrev_b32 v27, 1, v27
    v_add_u32 v26, v26, v27
    s_lshl_b32 s5, s{S_W}, 6
    s_add_u32 s5, s5, {L_QX}
    v_add_u32 v{V_QW}, s5, v26
    v_and_b32 v26, 7, v24
    v_mul_u32_u24 v26, {RSX}, v26
    v_lshlrev_b32 v27, 4, v25
    v_add_u32 v26, v26, v27
    v_add_u32 v{V_QR}, {L_QX}, v26
    ; m'(x) = 2*(x>>2) + (x&1)
    v_lshrrev_b32 v26, 2, v24
    v_lshlrev_b32 v26, 1, v26
    v_and_b32 v29, 1, v24
    v_add_u32 v29, v26, v29
    v_mul_u32_u24 v26, {RSX}, v29
    v_add_u32 v26, v26, v27
    v_add_u32 v{V_KR}, {L_KX}, v26
    v_lshlrev_b32 v26, 8, v29
    v_add_u32 v26, v26, v27
    s_lshl_b32 s5, s{S_W}, 6
    v_add_u32 v{V_KMO}, s5, v26
    v_lshlrev_b32 v26, 3, v0
    s_lshl_b32 s5, s{S_W}, 9
    v_add_u32 v{V_VMO}, s5, v26
    v_and_b32 v26, 7, v24
    v_lshlrev_b32 v26, 4, v26
    v_lshrrev_b32 v27, 1, v25
    v_lshlrev_b32 v27, 7, v27
    v_add_u32 v26, v26, v27
    v_and_b32 v27, 1, v25
    v_lshlrev_b32 v27, 3, v27
    v_add_u32 v26, v26, v27
    s_lshl_b32 s5, s{S_W}, 9
    s_add_u32 s5, s5, {L_OX}
    v_add_u32 v{V_OW}, s5, v26
    s_lshl_b32 s5, s{S_W}, 15
    v_add_u32 v{V_WO}, s5, v{V_L16}
    s_waitcnt lgkmcnt(0)
    """)
    srd(k, WS, 26, WS_BYTES)
    srd(k, WSRD, 24, 8192)
    k(f"""
    s_cmp_ge_u32 s{S_W}, 2
    s_cbranch_scc1 {P}_nopub0
    s_lshr_b32 s5, s6, 3
    s_lshl_b32 s5, s5, 6
    s_and_b32 s7, s6, 7
    s_lshl_b32 s7, s7, 1
    s_add_u32 s5, s5, s7
    s_lshl_b32 s5, s5, 1
    v_lshlrev_b32 v26, 10, v28
    v_lshl_add_u32 v26, v30, 1, v26
    v_add_u32 v26, s5, v26
    buffer_load_ushort v30, v26, s[{WSRD}:{WSRD+3}], 0 offen
    buffer_load_ushort v31, v26, s[{WSRD}:{WSRD+3}], 0 offen offset:32
    buffer_load_ushort v32, v26, s[{WSRD}:{WSRD+3}], 0 offen offset:64
    buffer_load_ushort v33, v26, s[{WSRD}:{WSRD+3}], 0 offen offset:96
    s_waitcnt vmcnt(0)
    v_lshl_or_b32 v30, v31, 16, v30
    v_lshl_or_b32 v31, v33, 16, v32
    s_mov_b32 s5, {MEMR}
    buffer_store_dwordx2 v[30:31], v{V_PUB}, s[{WS}:{WS+3}], s5 offen sc1
    """)
    k.label(f"{P}_nopub0")
    k(f"""
    v_lshrrev_b32 v26, 4, v0
    v_lshlrev_b32 v27, 1, v26
    v_and_b32 v28, 15, v0
    v_xor_b32 v27, v27, v28
    v_lshlrev_b32 v27, 4, v27
    v_lshlrev_b32 v26, 13, v26
    v_add_u32 v26, v26, v27
    s_lshl_b32 s5, s{S_H}, 8
    v_add_u32 v24, s5, v26
    v_xor_b32 v25, 128, v24
    v_bfe_u32 v28, v0, 2, 2        ; r
    v_and_b32 v29, 3, v0           ; c
    v_lshrrev_b32 v30, 4, v0       ; gB
    v_and_b32 v31, 1, v28          ; r&1
    v_lshrrev_b32 v32, 1, v28      ; r>>1
    v_and_b32 v33, 1, v30          ; gB&1
    v_lshrrev_b32 v34, 1, v30      ; gB>>1
    v_lshlrev_b32 v35, 4, v31
    v_lshl_add_u32 v35, v34, 2, v35
    v_lshl_add_u32 v35, v32, 1, v35
    v_add_u32 v35, v35, v33        ; Lrow
    v_lshlrev_b32 v35, 8, v35
    v_lshlrev_b32 v36, 2, v31
    v_lshl_add_u32 v36, v32, 1, v36
    v_add_u32 v36, v36, v33        ; F
    v_lshlrev_b32 v36, 1, v36      ; 2F
    v_lshrrev_b32 v37, 1, v29      ; c>>1
    s_lshl_b32 s5, s{S_W}, 2
    v_add_u32 v37, s5, v37
    v_xor_b32 v37, v37, v36
    v_lshlrev_b32 v37, 4, v37
    v_and_b32 v38, 1, v29
    v_lshl_add_u32 v37, v38, 3, v37
    v_add_u32 v35, v35, v37
    s_lshl_b32 s5, s{S_W}, 15
    v_add_u32 v26, s5, v35
    v_xor_b32 v27, 32, v26
    """)
    for mat in range(3):
        srd(k, WSRD, 16 + 2 * mat, 512 * 4096 * 2)
        k(f"s_lshl_b32 s5, s{S_W}, 20\ns_lshl_b32 s6, s{S_W}, 15")
        for y in range(32):
            k(f"s_mov_b32 m0, s6")
            k(f"buffer_load_dwordx4 v{24 + ((y >> 2) & 1)}, s[{WSRD}:{WSRD+3}], s5 offen lds")
            if y < 31: k(f"s_add_u32 s5, s5, 32768\ns_add_u32 s6, s6, 1024")
        k("s_waitcnt vmcnt(0)\ns_barrier")
        for t in range(2):
            for u in range(8):
                k(f"v_xor_b32 v28, {u*16384}, v{26+t}")
                for rp in range(4):
                    off = 8192 * (rp & 1) + 2048 * (rp >> 1)
                    k(f"ds_read_b64_tr_b16 {wfrag_pair(mat,t,u,rp)}, v28 offset:{off}")
                if u % 2 == 1: k("s_waitcnt lgkmcnt(0)")
        k("s_waitcnt lgkmcnt(0)\ns_barrier")
    srd(k, WSRD, 22, 4096 * 512 * 2)
    k(f"""
    v_lshrrev_b32 v26, 4, v0
    v_and_b32 v27, 1, v26
    v_lshlrev_b32 v27, 2, v27        ; 4*(row&1)
    v_and_b32 v28, 15, v0
    v_xor_b32 v27, v27, v28
    v_lshlrev_b32 v27, 4, v27
    v_lshlrev_b32 v26, 10, v26
    v_add_u32 v26, v26, v27
    s_lshl_b32 s5, s{S_W}, 8
    v_add_u32 v24, s5, v26
    v_xor_b32 v25, 128, v24
    s_lshl_b32 s5, s{S_H}, 17
    s_lshl_b32 s6, s{S_W}, 15
    """)
    for y in range(32):
        k("s_mov_b32 m0, s6")
        k(f"buffer_load_dwordx4 v{24 + (y & 1)}, s[{WSRD}:{WSRD+3}], s5 offen lds")
        if y < 31: k("s_add_u32 s5, s5, 4096\ns_add_u32 s6, s6, 1024")
    k(f"""
    v_lshlrev_b32 v35, 3, v34
    v_lshl_add_u32 v35, v33, 2, v35
    v_add_u32 v35, v35, v31
    v_lshlrev_b32 v35, 8, v35
    v_lshlrev_b32 v36, 2, v31
    v_lshl_add_u32 v36, v33, 3, v36
    v_lshrrev_b32 v37, 1, v29
    v_lshl_add_u32 v37, v32, 1, v37
    v_xor_b32 v37, v37, v36
    v_lshlrev_b32 v37, 4, v37
    v_lshl_add_u32 v37, v38, 3, v37
    v_add_u32 v35, v35, v37
    s_lshl_b32 s5, s{S_W}, 15
    v_add_u32 v28, s5, v35
    s_waitcnt vmcnt(0)
    """)
    TMP = 48
    for half in range(2):
        for tau in range(4):
            k(f"v_xor_b32 v29, {64*tau}, v28")
            for e2 in range(2):
                eb = 2 * half + e2
                for rp in range(4):
                    off = (32 * eb + 16 * (rp >> 1) + 2 * (rp & 1)) * 256
                    k(f"ds_read_b64_tr_b16 {v(TMP+16*tau+8*e2+2*rp,2)}, v29 offset:{off}")
            k("s_waitcnt lgkmcnt(0)")
        for tau in range(4):
            for e2 in range(2):
                for hf in range(2):
                    k(f"ds_write_b128 v{V_WO}, {v(TMP+16*tau+8*e2+4*hf,4)} offset:{half*16384+tau*4096+e2*2048+hf*1024}")
        k("s_waitcnt lgkmcnt(0)")
    k("s_barrier")
    k(f"""
    v_lshlrev_b32 v24, 7, v0
    v_add_u32 v{V_WARM}, {1 << 24}, v24
    """)

def step_offsets(k):
    k(f"""
    s_and_b32 s5, s{S_STEP}, 3
    s_lshl_b32 s5, s5, 13
    s_add_u32 s{S_MEMC}, s5, {MEMR}
    s_add_u32 s5, s{S_STEP}, 1
    s_and_b32 s5, s5, 3
    s_lshl_b32 s5, s5, 13
    s_add_u32 s{S_MEMN}, s5, {MEMR}
    s_add_u32 s5, s{S_STEP}, 3
    s_and_b32 s5, s5, 3
    s_lshl_b32 s5, s5, 13
    s_add_u32 s{S_MEMP}, s5, {MEMR}
    s_and_b32 s5, s{S_STEP}, 1
    s_lshl_b32 s6, s5, 18
    s_add_u32 s{S_INBC}, s6, {INBOX}
    s_add_u32 s{S_INBC1}, s{S_INBC}, 32768
    s_xor_b32 s6, s6, 0x40000
    s_add_u32 s{S_INBP}, s6, {INBOX}
    s_lshl_b32 s6, s5, 13
    s_add_u32 s{S_KSLOT}, s6, {L_KS}
    s_xor_b32 s6, s6, 8192
    s_lshl_b32 s7, s{S_W}, 11
    s_add_u32 s6, s6, s7
    s_add_u32 s{S_KSM0}, s6, {L_KS}
    s_lshl_b32 s5, s{S_H}, 6
    s_add_u32 s5, s5, s{S_STEP}
    s_add_u32 s5, s5, 1
    s_lshl_b32 s5, s5, 13
    s_add_u32 s{S_KFN}, s5, {KF}
    s_add_u32 s{S_VFN}, s5, {VF}
    s_lshl_b32 s5, s{S_STEP}, 5
    s_add_u32 s5, s5, s{S_H}
    s_lshl_b32 s5, s5, 11
    s_add_u32 s{S_KM}, s5, {KM}
    s_add_u32 s{S_VM}, s5, {VM}
    """)

def poll(k, P, name, r0, voff, soff, tmp, tmp2, cnt=None):
    L = f"{P}_{name}"
    k(f"s_mov_b32 s{S_SPIN}, 0")
    k.label(L)
    k(f"buffer_load_dwordx4 {v(r0,4)}, v{voff}, s[{WS}:{WS+3}], s{soff} offen sc1")
    k(f"buffer_load_dwordx4 {v(r0+4,4)}, v{voff}, s[{WS}:{WS+3}], s{soff} offen offset:1024 sc1")
    k(f"s_add_u32 s{S_SPIN}, s{S_SPIN}, 1")
    if cnt is not None: k(f"s_add_u32 s{cnt}, s{cnt}, 1")
    k(f"s_cmp_gt_u32 s{S_SPIN}, 20000")
    k(f"s_cbranch_scc1 {L}_fail")
    k("s_waitcnt vmcnt(0)")
    k(f"v_max3_u32 v{tmp}, v{r0}, v{r0+1}, v{r0+2}")
    k(f"v_max3_u32 v{tmp2}, v{r0+3}, v{r0+4}, v{r0+5}")
    k(f"v_max3_u32 v{tmp}, v{tmp}, v{r0+6}, v{r0+7}")
    k(f"v_max_u32 v{tmp}, v{tmp}, v{tmp2}")
    k(f"v_cmp_eq_u32 vcc, -1, v{tmp}")
    k(f"s_cbranch_vccnz {L}")
    k(f"s_branch {L}_ok")
    k.label(f"{L}_fail")
    k(f"s_add_u32 s{S_ERR}, s{S_ERR}, 1")
    k("s_waitcnt vmcnt(0)")
    k.label(f"{L}_ok")

def ilv(k, main, fill, start=0, per=1):
    fill = list(fill)
    for i, m in enumerate(main):
        k(m)
        if i >= start:
            for _ in range(per):
                if fill: k(fill.pop(0))
    for f in fill: k(f)

def smt(mat, t, u):
    acc = [AQ, AK, AV][mat] + 4 * t
    return f"v_smfmac_f32_16x16x64_bf16 {v(acc,4)}, {v(MA[u],4)}, {wfrag(mat,t,u)}, v{V_IDX}"

def chain_loop(k, P, stamps=False, dbg=True, D1=0, D2=0, X='', flags=False, sc=''):
    ST = Stamps(k, stamps)
    FT = 'ft' in X
    def ft(i):
        if FT: k(f"s_memrealtime s[{64+2*i}:{65+2*i}]")
    def ft_flush():
        if not FT: return
        L = k.newlabel(f"{P}_ft")
        k(f"s_waitcnt lgkmcnt(0)\ns_sub_u32 s5, s{S_STEP}, 21\ns_cmp_gt_u32 s5, 7\ns_cbranch_scc1 {L}")
        k(f"s_lshl_b32 s5, s5, 4\ns_lshl_b32 s6, s{S_W}, 7\ns_add_u32 s5, s5, s6\ns_add_u32 s5, s5, {L_OX + 2048}\nv_mov_b32 v112, s5")
        for i in range(4): k(f"v_mov_b32 v113, s{64+2*i}\nds_write_b32 v112, v113 offset:{4*i}")
        k("s_waitcnt lgkmcnt(0)")
        k.label(L)
    WSs = f"s[{WS}:{WS+3}]"
    c = (128 ** -0.5) * math.log2(math.e)
    S_ONES = 41 if not stamps else 62
    S_RST = 18
    S_FR, S_FC = 16, 17
    S_FNEED, S_FOFF, S_FNEED2, S_FOFF2 = 39, 38, 26, 31
    S_INBPv = 28
    S_KVMF = 60 if stamps else 42
    INB_SLOT = 0x40000
    k(f"s_mov_b32 s{S_C}, {f2u(c):#x}")
    k(f"s_mov_b32 s{S_ONES}, 0x3f803f80")
    k(f"s_mov_b32 s{S_ERR}, 0")
    k(f"s_lshl_b32 s5, s{S_W}, 8\ns_add_u32 s{S_JUNK}, s5, {L_OX + 2048}")
    SENT = 116
    def flag_spin(tag):
        L = k.newlabel(f"{P}_{tag}")
        k(f"v_readfirstlane_b32 s5, v{V_FLV}")
        k(f"s_cmp_ge_u32 s5, s{S_FNEED}\ns_cbranch_scc1 {L}_ok")
        k(f"s_mov_b32 s{S_SPIN}, 0")
        k.label(L)
        k(f"v_mov_b32 v{V_FLV}, 0")
        k(f"buffer_load_dword v{V_FLV}, v{V_FLV}, {WSs}, s{S_FOFF} offen sc1")
        k(f"s_add_u32 s{S_SPIN}, s{S_SPIN}, 1\ns_cmp_gt_u32 s{S_SPIN}, 0x8000\ns_cbranch_scc1 {L}_fail")
        k(f"s_waitcnt vmcnt(0)\nv_readfirstlane_b32 s5, v{V_FLV}")
        k(f"s_cmp_ge_u32 s5, s{S_FNEED}\ns_cbranch_scc0 {L}\ns_branch {L}_ok")
        k.label(f"{L}_fail")
        k(f"s_add_u32 s{S_ERR}, s{S_ERR}, 1\ns_waitcnt vmcnt(0)")
        k.label(f"{L}_ok")
    def flag_next(seg_plus):
        k(f"s_lshl_b32 s5, s{S_H}, 4\ns_lshl_b32 s{S_FOFF2}, s{S_FR}, 2\ns_add_u32 s{S_FOFF2}, s{S_FOFF2}, s5")
        k(f"s_add_u32 s{S_FOFF2}, s{S_FOFF2}, {FLAGS + F_KV}")
        k(f"s_add_u32 s5, s{S_STEP}, {seg_plus}\ns_cmp_ge_u32 s5, {NSEG}\ns_cselect_b32 s{S_FNEED2}, 0, s{S_FC}")
        k(f"s_add_u32 s{S_FR}, s{S_FR}, 1\ns_cmp_eq_u32 s{S_FR}, {RQ}\ns_cselect_b32 s{S_FR}, 0, s{S_FR}\ns_addc_u32 s{S_FC}, s{S_FC}, 0")
    S_KSM0v = 29 + 0
    def k_dma01():
        return [f"buffer_load_dwordx4 v{V_MEMP}, {WSs}, s{S_KFN} offen lds",
                f"buffer_load_dwordx4 v{V_MEMP}, {WSs}, s{S_KFN} offen offset:1024 lds"]
    S_KM0 = 28
    S_KRD = 61 if not stamps else 63
    k(f"""
    s_mov_b32 s{S_STEP}, 0
    s_mov_b32 s{S_MEMC}, {MEMR}
    s_mov_b32 s{S_MEMN}, {MEMR + 8192}
    s_mov_b32 s{S_MEMP}, {MEMR + 3*8192}
    s_mov_b32 s{S_INBC}, {INBOX}
    s_mov_b32 s{S_INBC1}, {INBOX + 32768}
    s_lshl_b32 s5, s{S_H}, 13
    s_add_u32 s{S_RST}, s5, {INBOX + 2*INB_SLOT}
    s_lshl_b32 s5, s{S_H}, 11
    s_add_u32 s{S_KM}, s5, {KM}
    s_add_u32 s{S_VM}, s5, {VM}
    s_lshl_b32 s5, s{S_H}, 19
    s_add_u32 s{S_KFN}, s5, {KF}
    s_lshl_b32 s5, s{S_H}, 4
    s_add_u32 s{S_KVMF}, s5, {FLAGS + F_KVM}
    s_lshl_b32 s5, s{S_W}, 11
    s_add_u32 s{S_KM0}, s5, {L_KS}
    s_mov_b32 s{S_KRD}, {L_KS}
    """)
    if flags:
        k(f"s_lshl_b32 s5, s{S_H}, 4\ns_add_u32 s{S_FOFF}, s5, {FLAGS + F_KV}\ns_mov_b32 s{S_FNEED}, 1\nv_mov_b32 v{V_FLV}, 0")
        flag_spin("f0")
    k(f"s_mov_b32 m0, s{S_KM0}")
    for x in k_dma01(): k(x)
    if flags:
        k(f"s_add_u32 s{S_FOFF}, s{S_FOFF}, 4\nv_mov_b32 v{V_FLV}, 0")
        k(f"buffer_load_dword v{V_FLV}, v{V_FLV}, {WSs}, s{S_FOFF} offen sc1")
        k(f"s_mov_b32 s{S_FR}, {2 % RQ}\ns_mov_b32 s{S_FC}, {2 // RQ + 1}")
        flag_next(2)
    k(f"s_add_u32 s{S_T0}, s{S_KFN}, {VF - KF}")
    k(f"s_add_u32 s{S_KFN}, s{S_KFN}, 8192\ns_xor_b32 s{S_KM0}, s{S_KM0}, 8192")
    for r in range(AQ, AQ + 24): k(f"v_mov_b32 v{r}, 0")
    for r in range(4): k(f"v_mov_b32 v{SENT+r}, -1")
    k("s_waitcnt vmcnt(0)")
    ST.init()
    cold = []
    MB = VSEG
    def mem_poll_issue(r=MA[0]):
        k(f"buffer_load_dwordx4 {v(r,4)}, v{V_MEMP}, {WSs}, s{S_MEMC} offen sc1")
        k(f"buffer_load_dwordx4 {v(r+4,4)}, v{V_MEMP}, {WSs}, s{S_MEMC} offen offset:1024 sc1")
    def mem_check(r):
        k(f"v_max3_u32 v{V_TMP}, v{r}, v{r+1}, v{r+2}")
        k(f"v_max3_u32 v{MA[2]}, v{r+3}, v{r+4}, v{r+5}")
        k(f"v_max3_u32 v{V_TMP}, v{V_TMP}, v{r+6}, v{r+7}")
        k(f"v_max_u32 v{V_TMP}, v{V_TMP}, v{MA[2]}")
        k(f"v_cmp_eq_u32 vcc, -1, v{V_TMP}")
    def k_frag_reads():
        k(f"v_add_u32 v{V_TMP}, s{S_KRD}, v{V_L16}")
        for T in range(2):
            for ks in range(4): k(f"ds_read_b128 {v(KSEG+16*T+4*ks,4)}, v{V_TMP} offset:{(4*T+ks)*1024}")
    k("s_barrier")
    k(f"s_mov_b32 s{S_SPIN}, 0")
    mem_poll_issue()
    k_frag_reads()
    mem_poll_issue(MB)
    k.label(f"{P}_step")
    k("s_waitcnt vmcnt(2)")
    ST(0)
    ft(0)
    if common.TRACE_ON: k("s_memrealtime s[96:97]")
    mem_check(MA[0])
    own = [smt(mat, t, u) for u in (0, 1) for mat in range(3) for t in range(2)]
    k(f"s_cbranch_vccnz {P}_pm_retry")
    def cold_pm():
        k.label(f"{P}_pm_retry")
        mem_poll_issue()
        if stamps: k("s_add_u32 s58, s58, 1")
        k("s_waitcnt vmcnt(2)")
        mem_check(MB)
        k(f"s_cbranch_vccz {P}_pm_b")
        mem_poll_issue(MB)
        k(f"s_add_u32 s{S_SPIN}, s{S_SPIN}, 1")
        k(f"s_cmp_gt_u32 s{S_SPIN}, 10000\ns_cbranch_scc0 {P}_step")
        k(f"s_add_u32 s{S_ERR}, s{S_ERR}, 1\ns_waitcnt vmcnt(0)\ns_branch {P}_pm_ok")
        k.label(f"{P}_pm_b")
        for r in range(8): k(f"v_mov_b32 v{MA[0]+r}, v{MB+r}")
        k(f"s_branch {P}_pm_ok")
    cold.append(cold_pm)
    k.label(f"{P}_pm_ok")
    k(f"ds_write_b128 v{V_MEMW}, {v(MA[0],4)}")
    k(own[0])
    k(f"ds_write_b128 v{V_MEMW}, {v(MA[1],4)} offset:1024")
    if dbg:
        k(f"s_lshl_b32 s5, s{S_STEP}, 13\ns_add_u32 s5, s5, {MEMDBG}")
        k(f"buffer_store_dwordx4 {v(MA[0],4)}, v{V_MEMP}, {WSs}, s5 offen")
        k(f"buffer_store_dwordx4 {v(MA[1],4)}, v{V_MEMP}, {WSs}, s5 offen offset:1024")
    k(f"buffer_load_dwordx4 {v(VSEG,4)}, v{V_MEMP}, {WSs}, s{S_T0} offen")
    k(own[1])
    if flags: k(f"v_readfirstlane_b32 s5, v{V_FLV}")
    k(own[2])
    k(f"buffer_load_dwordx4 {v(VSEG+4,4)}, v{V_MEMP}, {WSs}, s{S_T0} offen offset:1024")
    if flags: k(f"s_cmp_ge_u32 s5, s{S_FNEED}")
    k(own[3])
    if flags:
        k(f"s_cbranch_scc0 {P}_fs_slow")
        def cold_fs():
            k.label(f"{P}_fs_slow")
            flag_spin("fs")
            k(f"s_branch {P}_fs_ok")
        cold.append(cold_fs)
        k.label(f"{P}_fs_ok")
    k(own[4]); k(own[5])
    k("s_waitcnt lgkmcnt(0)\ns_barrier")
    ST(1)
    rd = [f"ds_read_b128 {v(MA[uu],4)}, v{V_MR + uu//2 - 1} offset:{1024*(uu&1)}" for uu in range(2, 8)]
    k(rd[0])
    ilv(k, own[6:], rd[1:])
    ST(2)
    if flags: k(f"s_cmp_lg_u32 s{S_W}, 2")
    for u in range(2, 8):
        k(f"s_waitcnt lgkmcnt({7 - u})")
        for t in range(2):
            k(smt(0, t, u))
        if u == 2 and flags:
            k(f"s_cbranch_scc1 {P}_nkv\nv_mov_b32 v{V_TMP}, s{S_STEP}\ns_mov_b64 exec, 1")
            k(f"buffer_store_dword v{V_TMP}, v{V_L16}, {WSs}, s{S_KVMF} offen sc1\ns_mov_b64 exec, -1")
            k.label(f"{P}_nkv")
        if u == 3: k(f"buffer_store_dwordx4 {v(SENT,4)}, v{V_MEMP}, {WSs}, s{S_RST} offen {sc}")
        if u == 5: k(f"buffer_store_dwordx4 {v(SENT,4)}, v{V_MEMP}, {WSs}, s{S_RST} offen offset:1024 {sc}")
        if u == 7: k(f"buffer_store_dwordx2 {v(SENT,2)}, v{V_PUB}, {WSs}, s{S_MEMP} offen {sc}")
    qe = [f"v_add_f32 v{AQ}, v{AQ}, v{AQ+1}", f"v_add_f32 v{AQ+2}, v{AQ+2}, v{AQ+3}",
          f"v_add_f32 v{AQ+4}, v{AQ+4}, v{AQ+5}", f"v_add_f32 v{AQ+6}, v{AQ+6}, v{AQ+7}",
          f"v_cvt_pk_bf16_f32 v{AQ}, v{AQ}, v{AQ+2}", f"v_cvt_pk_bf16_f32 v{AQ+4}, v{AQ+4}, v{AQ+6}",
          f"ds_write_b16 v{V_QW}, v{AQ}", f"ds_write_b16_d16_hi v{V_QW}, v{AQ} offset:{RSX}",
          f"ds_write_b16 v{V_QW}, v{AQ+4} offset:8", f"ds_write_b16_d16_hi v{V_QW}, v{AQ+4} offset:{RSX+8}"]
    km = [smt(1, t, u) for u in range(2, 8) for t in range(2)]
    for i, m in enumerate(km):
        k(m)
        if 1 <= i <= 5:
            for _ in range(2):
                if qe: k(qe.pop(0))
        if i == 6:
            k(f"s_mov_b32 m0, s{S_KM0}"); k(k_dma01()[0])
        if i == 7: k(k_dma01()[1])
        if i == 8 and flags:
            k(f"v_mov_b32 v{V_FLV}, 0\nbuffer_load_dword v{V_FLV}, v{V_FLV}, {WSs}, s{S_FOFF2} offen sc1")
        if i == 9:
            k(f"s_waitcnt vmcnt({8 if flags else 7}) lgkmcnt(0)\ns_barrier")
            for ks in range(2): k(f"ds_read_b128 {v(QB[ks],4)}, v{V_QR} offset:{64*ks}")
        if i == 10:
            for ks in range(2, 4): k(f"ds_read_b128 {v(QB[ks],4)}, v{V_QR} offset:{64*ks}")
    ST(3)
    vm = [smt(2, t, u) for u in range(2, 8) for t in range(2)]
    ke = [f"v_add_f32 v{AK}, v{AK}, v{AK+1}", f"v_add_f32 v{AK+2}, v{AK+2}, v{AK+3}",
          f"v_add_f32 v{AK+4}, v{AK+4}, v{AK+5}", f"v_add_f32 v{AK+6}, v{AK+6}, v{AK+7}",
          f"v_cvt_pk_bf16_f32 v{AK}, v{AK}, v{AK+2}", f"v_cvt_pk_bf16_f32 v{AK+4}, v{AK+4}, v{AK+6}"]
    D = L_KX - L_QX
    kw = [f"ds_write_b16 v{V_QW}, v{AK} offset:{D}", f"ds_write_b16_d16_hi v{V_QW}, v{AK} offset:{D+RSX}",
          f"ds_write_b16 v{V_QW}, v{AK+4} offset:{D+8}", f"ds_write_b16_d16_hi v{V_QW}, v{AK+4} offset:{D+RSX+8}"]
    k(vm[0]); k(vm[1])
    k(ke[0]); k(ke[1]); k(vm[2]); k(ke[2]); k(ke[3]); k(vm[3]); k(ke[4]); k(ke[5])
    k(kw[0]); k(kw[1]); k(vm[4]); k(kw[2]); k(kw[3])
    k("s_waitcnt lgkmcnt(4)")
    sg = []
    for ks in range(4):
        for T in range(2):
            acc = AQ + 4 * T
            sg.append(f"v_mfma_f32_16x16x32_bf16 {v(acc,4)}, {v(KSEG+16*T+4*ks,4)}, {v(QB[ks],4)}, {'0' if ks == 0 else v(acc,4)}")
    t2i = [f"v_mov_b32 v{AK}, 0", f"v_mov_b32 v{AK+1}, 0", f"v_mov_b32 v{AK+2}, 0xf149f2ca", f"v_mov_b32 v{AK+3}, 0xf149f2ca",
           f"s_lshl_b32 s5, s{S_W}, 6", f"v_add_u32 v{V_TMP}, s5, v{V_KR}"]
    for i in range(4): k(sg[i])
    k("s_waitcnt lgkmcnt(0)\ns_barrier")
    ST(4)
    for ks in range(4): k(f"ds_read_b128 {v(KA[ks] + 0,4)}, v{V_KR} offset:{64*ks}") if False else None
    ilv(k, sg[4:], t2i, per=2)
    for ks in range(4): k(f"ds_read_b128 {v(KA[ks],4)}, v{V_KR} offset:{64*ks}")
    k(f"ds_read_b128 {v(AK+4,4)}, v{V_TMP}")
    def wo_off(f):
        u, eb, tau = f >> 3, (f & 7) >> 1, 2 * (f >> 3) + (f & 1)
        return (eb >> 1) * 16384 + tau * 4096 + (eb & 1) * 2048
    def wo_read(f):
        slot = WSLOT[f % 9]
        return [f"ds_read_b128 {v(slot+4*half,4)}, v{V_WO} offset:{wo_off(f)+half*1024}" for half in range(2)]
    w01 = wo_read(0) + wo_read(1)
    S = [AQ + i for i in range(8)] + [AK, AK + 1]
    M, M2 = AK + 4, AK + 5
    X1, X2 = V_TMP, MA[0] + 0
    for i, m in enumerate(vm[5:]):
        k(m)
        if i >= 3: k(w01[i - 3])
    k("s_waitcnt lgkmcnt(5)")
    ve = [f"v_add_f32 v{AV}, v{AV}, v{AV+1}", f"v_add_f32 v{AV+2}, v{AV+2}, v{AV+3}",
          f"v_add_f32 v{AV+4}, v{AV+4}, v{AV+5}", f"v_add_f32 v{AV+6}, v{AV+6}, v{AV+7}",
          f"v_cvt_pk_bf16_f32 v{AV}, v{AV}, v{AV+2}", f"v_cvt_pk_bf16_f32 v{AV+1}, v{AV+4}, v{AV+6}"]
    ms = [f"v_mfma_f32_16x16x32_bf16 {v(AK,4)}, {v(KA[ks],4)}, {v(QB[ks],4)}, {v(AK,4)}" for ks in range(4)]
    X1, X2 = V_TMP, AV + 6
    k(ms[0]); k(f"v_max3_f32 v{X1}, v{S[0]}, v{S[1]}, v{S[2]}"); k(f"v_max3_f32 v{X1}, v{X1}, v{S[3]}, v{S[4]}")
    k(ms[1]); k(f"v_max3_f32 v{X1}, v{X1}, v{S[5]}, v{S[6]}"); k(f"v_max_f32 v{X1}, v{X1}, v{S[7]}")
    k(ms[2]); k(ve[0]); k(ve[1])
    k(ms[3]); k(ve[2]); k(ve[3]); k(ve[4]); k(ve[5])
    k("s_waitcnt lgkmcnt(4)")
    kms = "" if 'plainkm' in X else "sc1"
    if 'nokm' not in X:
        k(f"buffer_store_dwordx4 {v(AK+4,4)}, v{V_KMO}, {WSs}, s{S_KM} offen {kms}")
        k(f"buffer_store_dwordx2 {v(AV,2)}, v{V_VMO}, {WSs}, s{S_VM} offen {kms}")
    else:
        k(f"buffer_store_dwordx4 {v(AK+4,4)}, v{V_KMO}, {WSs}, s{S_RST} offen offset:2048") if False else k("s_nop 0")
    ST(5)
    rest = [x for f in (2, 3, 4, 5, 6, 7) for x in wo_read(f)]
    k(f"v_mov_b32 v{AV+2}, v{AV+1}\nv_mov_b32 v{AV+3}, 0")
    k(f"v_max3_f32 v{M}, v{X1}, v{S[8]}, v{S[9]}")
    k(f"v_mov_b32 v{M2}, v{M}")
    k(rest.pop(0)); k(rest.pop(0))
    k(f"v_permlane32_swap_b32 v{M}, v{M2}")
    k(f"v_max_f32 v{M}, v{M}, v{M2}")
    k(f"v_mov_b32 v{M2}, v{M}")
    k(rest.pop(0)); k(rest.pop(0))
    k(f"v_permlane16_swap_b32 v{M}, v{M2}")
    k(f"v_max_f32 v{M}, v{M}, v{M2}")
    k(f"v_mul_f32 v{M}, {f2u(-c):#x}, v{M}")
    k(f"s_cmp_eq_u32 s{S_STEP}, {NSEG-1}")
    for i, r in enumerate(S):
        k(f"v_fma_f32 v{r}, v{r}, s{S_C}, v{M}")
    for i, r in enumerate(S):
        k(f"v_exp_f32 v{r}, v{r}")
        if i % 2 == 1 and rest: k(rest.pop(0))
    for i in range(4): k(f"v_cvt_pk_bf16_f32 v{AQ+i}, v{AQ+2*i}, v{AQ+2*i+1}")
    k(f"v_cvt_pk_bf16_f32 v{AK}, v{AK}, v{AK+1}\nv_mov_b32 v{AK+1}, 0")
    ST(6)
    O0, O1 = AQ + 4, AV + 4
    Lr, L2 = AK + 2, AK + 3
    k(f"s_waitcnt vmcnt({(8 if flags else 7) - (2 if 'nokm' in X else 0)})")
    k(f"v_mfma_f32_16x16x32_bf16 {v(O0,4)}, {v(VSEG,4)}, {v(AQ,4)}, 0")
    k(f"s_cbranch_scc1 {P}_done")
    k(f"v_mfma_f32_16x16x32_bf16 {v(O1,4)}, {v(VSEG+4,4)}, {v(AQ,4)}, 0")
    k(f"v_dot2_f32_bf16 v{Lr}, v{AQ}, s{S_ONES}, 0")
    k(f"v_dot2_f32_bf16 v{L2}, v{AQ+1}, s{S_ONES}, 0")
    k(f"v_mfma_f32_16x16x16_bf16 {v(O0,4)}, {v(AV,2)}, {v(AK,2)}, {v(O0,4)}")
    k(f"v_dot2_f32_bf16 v{Lr}, v{AQ+2}, s{S_ONES}, v{Lr}")
    k(f"v_dot2_f32_bf16 v{L2}, v{AQ+3}, s{S_ONES}, v{L2}")
    k(f"v_mfma_f32_16x16x16_bf16 {v(O1,4)}, {v(AV+2,2)}, {v(AK,2)}, {v(O1,4)}")
    k(f"v_dot2_f32_bf16 v{Lr}, v{AK}, s{S_ONES}, v{Lr}")
    rest += wo_read(8)
    k(rest.pop(0)); k(rest.pop(0))
    k(f"v_add_f32 v{Lr}, v{Lr}, v{L2}")
    k(f"v_mov_b32 v{L2}, v{Lr}")
    k(rest.pop(0)); k(rest.pop(0))
    k(f"v_permlane32_swap_b32 v{Lr}, v{L2}")
    k(f"v_add_f32 v{Lr}, v{Lr}, v{L2}")
    k(f"v_mov_b32 v{L2}, v{Lr}")
    for _ in range(2):
        if rest: k(rest.pop(0))
    k(f"v_permlane16_swap_b32 v{Lr}, v{L2}")
    k(f"v_add_f32 v{Lr}, v{Lr}, v{L2}")
    k(f"v_rcp_f32 v{Lr}, v{Lr}")
    for x in rest: k(x)
    for r in range(4): k(f"v_mul_f32 v{O0+r}, v{O0+r}, v{Lr}")
    k(f"v_cvt_pk_bf16_f32 v{O0}, v{O0}, v{O0+1}\nv_cvt_pk_bf16_f32 v{O0+1}, v{O0+2}, v{O0+3}")
    k(f"ds_write_b64 v{V_OW}, {v(O0,2)}")
    for r in range(4): k(f"v_mul_f32 v{O1+r}, v{O1+r}, v{Lr}")
    k(f"v_cvt_pk_bf16_f32 v{O1}, v{O1}, v{O1+1}\nv_cvt_pk_bf16_f32 v{O1+1}, v{O1+2}, v{O1+3}")
    k(f"ds_write_b64 v{V_OW}, {v(O1,2)} offset:256")
    ST(7)
    k(f"v_and_b32 v{V_TMP}, 0x3e0, v{V_L16}\nv_lshrrev_b32 v{V_TMP}, 1, v{V_TMP}\nv_add_u32 v{V_TMP}, {L_OX}, v{V_TMP}")
    for s_ in (WACC[1], WACC[2]):
        for r in range(4): k(f"v_mov_b32 v{s_+r}, 0")
    k("s_waitcnt lgkmcnt(0)\ns_barrier")
    for eb in range(4): k(f"ds_read_b128 {v(OA[eb],4)}, v{V_TMP} offset:{512*eb}")
    for s_ in (WACC[0], WACC[3]):
        for r in range(4): k(f"v_mov_b32 v{s_+r}, 0")
    ST(8)
    inflight = [('oa', 0), ('oa', 1), ('oa', 2), ('oa', 3)]
    def wait_for(tag):
        if tag in inflight:
            last = max(i for i, x in enumerate(inflight) if x == tag)
            k(f"s_waitcnt lgkmcnt({len(inflight) - 1 - last})")
            del inflight[:last + 1]
    def epi(u):
        a0, a1 = WACC[2*u], WACC[2*u+1]
        return [f"v_cvt_pk_bf16_f32 v{a0}, v{a0}, v{a0+2}", f"v_cvt_pk_bf16_f32 v{a0+1}, v{a0+1}, v{a0+3}",
                f"v_cvt_pk_bf16_f32 v{a0+2}, v{a1}, v{a1+2}", f"v_cvt_pk_bf16_f32 v{a0+3}, v{a1+1}, v{a1+3}"]
    for f in range(16):
        u, eb, tau = f >> 3, (f & 7) >> 1, 2 * (f >> 3) + (f & 1)
        wait_for(('oa', eb)); wait_for(('w', f))
        k(f"v_smfmac_f32_16x16x64_bf16 {v(WACC[tau],4)}, {v(OA[eb],4)}, {v(WSLOT[f%9],8)}, v{V_IDX}")
        if f + 9 < 16:
            for x in wo_read(f + 9): k(x)
            inflight += [('w', f + 9)] * 2
        if f == 9:
            for x in epi(0): k(x)
        if f == 10:
            k(f"buffer_store_dwordx4 {v(WACC[0],4)}, v{V_PART}, {WSs}, s{S_INBC} offen {sc}")
    for x in epi(1): k(x)
    k(f"buffer_store_dwordx4 {v(WACC[2],4)}, v{V_PART}, {WSs}, s{S_INBC1} offen {sc}")
    ST(9)
    ft(1)
    if common.TRACE_ON:
        k(f"s_waitcnt lgkmcnt(0)\ns_lshl_b32 s5, s{S_STEP}, 2\ns_add_u32 s5, s5, {L_OX + 2048 + 1024}\nv_mov_b32 v56, s5\nv_mov_b32 v57, s96\nds_write_b32 v56, v57")
    for r in range(AQ, AQ + 8): k(f"v_mov_b32 v{r}, 0")
    for r in range(4): k(f"v_mov_b32 v{SENT+r}, -1")
    k(f"s_mov_b32 s{S_T1}, s{S_MEMN}\ns_mov_b32 s{S_T2}, s{S_INBC}")
    k(f"""
    s_mov_b32 s{S_MEMP}, s{S_MEMC}
    s_mov_b32 s{S_MEMC}, s{S_MEMN}
    s_add_u32 s5, s{S_MEMN}, 0x2000
    s_and_b32 s5, s5, 0x7fff
    s_or_b32 s{S_MEMN}, s5, {MEMR}
    s_lshl_b32 s6, s{S_H}, 13
    s_add_u32 s{S_RST}, s{S_INBC}, s6
    s_add_u32 s5, s{S_INBC}, {INB_SLOT}
    s_cmp_ge_u32 s5, {INBOX + 3*INB_SLOT}
    s_cselect_b32 s{S_INBC}, {INBOX}, s5
    s_add_u32 s{S_INBC1}, s{S_INBC}, 32768
    s_add_u32 s{S_KM}, s{S_KM}, 65536
    s_add_u32 s{S_VM}, s{S_VM}, 65536
    s_add_u32 s{S_T0}, s{S_KFN}, {VF - KF}
    s_add_u32 s{S_KFN}, s{S_KFN}, {0 if 'fixkv' in X else 8192}
    s_xor_b32 s{S_KM0}, s{S_KM0}, 8192
    s_xor_b32 s{S_KRD}, s{S_KRD}, 8192
    """)
    assert MEMR == 0x10000 and L_KS % 16384 == 0
    if flags:
        k(f"s_mov_b32 s{S_FOFF}, s{S_FOFF2}\ns_mov_b32 s{S_FNEED}, s{S_FNEED2}")
        flag_next(3)
    k(f"s_add_u32 s{S_STEP}, s{S_STEP}, 1")
    k(f"s_cmp_ge_u32 s{S_W}, 2\ns_cbranch_scc1 {P}_w23")
    if D1: k(f"s_sleep {D1}")
    ST(12)
    L = f"{P}_pi"
    IA, IB = 56, 80
    def inb_issue(r):
        for i in range(4):
            k(f"buffer_load_dwordx4 {v(r+4*i,4)}, v{V_INB}, {WSs}, s{S_T2} offen offset:{1024*i} sc1")
    def inb_reduce(r, pend):
        R = lambda i: r + i
        chk = [f"v_max3_u32 v76, v{R(0)}, v{R(1)}, v{R(2)}", f"v_max3_u32 v77, v{R(3)}, v{R(4)}, v{R(5)}", f"v_max3_u32 v76, v76, v{R(6)}, v{R(7)}",
               f"v_max3_u32 v77, v77, v{R(8)}, v{R(9)}", f"v_max3_u32 v76, v76, v{R(10)}, v{R(11)}", f"v_max3_u32 v77, v77, v{R(12)}, v{R(13)}",
               f"v_max3_u32 v76, v76, v{R(14)}, v{R(15)}", "v_max_u32 v76, v76, v77"]
        k(f"s_waitcnt vmcnt({pend+3})")
        k(f"v_mfma_f32_16x16x32_bf16 v[72:75], {v(V_SEL,4)}, {v(r,4)}, 0"); k(chk[0])
        k(f"s_waitcnt vmcnt({pend+2})")
        k(f"v_mfma_f32_16x16x32_bf16 v[72:75], {v(V_SEL,4)}, {v(r+4,4)}, v[72:75]"); k(chk[1]); k(chk[2])
        k(f"s_waitcnt vmcnt({pend+1})")
        k(f"v_mfma_f32_16x16x32_bf16 v[72:75], {v(V_SEL,4)}, {v(r+8,4)}, v[72:75]"); k(chk[3]); k(chk[4])
        k(f"s_waitcnt vmcnt({pend})")
        k(chk[5]); k(chk[6]); k(chk[7])
        k(f"v_cmp_eq_u32 vcc, -1, v76")
        k(f"v_mfma_f32_16x16x32_bf16 v[72:75], {v(V_SEL,4)}, {v(r+12,4)}, v[72:75]")
    k(f"s_mov_b32 s{S_SPIN}, 0")
    inb_issue(IA)
    for r in range(AQ + 8, AQ + 24): k(f"v_mov_b32 v{r}, 0")
    if 'gap2' in X: k("s_sleep 1")
    inb_issue(IB)
    k.label(L)
    inb_reduce(IA, 4)
    k(f"s_cbranch_vccnz {L}_retry")
    def cold_pi():
        k.label(f"{L}_retry")
        inb_issue(IA)
        if stamps: k("s_add_u32 s59, s59, 1")
        inb_reduce(IB, 4)
        k(f"s_cbranch_vccz {L}_ok")
        inb_issue(IB)
        k(f"s_add_u32 s{S_SPIN}, s{S_SPIN}, 1")
        k(f"s_cmp_gt_u32 s{S_SPIN}, 10000\ns_cbranch_scc0 {L}")
        k(f"s_add_u32 s{S_ERR}, s{S_ERR}, 1\ns_waitcnt vmcnt(0)\ns_branch {L}_ok")
    cold.append(cold_pi)
    k.label(f"{L}_ok")
    ST(10)
    ft(2)
    for r in range(4):
        k(f"v_add_f32_dpp v{72+r}, v{72+r}, v{72+r} row_ror:8 row_mask:0xf bank_mask:0xf")
    k("v_cvt_pk_bf16_f32 v72, v72, v73\nv_cvt_pk_bf16_f32 v73, v74, v75")
    k(f"buffer_store_dwordx2 v[72:73], v{V_PUB}, {WSs}, s{S_T1} offen {sc}")
    k.label(f"{P}_join")
    k("s_barrier")
    ST(11)
    ft(3)
    ft_flush()
    ST.collect()
    if D2: k(f"s_sleep {D2}")
    k(f"s_mov_b32 s{S_SPIN}, 0")
    mem_poll_issue()
    k("s_waitcnt vmcnt(3)")
    k_frag_reads()
    if 'gap' in X: k("s_sleep 1")
    mem_poll_issue(MB)
    k(f"s_branch {P}_step")
    k.label(f"{P}_w23")
    for r in range(AQ + 8, AQ + 24): k(f"v_mov_b32 v{r}, 0")
    k("s_waitcnt vmcnt(2)")
    if stamps: k("s_memtime s[88:89]\ns_memtime s[84:85]")
    k(f"s_branch {P}_join")
    for cb in cold: cb()
    k.label(f"{P}_done")
    k("s_waitcnt vmcnt(0)\ns_barrier")
    if flags:
        k(f"s_cmp_lg_u32 s{S_W}, 2\ns_cbranch_scc1 {P}_nfin\nv_mov_b32 v{MA[0]}, {NSEG}\ns_mov_b64 exec, 1")
        k(f"buffer_store_dword v{MA[0]}, v{V_L16}, {WSs}, s{S_KVMF} offen sc1")
        k("s_mov_b64 exec, -1\ns_waitcnt vmcnt(0)")
        k.label(f"{P}_nfin")
    if FT:
        k(f"s_waitcnt lgkmcnt(0)\ns_barrier\nv_lshrrev_b32 v56, 2, v{V_L16}\ns_lshl_b32 s6, s{S_W}, 8\nv_add_u32 v56, s6, v56")
        k(f"v_add_u32 v57, {L_OX + 2048}, v56\nds_read_b32 v58, v57\ns_waitcnt lgkmcnt(0)")
        k(f"s_lshl_b32 s5, s{S_H}, 10\ns_add_u32 s5, s5, {TRACE}\nbuffer_store_dword v58, v56, {WSs}, s5 offen\ns_waitcnt vmcnt(0)")
    if stamps and flags:
        k(f"s_lshl_b32 s5, s2, 10\ns_lshl_b32 s6, s{S_W}, 6\ns_add_u32 s5, s5, s6\ns_add_u32 s5, s5, {TRACE + 256}\nv_mov_b32 v56, 0")
        for j in range(4):
            for r in range(4): k(f"v_mov_b32 v{60+4*j+r}, s{44+4*j+r}")
            k(f"buffer_store_dwordx4 {v(60+4*j,4)}, v56, {WSs}, s5 offen offset:{16*j}")
        k("s_waitcnt vmcnt(0)")
    if common.TRACE_ON:
        k(f"s_memrealtime s[98:99]\ns_waitcnt lgkmcnt(0)\nv_mov_b32 v56, {L_OX + 2048 + 1024 + 63*4}\nv_mov_b32 v57, s98\nds_write_b32 v56, v57\ns_waitcnt lgkmcnt(0)")
        k(f"v_lshrrev_b32 v56, 2, v{V_L16}\nv_add_u32 v57, {L_OX + 2048 + 1024}, v56\nds_read_b32 v58, v57\ns_waitcnt lgkmcnt(0)")
        k(f"s_lshl_b32 s5, s2, 10\ns_add_u32 s5, s5, {TRACE}\nbuffer_store_dword v58, v56, {WSs}, s5 offen\ns_waitcnt vmcnt(0)")
    return ST


def xcc_announce(k, P):
    k(f"s_load_dwordx2 s[68:69], s[0:1], {D_DBG}\ns_getreg_b32 s70, hwreg(HW_REG_XCC_ID, 0, 4)\ns_waitcnt lgkmcnt(0)")
    srd(k, 64, 68, 256)
    L = f"{P}_xa"
    k(f"v_lshrrev_b32 v24, 6, v0\nv_readfirstlane_b32 s5, v24\ns_cmp_lg_u32 s5, 0\ns_cbranch_scc1 {L}")
    k("s_lshl_b32 s70, 1, s70\nv_mov_b32 v24, s70\nv_mov_b32 v25, 0\nv_mov_b32 v26, 1\ns_mov_b64 exec, 1")
    k("buffer_atomic_or v24, v25, s[64:67], 0 offen offset:4 sc1\ns_waitcnt vmcnt(0)")
    k("buffer_atomic_add v26, v25, s[64:67], 0 offen sc1\ns_mov_b64 exec, -1")
    k.label(L)

def xcc_decide(k, P, slow_label):
    L = f"{P}_xd"
    k("s_mov_b32 s71, 0\nv_mov_b32 v25, 0")
    k.label(L)
    k("buffer_load_dwordx2 v[26:27], v25, s[64:67], 0 offen sc1")
    k(f"s_add_u32 s71, s71, 1\ns_cmp_gt_u32 s71, 0x8000\ns_cbranch_scc1 {slow_label}")
    k("s_waitcnt vmcnt(0)\nv_readfirstlane_b32 s5, v26")
    k(f"s_cmp_lt_u32 s5, 32\ns_cbranch_scc1 {L}")
    k("buffer_load_dword v27, v25, s[64:67], 0 offen offset:4 sc1\ns_waitcnt vmcnt(0)\nv_readfirstlane_b32 s5, v27")
    k(f"s_bcnt1_i32_b32 s5, s5\ns_cmp_lg_u32 s5, 1\ns_cbranch_scc1 {slow_label}")
```

```python
import sys
from common import *
import chain, qkv, gemmk, ffn1, ln

NAME = "recurrent_scan__memory_aug_recurrent_mem_tr__dense_activation_mish__prompt_kernel"

def build(stamps=False, opts=''):
    import common
    common.TRACE_ON = 'trace' in opts
    import re as _re
    mm = _re.search(r'D=(\d+),(\d+),(\w*)', opts)
    D1, D2, XO = (int(mm.group(1)), int(mm.group(2)), mm.group(3)) if mm else (2, 2, 'gapgap2')
    k = K()
    k(f"""
    s_cmp_ge_u32 s2, 256
    s_cbranch_scc1 mg_exit
    {"s_memrealtime s[78:79]" if 'trace' in opts else ""}
    {"s_and_b32 s5, s2, 7" if 'spread' not in opts else "s_lshr_b32 s5, s2, 5"}
    {"s_lshr_b32 s6, s2, 3" if 'spread' not in opts else "s_and_b32 s6, s2, 31"}
    s_cmp_eq_u32 s5, 0
    s_cbranch_scc1 mg_chain
    s_cmp_le_u32 s5, 2
    s_cbranch_scc1 mg_wo
    s_cmp_eq_u32 s5, 3
    s_cbranch_scc1 mg_f2
    s_sub_u32 s5, s5, 4
    s_lshl_b32 s5, s5, 5
    s_add_u32 s5, s5, s6
    s_cmp_lt_u32 s5, {32*RQ}
    s_cbranch_scc1 mg_qkv
    s_sub_u32 s5, s5, {32*RQ}
    s_cmp_lt_u32 s5, {7*RH}
    s_cbranch_scc1 mg_f1
    s_endpgm
    """)
    k.label("mg_chain")
    k("s_mov_b32 s3, s6")
    chain.xcc_announce(k, "ch")
    chain.chain_setup(k, "ch")
    if 'forceslow' in opts: k("s_branch mg_chain_slow")
    chain.xcc_decide(k, "ch", "mg_chain_slow")
    chain.chain_loop(k, "ch", stamps=('st' in opts.split()), dbg=('dbg' in opts), flags=True, D1=D1, D2=D2, X=XO)
    k("s_endpgm")
    k.label("mg_chain_slow")
    k("s_waitcnt vmcnt(0)")
    chain.chain_loop(k, "cs", stamps=False, dbg=('dbg' in opts), flags=True, sc='sc1')
    k("s_endpgm")
    k.label("mg_wo")
    if 'nowo' in opts: k("s_endpgm")
    k("s_and_b32 s3, s6, 15\ns_lshr_b32 s6, s6, 4\ns_sub_u32 s5, s5, 1\ns_lshl_b32 s5, s5, 1\ns_add_u32 s16, s5, s6")
    gemmk.gk_setup(k, "wo", "wo"); gemmk.gk_loop(k, "wo", "wo")
    k("s_endpgm")
    k.label("mg_f2")
    if 'noffn' in opts: k("s_endpgm")
    k("s_and_b32 s3, s6, 15\ns_lshr_b32 s16, s6, 4")
    gemmk.gk_setup(k, "f2", "f2"); gemmk.gk_loop(k, "f2", "f2")
    k("s_endpgm")
    k.label("mg_qkv")
    k(f"s_mul_hi_u32 s3, s5, {-(-(1 << 32) // RQ)}\ns_mul_i32 s6, s3, {RQ}\ns_sub_u32 s16, s5, s6")
    qkv.qkv_setup(k, "qk"); qkv.qkv_loop(k, "qk")
    k("s_endpgm")
    k.label("mg_f1")
    if 'noffn' in opts: k("s_endpgm")
    k(f"s_lshr_b32 s3, s5, 1\ns_and_b32 s16, s5, 1")
    ffn1.f1_setup(k, "f1"); ffn1.f1_loop(k, "f1")
    k.label("mg_exit")
    k("s_endpgm")
    mega = k.finish()
    k0 = K(); ln.init_kernel(k0, "ln"); init = k0.finish()
    hdr = open('recurrent_scan__memory_aug_recurrent_mem_tr__dense_activation_mish__prompt.s.ref').read().split("; Override launch")[0]
    txt = hdr
    txt += "; @launch kernel=init_kernel grid=(128,1,1) block=(64,1,1) lds=0\n"
    txt += f"; @launch kernel={NAME} grid=(256,1,1) block=(256,1,1) lds=163840\n"
    txt += '.amdgcn_target "amdgcn-amd-amdhsa--gfx950"\n.text\n'
    txt += kernel_text("init_kernel", init, 96, 96)
    txt += kernel_text(NAME, mega, 512, 256)
    print("mega instrs", len(k.ins), "nops", k.nops, file=sys.stderr)
    return txt
if __name__ == "__main__":
    open(sys.argv[1], "w").write(build(opts=" ".join(sys.argv[2:])))
```

```python
from asm import *
from layout import *
import common
from common import dbg_srd, dbg_add, dbg_wait, DBG, DBG_FLAGS, DBG_LN, N_FLAG_WGS
import math, struct

def f2u(x): return struct.unpack("<I", struct.pack("<f", x))[0]

L_WO = 0
L_KS = 131072
L_MX = 147456
L_QX = 155648
L_KX = L_QX + 2304
L_OX = L_KX + 2304
RSX = 288
S_H, S_W = 3, 4
WS = 8
WSRD = 12
S_STEP = 20
S_MEMC, S_MEMN, S_MEMP = 21, 22, 23
S_INBC, S_INBC1, S_INBP = 24, 25, 26
S_KFN, S_VFN, S_KM, S_VM = 27, 28, 29, 30
S_KSM0 = 31
S_SPIN = 33
S_C = 32
S_T0, S_T1, S_T2 = 34, 35, 36
S_ERR = 37
S_KSLOT = 38
S_FLG = 39
S_JUNK = 19
V_IDX, V_L16, V_FLV, V_MEMP, V_MEMW = 1, 2, 3, 4, 5
V_MR = 6
V_PART, V_INB, V_PUB = 9, 10, 11
V_SEL = 12
V_QW, V_QR, V_KR, V_OW, V_WO, V_KMO, V_VMO = 16, 17, 18, 19, 20, 21, 22
V_TMP = 23
V_WARM = 0
AQ, AK, AV = 24, 32, 40
MA = [48, 52, 56, 60, 64, 68, 72, 76]
KSEG = 80
QB = [48, 52, 112, 116]
KA = [80, 84, 88, 92]
VSEG = 120
WSLOT = [96, 104, 80, 88, 112, 56, 64, 72, 120]
WACC = [28, 36, 40, 44]
OA = [24, 32, 48, 52]
OUT = [120, 124]
WV0 = 128

def wfrag(mat, t, u):
    f = t * 8 + u
    if mat == 0: return a(8 * f, 8)
    if mat == 1: return a(128 + 8 * f, 8)
    return v(WV0 + 8 * f, 8)
def wfrag_pair(mat, t, u, rp):
    f = t * 8 + u
    if mat == 0: return a(8 * f + 2 * rp, 2)
    if mat == 1: return a(128 + 8 * f + 2 * rp, 2)
    return v(WV0 + 8 * f + 2 * rp, 2)

def srd(k, r, ptr, nbytes):
    k(f"s_mov_b32 s{r}, s{ptr}")
    k(f"s_and_b32 s{r+1}, s{ptr+1}, 0xffff")
    k(f"s_mov_b32 s{r+2}, {nbytes}")
    k(f"s_mov_b32 s{r+3}, 0x20000")

class Stamps:
    def __init__(self, k, on): self.k = k; self.on = on; self.used = []
    def init(self, n=16):
        if not self.on: return
        for i in range(n): self.k(f"s_mov_b32 s{44+i}, 0")
        self.k("s_memtime s[40:41]\ns_waitcnt lgkmcnt(0)\ns_mov_b32 s42, s40")
    def __call__(self, i):
        if not self.on: return
        self.used.append(i)
        self.k(f"s_memtime s[{64+2*i}:{65+2*i}]")
    def collect(self):
        if not self.on: return
        self.k("s_waitcnt lgkmcnt(0)")
        prev = 42
        for i in self.used:
            self.k(f"s_sub_u32 s43, s{64+2*i}, s{prev}\ns_add_u32 s{44+i}, s{44+i}, s43")
            prev = 64 + 2 * i
        self.k(f"s_mov_b32 s42, s{prev}")

def sm(k, mat, t, u):
    acc = [AQ, AK, AV][mat] + 4 * t
    k(f"v_smfmac_f32_16x16x64_bf16 {v(acc,4)}, {v(MA[u],4)}, {wfrag(mat,t,u)}, v{V_IDX}")

def chain_setup(k, P, merged=False):
    k(f"""
    s_load_dwordx8 s[16:23], s[0:1], {A_WQ}
    s_load_dwordx2 s[24:25], s[0:1], {A_MEM0}
    s_load_dwordx2 s[26:27], s[0:1], {D_WS}
    v_lshrrev_b32 v24, 6, v0
    v_and_b32 v0, 63, v0
    v_readfirstlane_b32 s{S_W}, v24
    v_and_b32 v24, 15, v0          ; n
    v_lshrrev_b32 v25, 4, v0       ; g
    v_lshlrev_b32 v{V_L16}, 4, v0
    v_and_b32 v26, 1, v0
    v_mul_u32_u24 v26, 0xaaaa, v26
    v_add_u32 v{V_IDX}, 0x4444, v26
    s_lshl_b32 s5, s{S_W}, 11
    v_add_u32 v{V_MEMP}, s5, v{V_L16}
    v_add_u32 v{V_MEMW}, {L_MX}, v{V_MEMP}
    v_xor_b32 v{V_MR}, 2048, v{V_MEMW}
    v_xor_b32 v{V_MR+1}, 4096, v{V_MEMW}
    v_xor_b32 v{V_MR+2}, 6144, v{V_MEMW}
    s_lshl_b32 s5, s{S_W}, 4
    v_lshrrev_b32 v26, 1, v24
    v_add_u32 v26, s5, v26
    v_lshlrev_b32 v26, 12, v26
    s_lshl_b32 s5, s{S_H}, 7
    v_add_u32 v26, s5, v26
    v_and_b32 v27, 1, v24
    v_lshlrev_b32 v27, 6, v27
    v_add_u32 v26, v26, v27
    v_lshlrev_b32 v27, 4, v25
    v_add_u32 v{V_PART}, v26, v27
    s_and_b32 s7, s{S_W}, 1
    s_lshl_b32 s6, s{S_H}, 1
    s_add_u32 s6, s6, s7
    s_lshl_b32 s5, s6, 12
    v_add_u32 v{V_INB}, s5, v{V_L16}
    s_lshr_b32 s5, s6, 3
    s_lshl_b32 s5, s5, 10
    s_bfe_u32 s7, s6, 0x20001
    s_lshl_b32 s7, s7, 8
    s_add_u32 s5, s5, s7
    s_and_b32 s7, s6, 1
    s_lshl_b32 s7, s7, 4
    s_add_u32 s5, s5, s7
    v_and_b32 v26, 3, v24
    v_lshlrev_b32 v26, 1, v26
    v_and_b32 v27, 1, v25
    v_add_u32 v28, v26, v27          ; m
    v_lshlrev_b32 v26, 5, v28
    v_bfe_u32 v30, v24, 2, 1         ; nb
    v_lshl_add_u32 v26, v30, 3, v26
    v_add_u32 v{V_PUB}, s5, v26
    v_and_b32 v26, 3, v24
    v_bfe_u32 v27, v24, 2, 1
    v_lshlrev_b32 v27, 4, v27
    v_mov_b32 v29, 0x3f80
    v_lshlrev_b32 v29, v27, v29
    """)
    for r in range(4):
        k(f"v_cmp_eq_u32 vcc, {r}, v26\nv_cndmask_b32 v{V_SEL+r}, 0, v29, vcc")
    k(f"""
    v_mul_u32_u24 v26, {2*RSX}, v25
    v_lshrrev_b32 v27, 2, v24
    v_lshlrev_b32 v27, 4, v27
    v_add_u32 v26, v26, v27
    v_and_b32 v27, 3, v24
    v_lshlrev_b32 v27, 1, v27
    v_add_u32 v26, v26, v27
    s_lshl_b32 s5, s{S_W}, 6
    s_add_u32 s5, s5, {L_QX}
    v_add_u32 v{V_QW}, s5, v26
    v_and_b32 v26, 7, v24
    v_mul_u32_u24 v26, {RSX}, v26
    v_lshlrev_b32 v27, 4, v25
    v_add_u32 v26, v26, v27
    v_add_u32 v{V_QR}, {L_QX}, v26
    ; m'(x) = 2*(x>>2) + (x&1)
    v_lshrrev_b32 v26, 2, v24
    v_lshlrev_b32 v26, 1, v26
    v_and_b32 v29, 1, v24
    v_add_u32 v29, v26, v29
    v_mul_u32_u24 v26, {RSX}, v29
    v_add_u32 v26, v26, v27
    v_add_u32 v{V_KR}, {L_KX}, v26
    v_lshlrev_b32 v26, 8, v29
    v_add_u32 v26, v26, v27
    s_lshl_b32 s5, s{S_W}, 6
    v_add_u32 v{V_KMO}, s5, v26
    v_lshlrev_b32 v26, 3, v0
    s_lshl_b32 s5, s{S_W}, 9
    v_add_u32 v{V_VMO}, s5, v26
    v_and_b32 v26, 7, v24
    v_lshlrev_b32 v26, 4, v26
    v_lshrrev_b32 v27, 1, v25
    v_lshlrev_b32 v27, 7, v27
    v_add_u32 v26, v26, v27
    v_and_b32 v27, 1, v25
    v_lshlrev_b32 v27, 3, v27
    v_add_u32 v26, v26, v27
    s_lshl_b32 s5, s{S_W}, 9
    s_add_u32 s5, s5, {L_OX}
    v_add_u32 v{V_OW}, s5, v26
    s_lshl_b32 s5, s{S_W}, 15
    v_add_u32 v{V_WO}, s5, v{V_L16}
    s_waitcnt lgkmcnt(0)
    """)
    srd(k, WS, 26, WS_BYTES)
    srd(k, WSRD, 24, 8192)
    k(f"""
    s_cmp_ge_u32 s{S_W}, 2
    s_cbranch_scc1 {P}_nopub0
    s_lshr_b32 s5, s6, 3
    s_lshl_b32 s5, s5, 6
    s_and_b32 s7, s6, 7
    s_lshl_b32 s7, s7, 1
    s_add_u32 s5, s5, s7
    s_lshl_b32 s5, s5, 1
    v_lshlrev_b32 v26, 10, v28
    v_lshl_add_u32 v26, v30, 1, v26
    v_add_u32 v26, s5, v26
    buffer_load_ushort v40, v26, s[{WSRD}:{WSRD+3}], 0 offen
    buffer_load_ushort v41, v26, s[{WSRD}:{WSRD+3}], 0 offen offset:32
    buffer_load_ushort v42, v26, s[{WSRD}:{WSRD+3}], 0 offen offset:64
    buffer_load_ushort v43, v26, s[{WSRD}:{WSRD+3}], 0 offen offset:96
    """)
    k.label(f"{P}_nopub0")
    k(f"""
    v_lshrrev_b32 v26, 4, v0
    v_lshlrev_b32 v27, 1, v26
    v_and_b32 v28, 15, v0
    v_xor_b32 v27, v27, v28
    v_lshlrev_b32 v27, 4, v27
    v_lshlrev_b32 v26, 13, v26
    v_add_u32 v26, v26, v27
    s_lshl_b32 s5, s{S_H}, 8
    v_add_u32 v24, s5, v26
    v_xor_b32 v25, 128, v24
    v_bfe_u32 v28, v0, 2, 2        ; r
    v_and_b32 v29, 3, v0           ; c
    v_lshrrev_b32 v30, 4, v0       ; gB
    v_and_b32 v31, 1, v28          ; r&1
    v_lshrrev_b32 v32, 1, v28      ; r>>1
    v_and_b32 v33, 1, v30          ; gB&1
    v_lshrrev_b32 v34, 1, v30      ; gB>>1
    v_lshlrev_b32 v35, 4, v31
    v_lshl_add_u32 v35, v34, 2, v35
    v_lshl_add_u32 v35, v32, 1, v35
    v_add_u32 v35, v35, v33        ; Lrow
    v_lshlrev_b32 v35, 8, v35
    v_lshlrev_b32 v36, 2, v31
    v_lshl_add_u32 v36, v32, 1, v36
    v_add_u32 v36, v36, v33        ; F
    v_lshlrev_b32 v36, 1, v36      ; 2F
    v_lshrrev_b32 v37, 1, v29      ; c>>1
    s_lshl_b32 s5, s{S_W}, 2
    v_add_u32 v37, s5, v37
    v_xor_b32 v37, v37, v36
    v_lshlrev_b32 v37, 4, v37
    v_and_b32 v38, 1, v29
    v_lshl_add_u32 v37, v38, 3, v37
    v_add_u32 v35, v35, v37
    s_lshl_b32 s5, s{S_W}, 15
    v_add_u32 v26, s5, v35
    v_xor_b32 v27, 32, v26
    """)
    for mat in range(3):
        srd(k, WSRD, 16 + 2 * mat, 512 * 4096 * 2)
        k(f"s_lshl_b32 s5, s{S_W}, 20\ns_lshl_b32 s6, s{S_W}, 15")
        for y in range(32):
            k(f"s_mov_b32 m0, s6")
            k(f"buffer_load_dwordx4 v{24 + ((y >> 2) & 1)}, s[{WSRD}:{WSRD+3}], s5 offen lds")
            if y < 31: k(f"s_add_u32 s5, s5, 32768\ns_add_u32 s6, s6, 1024")
        if mat == 0 and merged:
            for r in range(4): k(f"v_mov_b32 v{44+r}, -1")
            k(f"s_lshl_b32 s7, s{S_H}, 13\ns_add_u32 s7, s7, {INBOX}")
            for slot in range(3):
                k(f"buffer_store_dwordx4 v[44:47], v{V_MEMP}, s[{WS}:{WS+3}], s7 offen sc1")
                k(f"buffer_store_dwordx4 v[44:47], v{V_MEMP}, s[{WS}:{WS+3}], s7 offen offset:1024 sc1")
                if slot < 2: k("s_add_u32 s7, s7, 0x40000")
            for slot in range(1, 4):
                k(f"s_mov_b32 s7, {MEMR + slot*8192}\nbuffer_store_dwordx2 v[44:45], v{V_PUB}, s[{WS}:{WS+3}], s7 offen sc1")
            k(f"s_lshl_b32 s7, s{S_H}, 4\ns_add_u32 s7, s7, {FLAGS + F_KVM}\nv_mov_b32 v48, 0")
            k(f"buffer_store_dword v48, off, s[{WS}:{WS+3}], s7 sc1")
        k("s_waitcnt vmcnt(0)")
        if mat == 0:
            k(f"s_cmp_ge_u32 s{S_W}, 2\ns_cbranch_scc1 {P}_nopub1")
            k(f"v_lshl_or_b32 v40, v41, 16, v40\nv_lshl_or_b32 v41, v43, 16, v42\ns_mov_b32 s7, {MEMR}")
            k(f"buffer_store_dwordx2 v[40:41], v{V_PUB}, s[{WS}:{WS+3}], s7 offen sc1")
            k.label(f"{P}_nopub1")
        k("s_barrier")
        if mat == 0 and merged: dbg_add(k, DBG_FLAGS, 46, S_W)
        if mat == 1 and merged:
            La = f"{P}_ann"
            k(f"s_cmp_lg_u32 s{S_W}, 0\ns_cbranch_scc1 {La}")
            k("s_getreg_b32 s70, hwreg(HW_REG_XCC_ID, 0, 4)\ns_mul_i32 s70, s70, 6\ns_lshl_b64 s[70:71], 1, s70\ns_add_u32 s71, s71, 0x10000")
            k("v_mov_b32 v44, s70\nv_mov_b32 v45, s71\ns_mov_b64 exec, 1")
            k(f"buffer_atomic_add_x2 v[44:45], off, s[{DBG}:{DBG+3}], 0 sc1")
            k("s_mov_b64 exec, -1")
            k.label(La)
        for t in range(2):
            for u in range(8):
                k(f"v_xor_b32 v28, {u*16384}, v{26+t}")
                for rp in range(4):
                    off = 8192 * (rp & 1) + 2048 * (rp >> 1)
                    k(f"ds_read_b64_tr_b16 {wfrag_pair(mat,t,u,rp)}, v28 offset:{off}")
                if u % 2 == 1: k("s_waitcnt lgkmcnt(0)")
        k("s_waitcnt lgkmcnt(0)\ns_barrier")
    srd(k, WSRD, 22, 4096 * 512 * 2)
    k(f"""
    v_lshrrev_b32 v26, 4, v0
    v_and_b32 v27, 1, v26
    v_lshlrev_b32 v27, 2, v27        ; 4*(row&1)
    v_and_b32 v28, 15, v0
    v_xor_b32 v27, v27, v28
    v_lshlrev_b32 v27, 4, v27
    v_lshlrev_b32 v26, 10, v26
    v_add_u32 v26, v26, v27
    s_lshl_b32 s5, s{S_W}, 8
    v_add_u32 v24, s5, v26
    v_xor_b32 v25, 128, v24
    s_lshl_b32 s5, s{S_H}, 17
    s_lshl_b32 s6, s{S_W}, 15
    """)
    for y in range(32):
        k("s_mov_b32 m0, s6")
        k(f"buffer_load_dwordx4 v{24 + (y & 1)}, s[{WSRD}:{WSRD+3}], s5 offen lds")
        if y < 31: k("s_add_u32 s5, s5, 4096\ns_add_u32 s6, s6, 1024")
    k(f"""
    v_lshlrev_b32 v35, 3, v34
    v_lshl_add_u32 v35, v33, 2, v35
    v_add_u32 v35, v35, v31
    v_lshlrev_b32 v35, 8, v35
    v_lshlrev_b32 v36, 2, v31
    v_lshl_add_u32 v36, v33, 3, v36
    v_lshrrev_b32 v37, 1, v29
    v_lshl_add_u32 v37, v32, 1, v37
    v_xor_b32 v37, v37, v36
    v_lshlrev_b32 v37, 4, v37
    v_lshl_add_u32 v37, v38, 3, v37
    v_add_u32 v35, v35, v37
    s_lshl_b32 s5, s{S_W}, 15
    v_add_u32 v28, s5, v35
    s_waitcnt vmcnt(0)
    """)
    TMP = 48
    for half in range(2):
        for tau in range(4):
            k(f"v_xor_b32 v29, {64*tau}, v28")
            for e2 in range(2):
                eb = 2 * half + e2
                for rp in range(4):
                    off = (32 * eb + 16 * (rp >> 1) + 2 * (rp & 1)) * 256
                    k(f"ds_read_b64_tr_b16 {v(TMP+16*tau+8*e2+2*rp,2)}, v29 offset:{off}")
            k("s_waitcnt lgkmcnt(0)")
        for tau in range(4):
            for e2 in range(2):
                for hf in range(2):
                    k(f"ds_write_b128 v{V_WO}, {v(TMP+16*tau+8*e2+4*hf,4)} offset:{half*16384+tau*4096+e2*2048+hf*1024}")
        k("s_waitcnt lgkmcnt(0)")
    k("s_barrier")
    k(f"""
    v_and_b32 v24, 0x3e0, v{V_L16}
    v_lshrrev_b32 v24, 1, v24
    v_add_u32 v{V_WARM}, {L_OX}, v24
    """)

def step_offsets(k):
    k(f"""
    s_and_b32 s5, s{S_STEP}, 3
    s_lshl_b32 s5, s5, 13
    s_add_u32 s{S_MEMC}, s5, {MEMR}
    s_add_u32 s5, s{S_STEP}, 1
    s_and_b32 s5, s5, 3
    s_lshl_b32 s5, s5, 13
    s_add_u32 s{S_MEMN}, s5, {MEMR}
    s_add_u32 s5, s{S_STEP}, 3
    s_and_b32 s5, s5, 3
    s_lshl_b32 s5, s5, 13
    s_add_u32 s{S_MEMP}, s5, {MEMR}
    s_and_b32 s5, s{S_STEP}, 1
    s_lshl_b32 s6, s5, 18
    s_add_u32 s{S_INBC}, s6, {INBOX}
    s_add_u32 s{S_INBC1}, s{S_INBC}, 32768
    s_xor_b32 s6, s6, 0x40000
    s_add_u32 s{S_INBP}, s6, {INBOX}
    s_lshl_b32 s6, s5, 13
    s_add_u32 s{S_KSLOT}, s6, {L_KS}
    s_xor_b32 s6, s6, 8192
    s_lshl_b32 s7, s{S_W}, 11
    s_add_u32 s6, s6, s7
    s_add_u32 s{S_KSM0}, s6, {L_KS}
    s_lshl_b32 s5, s{S_H}, 6
    s_add_u32 s5, s5, s{S_STEP}
    s_add_u32 s5, s5, 1
    s_lshl_b32 s5, s5, 13
    s_add_u32 s{S_KFN}, s5, {KF}
    s_add_u32 s{S_VFN}, s5, {VF}
    s_lshl_b32 s5, s{S_STEP}, 5
    s_add_u32 s5, s5, s{S_H}
    s_lshl_b32 s5, s5, 11
    s_add_u32 s{S_KM}, s5, {KM}
    s_add_u32 s{S_VM}, s5, {VM}
    """)

def poll(k, P, name, r0, voff, soff, tmp, tmp2, cnt=None):
    L = f"{P}_{name}"
    k(f"s_mov_b32 s{S_SPIN}, 0")
    k.label(L)
    k(f"buffer_load_dwordx4 {v(r0,4)}, v{voff}, s[{WS}:{WS+3}], s{soff} offen sc1")
    k(f"buffer_load_dwordx4 {v(r0+4,4)}, v{voff}, s[{WS}:{WS+3}], s{soff} offen offset:1024 sc1")
    k(f"s_add_u32 s{S_SPIN}, s{S_SPIN}, 1")
    if cnt is not None: k(f"s_add_u32 s{cnt}, s{cnt}, 1")
    k(f"s_cmp_gt_u32 s{S_SPIN}, 20000")
    k(f"s_cbranch_scc1 {L}_fail")
    k("s_waitcnt vmcnt(0)")
    k(f"v_max3_u32 v{tmp}, v{r0}, v{r0+1}, v{r0+2}")
    k(f"v_max3_u32 v{tmp2}, v{r0+3}, v{r0+4}, v{r0+5}")
    k(f"v_max3_u32 v{tmp}, v{tmp}, v{r0+6}, v{r0+7}")
    k(f"v_max_u32 v{tmp}, v{tmp}, v{tmp2}")
    k(f"v_cmp_eq_u32 vcc, -1, v{tmp}")
    k(f"s_cbranch_vccnz {L}")
    k(f"s_branch {L}_ok")
    k.label(f"{L}_fail")
    k(f"s_add_u32 s{S_ERR}, s{S_ERR}, 1")
    k("s_waitcnt vmcnt(0)")
    k.label(f"{L}_ok")

def ilv(k, main, fill, start=0, per=1):
    fill = list(fill)
    for i, m in enumerate(main):
        k(m)
        if i >= start:
            for _ in range(per):
                if fill: k(fill.pop(0))
    for f in fill: k(f)

def smt(mat, t, u):
    acc = [AQ, AK, AV][mat] + 4 * t
    return f"v_smfmac_f32_16x16x64_bf16 {v(acc,4)}, {v(MA[u],4)}, {wfrag(mat,t,u)}, v{V_IDX}"

def chain_loop(k, P, stamps=False, dbg=True, D1=0, D2=0, X='', flags=False, sc=''):
    ST = Stamps(k, stamps)
    FT = 'ft' in X
    def ft(i):
        if FT: k(f"s_memrealtime s[{64+2*i}:{65+2*i}]")
    def ft_flush():
        if not FT: return
        L = k.newlabel(f"{P}_ft")
        k(f"s_waitcnt lgkmcnt(0)\ns_sub_u32 s5, s{S_STEP}, 21\ns_cmp_gt_u32 s5, 7\ns_cbranch_scc1 {L}")
        k(f"s_lshl_b32 s5, s5, 4\ns_lshl_b32 s6, s{S_W}, 7\ns_add_u32 s5, s5, s6\ns_add_u32 s5, s5, {L_OX + 2048}\nv_mov_b32 v112, s5")
        for i in range(4): k(f"v_mov_b32 v113, s{64+2*i}\nds_write_b32 v112, v113 offset:{4*i}")
        k("s_waitcnt lgkmcnt(0)")
        k.label(L)
    WSs = f"s[{WS}:{WS+3}]"
    c = (128 ** -0.5) * math.log2(math.e)
    S_ONES = 41 if not stamps else 62
    S_RST = 18
    S_FR, S_FC = 16, 17
    S_FNEED, S_FOFF, S_FNEED2, S_FOFF2 = 39, 38, 26, 31
    S_INBPv = 28
    S_KVMF = 60 if stamps else 42
    INB_SLOT = 0x40000
    k(f"s_mov_b32 s{S_C}, {f2u(c):#x}")
    k(f"s_mov_b32 s{S_ONES}, 0x3f803f80")
    k(f"s_mov_b32 s{S_ERR}, 0")
    k(f"s_lshl_b32 s5, s{S_W}, 8\ns_add_u32 s{S_JUNK}, s5, {L_OX + 2048}")
    SENT = 116
    def flag_spin(tag):
        L = k.newlabel(f"{P}_{tag}")
        k(f"v_readfirstlane_b32 s5, v{V_FLV}")
        k(f"s_cmp_ge_u32 s5, s{S_FNEED}\ns_cbranch_scc1 {L}_ok")
        k(f"s_mov_b32 s{S_SPIN}, 0")
        k.label(L)
        k(f"v_mov_b32 v{V_FLV}, 0")
        k(f"buffer_load_dword v{V_FLV}, v{V_FLV}, {WSs}, s{S_FOFF} offen sc1")
        k(f"s_add_u32 s{S_SPIN}, s{S_SPIN}, 1\ns_cmp_gt_u32 s{S_SPIN}, 0x8000\ns_cbranch_scc1 {L}_fail")
        k(f"s_waitcnt vmcnt(0)\nv_readfirstlane_b32 s5, v{V_FLV}")
        k(f"s_cmp_ge_u32 s5, s{S_FNEED}\ns_cbranch_scc0 {L}\ns_branch {L}_ok")
        k.label(f"{L}_fail")
        k(f"s_add_u32 s{S_ERR}, s{S_ERR}, 1\ns_waitcnt vmcnt(0)")
        k.label(f"{L}_ok")
    def flag_next(seg_plus):
        k(f"s_lshl_b32 s5, s{S_H}, 4\ns_lshl_b32 s{S_FOFF2}, s{S_FR}, 2\ns_add_u32 s{S_FOFF2}, s{S_FOFF2}, s5")
        k(f"s_add_u32 s{S_FOFF2}, s{S_FOFF2}, {FLAGS + F_KV}")
        k(f"s_add_u32 s5, s{S_STEP}, {seg_plus}\ns_cmp_ge_u32 s5, {NSEG}\ns_cselect_b32 s{S_FNEED2}, 0, s{S_FC}")
        k(f"s_add_u32 s{S_FR}, s{S_FR}, 1\ns_cmp_eq_u32 s{S_FR}, {RQ}\ns_cselect_b32 s{S_FR}, 0, s{S_FR}\ns_addc_u32 s{S_FC}, s{S_FC}, 0")
    S_KSM0v = 29 + 0
    def k_dma01():
        return [f"buffer_load_dwordx4 v{V_MEMP}, {WSs}, s{S_KFN} offen lds",
                f"buffer_load_dwordx4 v{V_MEMP}, {WSs}, s{S_KFN} offen offset:1024 lds"]
    S_KM0 = 28
    S_KRD = 61 if not stamps else 63
    k(f"""
    s_mov_b32 s{S_STEP}, 0
    s_mov_b32 s{S_MEMC}, {MEMR}
    s_mov_b32 s{S_MEMN}, {MEMR + 8192}
    s_mov_b32 s{S_MEMP}, {MEMR + 3*8192}
    s_mov_b32 s{S_INBC}, {INBOX}
    s_mov_b32 s{S_INBC1}, {INBOX + 32768}
    s_lshl_b32 s5, s{S_H}, 13
    s_add_u32 s{S_RST}, s5, {INBOX + 2*INB_SLOT}
    s_lshl_b32 s5, s{S_H}, 11
    s_add_u32 s{S_KM}, s5, {KM}
    s_add_u32 s{S_VM}, s5, {VM}
    s_lshl_b32 s5, s{S_H}, 19
    s_add_u32 s{S_KFN}, s5, {KF}
    s_lshl_b32 s5, s{S_H}, 4
    s_add_u32 s{S_KVMF}, s5, {FLAGS + F_KVM}
    s_lshl_b32 s5, s{S_W}, 11
    s_add_u32 s{S_KM0}, s5, {L_KS}
    s_mov_b32 s{S_KRD}, {L_KS}
    """)
    if flags and 'merged' in X:
        k(f"v_lshlrev_b32 v56, 3, v{V_L16}\ns_lshl_b32 s5, s{S_H}, 13\ns_add_u32 s5, s5, {INBOX}\ns_cmp_eq_u32 s{S_W}, 3\ns_cbranch_scc1 {P}_pfm")
        k(f"s_lshl_b32 s6, s{S_W}, 18\ns_add_u32 s5, s5, s6\nbuffer_load_dword v57, v56, {WSs}, s5 offen sc1\ns_branch {P}_pfd")
        k.label(f"{P}_pfm")
        k(f"s_mov_b32 s5, {MEMR}")
        for i in range(4):
            k(f"buffer_load_dword v{57+i}, v56, {WSs}, s5 offen sc1")
            if i < 3: k("s_add_u32 s5, s5, 8192")
        k.label(f"{P}_pfd")
        dbg_wait(k, DBG_FLAGS, N_FLAG_WGS, V_FLV)
    if flags:
        k(f"s_lshl_b32 s5, s{S_H}, 4\ns_add_u32 s{S_FOFF}, s5, {FLAGS + F_KV}\ns_mov_b32 s{S_FNEED}, 1\nv_mov_b32 v{V_FLV}, 0")
        flag_spin("f0")
    k(f"s_mov_b32 m0, s{S_KM0}")
    for x in k_dma01(): k(x)
    if flags:
        k(f"s_add_u32 s{S_FOFF}, s{S_FOFF}, 4\nv_mov_b32 v{V_FLV}, 0")
        k(f"buffer_load_dword v{V_FLV}, v{V_FLV}, {WSs}, s{S_FOFF} offen sc1")
        k(f"s_mov_b32 s{S_FR}, {2 % RQ}\ns_mov_b32 s{S_FC}, {2 // RQ + 1}")
        flag_next(2)
    k(f"s_add_u32 s{S_T0}, s{S_KFN}, {VF - KF}")
    k(f"s_add_u32 s{S_KFN}, s{S_KFN}, 8192\ns_xor_b32 s{S_KM0}, s{S_KM0}, 8192")
    for r in range(AQ, AQ + 24): k(f"v_mov_b32 v{r}, 0")
    for r in range(4): k(f"v_mov_b32 v{SENT+r}, -1")
    k("s_waitcnt vmcnt(0)")
    ST.init()
    cold = []
    MB = VSEG
    def mem_poll_issue(r=MA[0]):
        k(f"buffer_load_dwordx4 {v(r,4)}, v{V_MEMP}, {WSs}, s{S_MEMC} offen sc1")
        k(f"buffer_load_dwordx4 {v(r+4,4)}, v{V_MEMP}, {WSs}, s{S_MEMC} offen offset:1024 sc1")
    def mem_check(r):
        k(f"v_max3_u32 v{V_TMP}, v{r}, v{r+1}, v{r+2}")
        k(f"v_max3_u32 v{MA[2]}, v{r+3}, v{r+4}, v{r+5}")
        k(f"v_max3_u32 v{V_TMP}, v{V_TMP}, v{r+6}, v{r+7}")
        k(f"v_max_u32 v{V_TMP}, v{V_TMP}, v{MA[2]}")
        k(f"v_cmp_eq_u32 vcc, -1, v{V_TMP}")
    def k_frag_reads():
        k(f"v_add_u32 v{V_TMP}, s{S_KRD}, v{V_L16}")
        for T in range(2):
            for ks in range(4): k(f"ds_read_b128 {v(KSEG+16*T+4*ks,4)}, v{V_TMP} offset:{(4*T+ks)*1024}")
    k("s_barrier")
    k(f"s_mov_b32 s{S_SPIN}, 0")
    mem_poll_issue()
    k_frag_reads()
    mem_poll_issue(MB)
    k.label(f"{P}_step")
    k("s_waitcnt vmcnt(2)")
    ST(0)
    ft(0)
    if common.TRACE_ON: k("s_memrealtime s[96:97]")
    mem_check(MA[0])
    own = [smt(mat, t, u) for u in (0, 1) for mat in range(3) for t in range(2)]
    k(f"s_cbranch_vccnz {P}_pm_retry")
    def cold_pm():
        k.label(f"{P}_pm_retry")
        mem_poll_issue()
        if stamps: k("s_add_u32 s58, s58, 1")
        k("s_waitcnt vmcnt(2)")
        mem_check(MB)
        k(f"s_cbranch_vccz {P}_pm_b")
        mem_poll_issue(MB)
        k(f"s_add_u32 s{S_SPIN}, s{S_SPIN}, 1")
        k(f"s_cmp_gt_u32 s{S_SPIN}, 10000\ns_cbranch_scc0 {P}_step")
        k(f"s_add_u32 s{S_ERR}, s{S_ERR}, 1\ns_waitcnt vmcnt(0)\ns_branch {P}_pm_ok")
        k.label(f"{P}_pm_b")
        for r in range(8): k(f"v_mov_b32 v{MA[0]+r}, v{MB+r}")
        k(f"s_branch {P}_pm_ok")
    cold.append(cold_pm)
    k.label(f"{P}_pm_ok")
    k(f"ds_write_b128 v{V_MEMW}, {v(MA[0],4)}")
    k(own[0])
    k(f"ds_write_b128 v{V_MEMW}, {v(MA[1],4)} offset:1024")
    if dbg:
        k(f"s_lshl_b32 s5, s{S_STEP}, 13\ns_add_u32 s5, s5, {MEMDBG}")
        k(f"buffer_store_dwordx4 {v(MA[0],4)}, v{V_MEMP}, {WSs}, s5 offen")
        k(f"buffer_store_dwordx4 {v(MA[1],4)}, v{V_MEMP}, {WSs}, s5 offen offset:1024")
    k(f"buffer_load_dwordx4 {v(VSEG,4)}, v{V_MEMP}, {WSs}, s{S_T0} offen")
    k(own[1])
    if flags: k(f"v_readfirstlane_b32 s5, v{V_FLV}")
    k(own[2])
    k(f"buffer_load_dwordx4 {v(VSEG+4,4)}, v{V_MEMP}, {WSs}, s{S_T0} offen offset:1024")
    if flags: k(f"s_cmp_ge_u32 s5, s{S_FNEED}")
    k(own[3])
    if flags:
        k(f"s_cbranch_scc0 {P}_fs_slow")
        def cold_fs():
            k.label(f"{P}_fs_slow")
            flag_spin("fs")
            k(f"s_branch {P}_fs_ok")
        cold.append(cold_fs)
        k.label(f"{P}_fs_ok")
    k(own[4]); k(own[5])
    k("s_waitcnt lgkmcnt(0)\ns_barrier")
    ST(1)
    rd = [f"ds_read_b128 {v(MA[uu],4)}, v{V_MR + uu//2 - 1} offset:{1024*(uu&1)}" for uu in range(2, 8)]
    k(rd[0])
    ilv(k, own[6:], rd[1:])
    ST(2)
    if flags: k(f"v_mov_b32 v{V_TMP}, s{S_STEP}")
    for u in range(2, 8):
        k(f"s_waitcnt lgkmcnt({7 - u})")
        for t in range(2):
            k(smt(0, t, u))
        if u == 2 and flags:
            k(f"buffer_store_dword v{V_TMP}, off, {WSs}, s{S_KVMF} sc1")
        if u == 3: k(f"buffer_store_dwordx4 {v(SENT,4)}, v{V_MEMP}, {WSs}, s{S_RST} offen {sc}")
        if u == 5: k(f"buffer_store_dwordx4 {v(SENT,4)}, v{V_MEMP}, {WSs}, s{S_RST} offen offset:1024 {sc}")
    qe = [f"v_add_f32 v{AQ}, v{AQ}, v{AQ+1}", f"v_add_f32 v{AQ+2}, v{AQ+2}, v{AQ+3}",
          f"v_add_f32 v{AQ+4}, v{AQ+4}, v{AQ+5}", f"v_add_f32 v{AQ+6}, v{AQ+6}, v{AQ+7}",
          f"v_cvt_pk_bf16_f32 v{AQ}, v{AQ}, v{AQ+2}", f"v_cvt_pk_bf16_f32 v{AQ+4}, v{AQ+4}, v{AQ+6}",
          f"ds_write_b16 v{V_QW}, v{AQ}", f"ds_write_b16_d16_hi v{V_QW}, v{AQ} offset:{RSX}",
          f"ds_write_b16 v{V_QW}, v{AQ+4} offset:8", f"ds_write_b16_d16_hi v{V_QW}, v{AQ+4} offset:{RSX+8}"]
    km = [smt(1, t, u) for u in range(2, 8) for t in range(2)]
    for i, m in enumerate(km):
        k(m)
        if 1 <= i <= 5:
            for _ in range(2):
                if qe: k(qe.pop(0))
        if i == 6:
            k(f"s_mov_b32 m0, s{S_KM0}"); k(k_dma01()[0])
        if i == 7: k(k_dma01()[1])
        if i == 8 and flags:
            k(f"buffer_load_dword v{V_FLV}, off, {WSs}, s{S_FOFF2} sc1")
        if i == 9:
            k(f"s_waitcnt vmcnt({8 if flags else 6}) lgkmcnt(0)\ns_barrier")
            for ks in range(2): k(f"ds_read_b128 {v(QB[ks],4)}, v{V_QR} offset:{64*ks}")
        if i == 10:
            for ks in range(2, 4): k(f"ds_read_b128 {v(QB[ks],4)}, v{V_QR} offset:{64*ks}")
    ST(3)
    vm = [smt(2, t, u) for u in range(2, 8) for t in range(2)]
    ke = [f"v_add_f32 v{AK}, v{AK}, v{AK+1}", f"v_add_f32 v{AK+2}, v{AK+2}, v{AK+3}",
          f"v_add_f32 v{AK+4}, v{AK+4}, v{AK+5}", f"v_add_f32 v{AK+6}, v{AK+6}, v{AK+7}",
          f"v_cvt_pk_bf16_f32 v{AK}, v{AK}, v{AK+2}", f"v_cvt_pk_bf16_f32 v{AK+4}, v{AK+4}, v{AK+6}"]
    D = L_KX - L_QX
    kw = [f"ds_write_b16 v{V_QW}, v{AK} offset:{D}", f"ds_write_b16_d16_hi v{V_QW}, v{AK} offset:{D+RSX}",
          f"ds_write_b16 v{V_QW}, v{AK+4} offset:{D+8}", f"ds_write_b16_d16_hi v{V_QW}, v{AK+4} offset:{D+RSX+8}"]
    k(vm[0]); k(vm[1])
    k(ke[0]); k(ke[1]); k(vm[2]); k(ke[2]); k(ke[3]); k(vm[3]); k(ke[4]); k(ke[5])
    k(kw[0]); k(kw[1]); k(vm[4]); k(kw[2]); k(kw[3])
    k("s_waitcnt lgkmcnt(4)")
    sg = []
    for ks in range(4):
        for T in range(2):
            acc = AQ + 4 * T
            sg.append(f"v_mfma_f32_16x16x32_bf16 {v(acc,4)}, {v(KSEG+16*T+4*ks,4)}, {v(QB[ks],4)}, {'0' if ks == 0 else v(acc,4)}")
    t2i = [f"v_mov_b32 v{AK}, 0", f"v_mov_b32 v{AK+1}, 0", f"v_mov_b32 v{AK+2}, 0xf149f2ca", f"v_mov_b32 v{AK+3}, 0xf149f2ca",
           f"s_lshl_b32 s5, s{S_W}, 6", f"v_add_u32 v{V_TMP}, s5, v{V_KR}"]
    for i in range(4): k(sg[i])
    k("s_waitcnt lgkmcnt(0)\ns_barrier")
    ST(4)
    for ks in range(4): k(f"ds_read_b128 {v(KA[ks] + 0,4)}, v{V_KR} offset:{64*ks}") if False else None
    ilv(k, sg[4:], t2i, per=2)
    for ks in range(4): k(f"ds_read_b128 {v(KA[ks],4)}, v{V_KR} offset:{64*ks}")
    k(f"ds_read_b128 {v(AK+4,4)}, v{V_TMP}")
    def wo_off(f):
        u, eb, tau = f >> 3, (f & 7) >> 1, 2 * (f >> 3) + (f & 1)
        return (eb >> 1) * 16384 + tau * 4096 + (eb & 1) * 2048
    def wo_read(f):
        slot = WSLOT[f % 9]
        return [f"ds_read_b128 {v(slot+4*half,4)}, v{V_WO} offset:{wo_off(f)+half*1024}" for half in range(2)]
    w01 = wo_read(0) + wo_read(1)
    S = [AQ + i for i in range(8)] + [AK, AK + 1]
    M, M2 = AK + 4, AK + 5
    X1, X2 = V_TMP, MA[0] + 0
    for i, m in enumerate(vm[5:]):
        k(m)
        if i >= 3: k(w01[i - 3])
    k("s_waitcnt lgkmcnt(5)")
    ve = [f"v_add_f32 v{AV}, v{AV}, v{AV+1}", f"v_add_f32 v{AV+2}, v{AV+2}, v{AV+3}",
          f"v_add_f32 v{AV+4}, v{AV+4}, v{AV+5}", f"v_add_f32 v{AV+6}, v{AV+6}, v{AV+7}",
          f"v_cvt_pk_bf16_f32 v{AV}, v{AV}, v{AV+2}", f"v_cvt_pk_bf16_f32 v{AV+1}, v{AV+4}, v{AV+6}"]
    ms = [f"v_mfma_f32_16x16x32_bf16 {v(AK,4)}, {v(KA[ks],4)}, {v(QB[ks],4)}, {v(AK,4)}" for ks in range(4)]
    X1, X2 = V_TMP, AV + 6
    k(ms[0]); k(f"v_max3_f32 v{X1}, v{S[0]}, v{S[1]}, v{S[2]}"); k(f"v_max3_f32 v{X1}, v{X1}, v{S[3]}, v{S[4]}")
    k(ms[1]); k(f"v_max3_f32 v{X1}, v{X1}, v{S[5]}, v{S[6]}"); k(f"v_max_f32 v{X1}, v{X1}, v{S[7]}")
    k(ms[2]); k(ve[0]); k(ve[1])
    k(ms[3]); k(ve[2]); k(ve[3]); k(ve[4]); k(ve[5])
    k("s_waitcnt lgkmcnt(4)")
    kms = "" if 'plainkm' in X else "sc1"
    if 'nokm' not in X:
        k(f"buffer_store_dwordx4 {v(AK+4,4)}, v{V_KMO}, {WSs}, s{S_KM} offen {kms}")
        k(f"buffer_store_dwordx2 {v(AV,2)}, v{V_VMO}, {WSs}, s{S_VM} offen {kms}")
    else:
        k(f"buffer_store_dwordx4 {v(AK+4,4)}, v{V_KMO}, {WSs}, s{S_RST} offen offset:2048") if False else k("s_nop 0")
    ST(5)
    rest = [x for f in (2, 3, 4, 5, 6, 7) for x in wo_read(f)]
    k(f"v_mov_b32 v{AV+2}, v{AV+1}\nv_mov_b32 v{AV+3}, 0")
    k(f"v_max3_f32 v{M}, v{X1}, v{S[8]}, v{S[9]}")
    k(f"v_mov_b32 v{M2}, v{M}")
    k(f"v_mov_b32 v{QB[0]}, s{S_ONES}\nv_mov_b32 v{QB[0]+1}, s{S_ONES}")
    k(f"v_permlane32_swap_b32 v{M}, v{M2}")
    k(f"v_max_f32 v{M}, v{M}, v{M2}")
    k(f"v_mov_b32 v{M2}, v{M}")
    k(f"v_mov_b32 v{QB[0]+2}, s{S_ONES}\nv_mov_b32 v{QB[0]+3}, s{S_ONES}")
    k(f"v_permlane16_swap_b32 v{M}, v{M2}")
    k(f"v_max_f32 v{M}, v{M}, v{M2}")
    k(f"v_mul_f32 v{M}, {f2u(-c):#x}, v{M}")
    k(f"s_cmp_eq_u32 s{S_STEP}, {NSEG-1}")
    for r in S[::2]:
        k(f"v_pk_fma_f32 {v(r,2)}, {v(r,2)}, s[{S_C}:{S_C+1}], {v(M,2)} op_sel_hi:[1,0,0]")
    for i, r in enumerate(S):
        k(f"v_exp_f32 v{r}, v{r}")
        if i % 2 == 1 and rest: k(rest.pop(0))
    for i in range(4): k(f"v_cvt_pk_bf16_f32 v{AQ+i}, v{AQ+2*i}, v{AQ+2*i+1}")
    k(f"v_cvt_pk_bf16_f32 v{AK}, v{AK}, v{AK+1}\nv_mov_b32 v{AK+1}, 0")
    ST(6)
    O0, O1 = AQ + 4, AV + 4
    Lr, L2 = AK + 2, AK + 3
    k(f"s_waitcnt vmcnt({(8 if flags else 6) - (2 if 'nokm' in X else 0)})")
    ONES = QB[0]
    LA = AK + 4
    k(f"v_mfma_f32_16x16x32_bf16 {v(LA,4)}, {v(ONES,4)}, {v(AQ,4)}, 0")
    k(f"s_cbranch_scc1 {P}_done")
    rest += wo_read(8)
    k(f"v_mfma_f32_16x16x32_bf16 {v(O0,4)}, {v(VSEG,4)}, {v(AQ,4)}, 0")
    k(rest.pop(0)); k(rest.pop(0))
    k(f"v_mfma_f32_16x16x32_bf16 {v(O1,4)}, {v(VSEG+4,4)}, {v(AQ,4)}, 0")
    W8 = rest[-2:]; rest = rest[:-2]
    k(rest.pop(0)); k(rest.pop(0))
    k(f"v_mfma_f32_16x16x16_bf16 {v(LA,4)}, {v(ONES,2)}, {v(AK,2)}, {v(LA,4)}")
    k(rest.pop(0)); k(rest.pop(0))
    k(f"v_mfma_f32_16x16x16_bf16 {v(O0,4)}, {v(AV,2)}, {v(AK,2)}, {v(O0,4)}")
    for x in rest: k(x)
    k(f"v_mfma_f32_16x16x16_bf16 {v(O1,4)}, {v(AV+2,2)}, {v(AK,2)}, {v(O1,4)}")
    k(f"v_rcp_f32 v{Lr}, v{LA}")
    for x in W8: k(x)
    for r in (0, 2): k(f"v_pk_mul_f32 {v(O0+r,2)}, {v(O0+r,2)}, {v(Lr,2)} op_sel_hi:[1,0]")
    k(f"v_cvt_pk_bf16_f32 v{O0}, v{O0}, v{O0+1}\nv_cvt_pk_bf16_f32 v{O0+1}, v{O0+2}, v{O0+3}")
    k(f"ds_write_b64 v{V_OW}, {v(O0,2)}")
    for r in (0, 2): k(f"v_pk_mul_f32 {v(O1+r,2)}, {v(O1+r,2)}, {v(Lr,2)} op_sel_hi:[1,0]")
    k(f"v_cvt_pk_bf16_f32 v{O1}, v{O1}, v{O1+1}\nv_cvt_pk_bf16_f32 v{O1+1}, v{O1+2}, v{O1+3}")
    k(f"ds_write_b64 v{V_OW}, {v(O1,2)} offset:256")
    ST(7)
    for s_ in (WACC[1], WACC[2]):
        for r in range(4): k(f"v_mov_b32 v{s_+r}, 0")
    k("s_waitcnt lgkmcnt(0)\ns_barrier")
    for eb in range(4): k(f"ds_read_b128 {v(OA[eb],4)}, v{V_WARM} offset:{512*eb}")
    for s_ in (WACC[0], WACC[3]):
        for r in range(4): k(f"v_mov_b32 v{s_+r}, 0")
    ST(8)
    inflight = [('oa', 0), ('oa', 1), ('oa', 2), ('oa', 3)]
    def wait_for(tag):
        if tag in inflight:
            last = max(i for i, x in enumerate(inflight) if x == tag)
            k(f"s_waitcnt lgkmcnt({len(inflight) - 1 - last})")
            del inflight[:last + 1]
    def epi(u):
        a0, a1 = WACC[2*u], WACC[2*u+1]
        return [f"v_cvt_pk_bf16_f32 v{a0}, v{a0}, v{a0+2}", f"v_cvt_pk_bf16_f32 v{a0+1}, v{a0+1}, v{a0+3}",
                f"v_cvt_pk_bf16_f32 v{a0+2}, v{a1}, v{a1+2}", f"v_cvt_pk_bf16_f32 v{a0+3}, v{a1+1}, v{a1+3}"]
    for f in range(16):
        u, eb, tau = f >> 3, (f & 7) >> 1, 2 * (f >> 3) + (f & 1)
        wait_for(('oa', eb)); wait_for(('w', f))
        k(f"v_smfmac_f32_16x16x64_bf16 {v(WACC[tau],4)}, {v(OA[eb],4)}, {v(WSLOT[f%9],8)}, v{V_IDX}")
        if f + 9 < 16:
            for x in wo_read(f + 9): k(x)
            inflight += [('w', f + 9)] * 2
        if f == 9:
            for x in epi(0): k(x)
        if f == 10:
            k(f"buffer_store_dwordx4 {v(WACC[0],4)}, v{V_PART}, {WSs}, s{S_INBC} offen {sc}")
    for x in epi(1): k(x)
    k(f"buffer_store_dwordx4 {v(WACC[2],4)}, v{V_PART}, {WSs}, s{S_INBC1} offen {sc}")
    ST(9)
    ft(1)
    if common.TRACE_ON:
        k(f"s_waitcnt lgkmcnt(0)\ns_lshl_b32 s5, s{S_STEP}, 2\ns_add_u32 s5, s5, {L_OX + 2048 + 1024}\nv_mov_b32 v56, s5\nv_mov_b32 v57, s96\nds_write_b32 v56, v57")
    for r in range(AQ, AQ + 8): k(f"v_mov_b32 v{r}, 0")
    for r in range(4): k(f"v_mov_b32 v{SENT+r}, -1")
    k(f"s_mov_b32 s{S_T1}, s{S_MEMN}\ns_mov_b32 s{S_T2}, s{S_INBC}\ns_mov_b32 s7, s{S_MEMP}")
    k(f"""
    s_mov_b32 s{S_MEMP}, s{S_MEMC}
    s_mov_b32 s{S_MEMC}, s{S_MEMN}
    s_add_u32 s5, s{S_MEMN}, 0x2000
    s_and_b32 s5, s5, 0x7fff
    s_or_b32 s{S_MEMN}, s5, {MEMR}
    s_lshl_b32 s6, s{S_H}, 13
    s_add_u32 s{S_RST}, s{S_INBC}, s6
    s_add_u32 s5, s{S_INBC}, {INB_SLOT}
    s_cmp_ge_u32 s5, {INBOX + 3*INB_SLOT}
    s_cselect_b32 s{S_INBC}, {INBOX}, s5
    s_add_u32 s{S_INBC1}, s{S_INBC}, 32768
    s_add_u32 s{S_KM}, s{S_KM}, 65536
    s_add_u32 s{S_VM}, s{S_VM}, 65536
    s_add_u32 s{S_T0}, s{S_KFN}, {VF - KF}
    s_add_u32 s{S_KFN}, s{S_KFN}, {0 if 'fixkv' in X else 8192}
    s_xor_b32 s{S_KM0}, s{S_KM0}, 8192
    s_xor_b32 s{S_KRD}, s{S_KRD}, 8192
    """)
    assert MEMR == 0x10000 and L_KS % 16384 == 0
    if flags:
        k(f"s_mov_b32 s{S_FOFF}, s{S_FOFF2}\ns_mov_b32 s{S_FNEED}, s{S_FNEED2}")
        flag_next(3)
    k(f"s_add_u32 s{S_STEP}, s{S_STEP}, 1")
    k(f"s_cmp_ge_u32 s{S_W}, 2\ns_cbranch_scc1 {P}_w23")
    if D1: k(f"s_sleep {D1}")
    ST(12)
    L = f"{P}_pi"
    IA, IB = 56, 80
    def inb_issue(r):
        for i in range(4):
            k(f"buffer_load_dwordx4 {v(r+4*i,4)}, v{V_INB}, {WSs}, s{S_T2} offen offset:{1024*i} sc1")
    def inb_reduce(r, pend):
        R = lambda i: r + i
        chk = [f"v_max3_u32 v76, v{R(0)}, v{R(1)}, v{R(2)}", f"v_max3_u32 v77, v{R(3)}, v{R(4)}, v{R(5)}", f"v_max3_u32 v76, v76, v{R(6)}, v{R(7)}",
               f"v_max3_u32 v77, v77, v{R(8)}, v{R(9)}", f"v_max3_u32 v76, v76, v{R(10)}, v{R(11)}", f"v_max3_u32 v77, v77, v{R(12)}, v{R(13)}",
               f"v_max3_u32 v76, v76, v{R(14)}, v{R(15)}", "v_max_u32 v76, v76, v77"]
        k(f"s_waitcnt vmcnt({pend+3})")
        k(f"v_mfma_f32_16x16x32_bf16 v[72:75], {v(V_SEL,4)}, {v(r,4)}, 0"); k(chk[0])
        k(f"s_waitcnt vmcnt({pend+2})")
        k(f"v_mfma_f32_16x16x32_bf16 v[72:75], {v(V_SEL,4)}, {v(r+4,4)}, v[72:75]"); k(chk[1]); k(chk[2])
        k(f"s_waitcnt vmcnt({pend+1})")
        k(f"v_mfma_f32_16x16x32_bf16 v[72:75], {v(V_SEL,4)}, {v(r+8,4)}, v[72:75]"); k(chk[3]); k(chk[4])
        k(f"s_waitcnt vmcnt({pend})")
        k(chk[5]); k(chk[6]); k(chk[7])
        k(f"v_cmp_eq_u32 vcc, -1, v76")
        k(f"v_mfma_f32_16x16x32_bf16 v[72:75], {v(V_SEL,4)}, {v(r+12,4)}, v[72:75]")
    k(f"s_mov_b32 s{S_SPIN}, 0")
    inb_issue(IA)
    for r in range(AQ + 8, AQ + 24): k(f"v_mov_b32 v{r}, 0")
    if 'gap2' in X: k("s_sleep 1")
    inb_issue(IB)
    k.label(L)
    inb_reduce(IA, 4)
    k(f"s_cbranch_vccnz {L}_retry")
    def cold_pi():
        k.label(f"{L}_retry")
        inb_issue(IA)
        if stamps: k("s_add_u32 s59, s59, 1")
        inb_reduce(IB, 4)
        k(f"s_cbranch_vccz {L}_ok")
        inb_issue(IB)
        k(f"s_add_u32 s{S_SPIN}, s{S_SPIN}, 1")
        k(f"s_cmp_gt_u32 s{S_SPIN}, 10000\ns_cbranch_scc0 {L}")
        k(f"s_add_u32 s{S_ERR}, s{S_ERR}, 1\ns_waitcnt vmcnt(0)\ns_branch {L}_ok")
    cold.append(cold_pi)
    k.label(f"{L}_ok")
    ST(10)
    ft(2)
    for r in range(4):
        k(f"v_add_f32_dpp v{72+r}, v{72+r}, v{72+r} row_ror:8 row_mask:0xf bank_mask:0xf")
    k("v_cvt_pk_bf16_f32 v72, v72, v73\nv_cvt_pk_bf16_f32 v73, v74, v75")
    k(f"buffer_store_dwordx2 v[72:73], v{V_PUB}, {WSs}, s{S_T1} offen {sc}")
    k.label(f"{P}_join")
    k("s_barrier")
    ST(11)
    ft(3)
    ft_flush()
    ST.collect()
    if D2: k(f"s_sleep {D2}")
    k(f"s_mov_b32 s{S_SPIN}, 0")
    mem_poll_issue()
    k("s_waitcnt vmcnt(3)")
    k_frag_reads()
    if 'gap' in X: k("s_sleep 1")
    mem_poll_issue(MB)
    k(f"s_branch {P}_step")
    k.label(f"{P}_w23")
    for r in range(AQ + 8, AQ + 24): k(f"v_mov_b32 v{r}, 0")
    k("s_waitcnt vmcnt(2)")
    k(f"buffer_store_dwordx2 {v(SENT,2)}, v{V_PUB}, {WSs}, s7 offen {sc}")
    if stamps: k("s_memtime s[88:89]\ns_memtime s[84:85]")
    k(f"s_branch {P}_join")
    for cb in cold: cb()
    k.label(f"{P}_done")
    k("s_waitcnt vmcnt(0)\ns_barrier")
    if flags:
        k(f"s_cmp_lg_u32 s{S_W}, 2\ns_cbranch_scc1 {P}_nfin\nv_mov_b32 v{MA[0]}, {NSEG}\ns_mov_b64 exec, 1")
        k(f"buffer_store_dword v{MA[0]}, v{V_L16}, {WSs}, s{S_KVMF} offen sc1")
        k("s_mov_b64 exec, -1\ns_waitcnt vmcnt(0)")
        k.label(f"{P}_nfin")
    if FT:
        k(f"s_waitcnt lgkmcnt(0)\ns_barrier\nv_lshrrev_b32 v56, 2, v{V_L16}\ns_lshl_b32 s6, s{S_W}, 8\nv_add_u32 v56, s6, v56")
        k(f"v_add_u32 v57, {L_OX + 2048}, v56\nds_read_b32 v58, v57\ns_waitcnt lgkmcnt(0)")
        k(f"s_lshl_b32 s5, s{S_H}, 10\ns_add_u32 s5, s5, {TRACE}\nbuffer_store_dword v58, v56, {WSs}, s5 offen\ns_waitcnt vmcnt(0)")
    if stamps and flags:
        k(f"s_lshl_b32 s5, s2, 10\ns_lshl_b32 s6, s{S_W}, 6\ns_add_u32 s5, s5, s6\ns_add_u32 s5, s5, {TRACE + 256}\nv_mov_b32 v56, 0")
        for j in range(4):
            for r in range(4): k(f"v_mov_b32 v{60+4*j+r}, s{44+4*j+r}")
            k(f"buffer_store_dwordx4 {v(60+4*j,4)}, v56, {WSs}, s5 offen offset:{16*j}")
        k("s_waitcnt vmcnt(0)")
    if common.TRACE_ON:
        k(f"s_memrealtime s[98:99]\ns_waitcnt lgkmcnt(0)\nv_mov_b32 v56, {L_OX + 2048 + 1024 + 63*4}\nv_mov_b32 v57, s98\nds_write_b32 v56, v57\ns_waitcnt lgkmcnt(0)")
        k(f"v_lshrrev_b32 v56, 2, v{V_L16}\nv_add_u32 v57, {L_OX + 2048 + 1024}, v56\nds_read_b32 v58, v57\ns_waitcnt lgkmcnt(0)")
        k(f"s_lshl_b32 s5, s2, 10\ns_add_u32 s5, s5, {TRACE}\nbuffer_store_dword v58, v56, {WSs}, s5 offen\ns_waitcnt vmcnt(0)")
    return ST


def xcc_decide(k, P, slow_label):
    L = f"{P}_xd"
    k("s_mov_b32 s72, 0")
    k.label(L)
    k(f"buffer_load_dwordx2 v[26:27], off, s[{DBG}:{DBG+3}], 0 sc1")
    k(f"s_add_u32 s72, s72, 1\ns_cmp_gt_u32 s72, 0x20000\ns_cbranch_scc1 {slow_label}")
    k("s_waitcnt vmcnt(0)\nv_readfirstlane_b32 s70, v26\nv_readfirstlane_b32 s71, v27")
    k(f"s_lshr_b32 s5, s71, 16\ns_cmp_ge_u32 s5, 32\ns_cbranch_scc1 {L}_all\ns_sleep 8\ns_branch {L}")
    k.label(f"{L}_all")
    k("s_getreg_b32 s5, hwreg(HW_REG_XCC_ID, 0, 4)\ns_mul_i32 s5, s5, 6\ns_lshr_b64 s[70:71], s[70:71], s5\ns_and_b32 s5, s70, 63")
    k(f"s_cmp_lg_u32 s5, 32\ns_cbranch_scc1 {slow_label}")
```

```python
from asm import *
from layout import *
import math, struct
def f2u(x): return struct.unpack("<I", struct.pack("<f", x))[0]
def srd(k, r, ptr, nbytes):
    k(f"s_mov_b32 s{r}, s{ptr}")
    k(f"s_and_b32 s{r+1}, s{ptr+1}, 0xffff")
    k(f"s_mov_b32 s{r+2}, {nbytes}")
    k(f"s_mov_b32 s{r+3}, 0x20000")
def S4(r): return f"s[{r}:{r+3}]"

def bf16_round(k, dst, src, tmp):
    k(f"v_cvt_pk_bf16_f32 v{tmp}, v{src}, v{src}")
    k(f"v_lshlrev_b32 v{dst}, 16, v{tmp}")

TRACE_ON = False
def tr_init(k, regs):
    if not TRACE_ON: return
    for r in regs: k(f"v_mov_b32 v{r}, 0")
def tr(k, reg, idx_sreg):
    if not TRACE_ON: return
    k("s_memrealtime s[74:75]\ns_waitcnt lgkmcnt(0)")
    k(f"s_mov_b32 m0, s{idx_sreg}\ns_nop 0\nv_writelane_b32 v{reg}, s74, m0")
def tr_imm(k, reg, idx):
    if not TRACE_ON: return
    k("s_memrealtime s[74:75]\ns_waitcnt lgkmcnt(0)")
    k(f"v_writelane_b32 v{reg}, s74, {idx}")
def tr_dump(k, regs, ws, wave_sreg, lane_v=0):
    if not TRACE_ON: return
    L = k.newlabel("trd")
    k(f"s_waitcnt lgkmcnt(0)\nv_writelane_b32 v{regs[2]}, s78, 0")
    k(f"s_cmp_lg_u32 s{wave_sreg}, 0\ns_cbranch_scc1 {L}")
    k(f"s_lshl_b32 s5, s2, 10\ns_add_u32 s5, s5, {TRACE}\nv_lshlrev_b32 v{regs[0]+0 if False else 6}, 2, v{lane_v}")
    for i, r in enumerate(regs):
        k(f"buffer_store_dword v{r}, v6, s[{ws}:{ws+3}], s5 offen offset:{256*i}")
    k("s_waitcnt vmcnt(0)")
    k.label(L)

DBG = 64
DBG_FLAGS, DBG_LN = 128, 64
N_FLAG_WGS = 32 * RQ + 32 + 7 * RH + 16 * RG
def dbg_srd(k):
    k(f"s_load_dwordx2 s[68:69], s[0:1], {D_DBG}\ns_waitcnt lgkmcnt(0)")
    srd(k, DBG, 68, 256)
def dbg_add(k, off, vt, wave_sreg=None):
    L = k.newlabel("dba")
    if wave_sreg is not None: k(f"s_cmp_lg_u32 s{wave_sreg}, 0\ns_cbranch_scc1 {L}")
    k(f"v_mov_b32 v{vt}, 1\ns_mov_b64 exec, 1")
    k(f"buffer_atomic_add v{vt}, off, {S4(DBG)}, 0 offset:{off} sc1")
    k("s_mov_b64 exec, -1")
    k.label(L)
def dbg_wait(k, off, target, vt, wave_sreg=4):
    L = k.newlabel("dbw")
    k(f"s_cmp_lg_u32 s{wave_sreg}, 0\ns_cbranch_scc1 {L}_x")
    k("s_mov_b32 s70, 0")
    k.label(L)
    k(f"buffer_load_dword v{vt}, off, {S4(DBG)}, 0 offset:{off} sc1")
    k(f"s_add_u32 s70, s70, 1\ns_cmp_gt_u32 s70, 0x10000\ns_cbranch_scc1 {L}_y")
    k(f"s_waitcnt vmcnt(0)\nv_readfirstlane_b32 s71, v{vt}")
    k(f"s_cmp_ge_u32 s71, {target}\ns_cbranch_scc1 {L}_x\ns_sleep 8\ns_branch {L}")
    k.label(f"{L}_y")
    k("s_waitcnt vmcnt(0)")
    k.label(f"{L}_x")
    k("s_barrier")
def zero_flag(k, soff_sreg, vt):
    k(f"v_mov_b32 v{vt}, 0\nbuffer_store_dword v{vt}, off, s[8:11], s{soff_sreg} sc1")
```

```python
from common import *
from qkv import wait_flag, post_flag, xs_dma, S_ERR, S_SPIN, WS, WSRD, S_W
import qkv
S_JB, S_R = 3, 16
S_J, S_SEG, S_XB, S_T0, S_T1, S_T2 = 17, 18, 20, 22, 23, 24
V_L16, V_T = 1, 4
assert qkv.V_L16 == V_L16
BIAS = 8
ACC = 24
XF = 72

def f1_setup(k, P, merged=False):
    k(f"""
    s_load_dwordx4 s[36:39], s[0:1], {B_W1}
    s_load_dwordx2 s[42:43], s[0:1], {D_WS}
    v_lshrrev_b32 v24, 6, v0
    v_and_b32 v0, 63, v0
    v_readfirstlane_b32 s{S_W}, v24
    v_lshlrev_b32 v{V_L16}, 4, v0
    v_lshrrev_b32 v25, 4, v0        ; g
    s_waitcnt lgkmcnt(0)
    """)
    srd(k, WS, 42, WS_BYTES)
    srd(k, WSRD, 38, 1792 * 2)
    k(f"""
    s_lshl_b32 s5, s{S_JB}, 9
    s_lshl_b32 s6, s{S_W}, 7
    s_add_u32 s5, s5, s6
    v_lshlrev_b32 v26, 3, v25
    """)
    for nt in range(4): k(f"buffer_load_dwordx2 {v(40+2*nt,2)}, v26, {S4(WSRD)}, s5 offen offset:{32*nt}")
    k("s_waitcnt vmcnt(0)")
    for nt in range(4):
        k(f"v_lshlrev_b32 v{BIAS+4*nt}, 16, v{40+2*nt}\nv_and_b32 v{BIAS+4*nt+1}, 0xffff0000, v{40+2*nt}")
        k(f"v_lshlrev_b32 v{BIAS+4*nt+2}, 16, v{41+2*nt}\nv_and_b32 v{BIAS+4*nt+3}, 0xffff0000, v{41+2*nt}")
    srd(k, WSRD, 36, 512 * 3584)
    k(f"""
    v_lshrrev_b32 v26, 3, v0
    v_mul_u32_u24 v26, 3584, v26
    v_bfe_u32 v27, v0, 4, 1
    v_lshlrev_b32 v27, 1, v27
    v_and_b32 v28, 7, v0
    v_xor_b32 v27, v27, v28
    v_lshlrev_b32 v27, 4, v27
    v_add_u32 v24, v26, v27
    v_xor_b32 v28, 64, v27
    v_add_u32 v25, v26, v28
    v_bfe_u32 v28, v0, 2, 2         ; r
    v_lshrrev_b32 v29, 4, v0        ; g
    v_lshl_add_u32 v30, v29, 3, v28
    v_lshlrev_b32 v30, 7, v30
    v_lshrrev_b32 v31, 1, v28
    v_and_b32 v32, 1, v29
    v_lshl_add_u32 v31, v32, 1, v31
    v_lshlrev_b32 v31, 1, v31       ; 2F
    v_bfe_u32 v32, v0, 1, 1
    v_xor_b32 v31, v31, v32
    v_lshl_add_u32 v30, v31, 4, v30
    v_and_b32 v32, 1, v0
    v_lshl_add_u32 v30, v32, 3, v30
    s_lshl_b32 s5, s{S_W}, 15
    v_add_u32 v26, s5, v30
    """)
    for rd in range(2):
        k(f"s_lshl_b32 s5, s{S_JB}, 9\ns_lshl_b32 s6, s{S_W}, 7\ns_add_u32 s5, s5, s6")
        if rd: k(f"s_add_u32 s5, s5, {256*3584}")
        k(f"s_lshl_b32 s6, s{S_W}, 15")
        for y in range(32):
            k("s_mov_b32 m0, s6")
            k(f"buffer_load_dwordx4 v{24 + (y & 1)}, {S4(WSRD)}, s5 offen lds")
            if y < 31: k(f"s_add_u32 s5, s5, {8*3584}\ns_add_u32 s6, s6, 1024")
        if rd == 0 and merged:
            k(f"s_lshl_b32 s7, s{S_R}, 5\ns_lshl_b32 s{S_T0}, s{S_JB}, 2\ns_add_u32 s7, s7, s{S_T0}\ns_add_u32 s7, s7, {FLAGS + F_H}")
            zero_flag(k, 7, 40)
        k("s_waitcnt vmcnt(0)")
        if rd == 0 and merged:
            k("s_barrier")
            dbg_add(k, DBG_FLAGS, 40, S_W)
        for nt in range(4):
            k(f"v_xor_b32 v27, {32*nt}, v26")
            for ksl in range(8):
                for rp in range(2):
                    f = nt * 16 + rd * 8 + ksl
                    k(f"ds_read_b64_tr_b16 {a(4*f+2*rp,2)}, v27 offset:{4096*ksl+512*rp}")
                if ksl % 4 == 3: k("s_waitcnt lgkmcnt(4)")
        k("s_waitcnt lgkmcnt(0)")
    k("s_barrier")
    if merged: dbg_wait(k, DBG_LN, 128, 40)

def f1_loop(k, P):
    k(f"s_mov_b32 s{S_ERR}, 0\ns_mov_b32 s{S_J}, 0\ns_mov_b32 s{S_SEG}, s{S_R}\ns_mov_b32 s{S_XB}, 0")
    tr_init(k, (104, 105, 106)); tr_imm(k, 106, 1)
    xs_dma(k, S_SEG, S_XB)
    k.label(f"{P}_loop")
    k(f"s_add_u32 s{S_T0}, s{S_SEG}, {RH}\ns_xor_b32 s{S_T1}, s{S_XB}, 32768")
    k(f"s_cmp_lt_u32 s{S_T0}, {NSEG}\ns_cbranch_scc0 {P}_nopf")
    xs_dma(k, S_T0, S_T1)
    k(f"s_waitcnt vmcnt(8)\ns_branch {P}_pf_done")
    k.label(f"{P}_nopf")
    k("s_waitcnt vmcnt(0)")
    k.label(f"{P}_pf_done")
    k("s_barrier")
    k(f"v_add_u32 v{V_T}, s{S_XB}, v{V_L16}")
    def xrd(ks):
        b = XF + 8 * (ks & 1)
        return [f"ds_read_b128 {v(b,4)}, v{V_T} offset:{ks*1024}", f"ds_read_b128 {v(b+4,4)}, v{V_T} offset:{16384+ks*1024}"]
    for x in xrd(0): k(x)
    for ks in range(16):
        if ks < 15:
            for x in xrd(ks + 1): k(x)
            k("s_waitcnt lgkmcnt(2)")
        else:
            k("s_waitcnt lgkmcnt(0)")
        b = XF + 8 * (ks & 1)
        for nt in range(4):
            for T in range(2):
                A_ = ACC + 8 * nt + 4 * T
                C_ = v(BIAS + 4 * nt, 4) if ks == 0 else v(A_, 4)
                k(f"v_mfma_f32_16x16x32_bf16 {v(A_,4)}, {a(4*(nt*16+ks),4)}, {v(b+4*T,4)}, {C_}")
    T0, T1, T2, T3 = 88, 92, 96, 100
    nl2e = f2u(-math.log2(math.e))
    k(f"s_mov_b32 s{S_T2}, {nl2e:#x}")
    for grp in range(8):
        A_ = ACC + 4 * grp
        k(f"v_cvt_pk_bf16_f32 v{T0}, v{A_}, v{A_+1}\nv_cvt_pk_bf16_f32 v{T0+1}, v{A_+2}, v{A_+3}")
        k(f"v_lshlrev_b32 v{A_}, 16, v{T0}\nv_and_b32 v{A_+1}, 0xffff0000, v{T0}")
        k(f"v_lshlrev_b32 v{A_+2}, 16, v{T0+1}\nv_and_b32 v{A_+3}, 0xffff0000, v{T0+1}")
        for r in range(4): k(f"v_mul_f32 v{T0+r}, s{S_T2}, abs(v{A_+r})")
        for r in range(4): k(f"v_exp_f32 v{T0+r}, v{T0+r}")
        for r in range(4): k(f"v_mul_f32 v{T1+r}, v{T0+r}, v{T0+r}")
        for r in range(4):
            k(f"v_cmp_le_f32 vcc, 0, v{A_+r}")
            k(f"v_cndmask_b32 v{T2+r}, v{T1+r}, 1.0, vcc")
            k(f"v_cndmask_b32 v{T3+r}, 1.0, v{T1+r}, vcc")
        for r in range(4): k(f"v_fma_f32 v{T2+r}, v{T0+r}, 2.0, v{T2+r}")
        for r in range(4): k(f"v_fma_f32 v{T3+r}, v{T3+r}, 2.0, v{T2+r}")
        for r in range(4): k(f"v_rcp_f32 v{T3+r}, v{T3+r}")
        for r in range(4): k(f"v_mul_f32 v{T2+r}, v{T2+r}, v{A_+r}")
        for r in range(4): k(f"v_mul_f32 v{A_+r}, v{T2+r}, v{T3+r}")
    PK = 72
    for x in range(2):
        for T in range(2):
            for h in range(2):
                A_ = ACC + 8 * (2 * x + h) + 4 * T
                k(f"v_cvt_pk_bf16_f32 v{PK+8*x+4*T+2*h}, v{A_}, v{A_+1}\nv_cvt_pk_bf16_f32 v{PK+8*x+4*T+2*h+1}, v{A_+2}, v{A_+3}")
    k(f"""
    s_mul_i32 s5, s{S_SEG}, {2*56*1024}
    s_lshl_b32 s6, s{S_JB}, 13
    s_add_u32 s5, s5, s6
    s_lshl_b32 s6, s{S_W}, 11
    s_add_u32 s5, s5, s6
    s_add_u32 s5, s5, {HF}
    s_add_u32 s6, s5, {56*1024}
    buffer_store_dwordx4 {v(PK,4)}, v{V_L16}, {S4(WS)}, s5 offen sc1
    buffer_store_dwordx4 {v(PK+8,4)}, v{V_L16}, {S4(WS)}, s5 offen offset:1024 sc1
    buffer_store_dwordx4 {v(PK+4,4)}, v{V_L16}, {S4(WS)}, s6 offen sc1
    buffer_store_dwordx4 {v(PK+12,4)}, v{V_L16}, {S4(WS)}, s6 offen offset:1024 sc1
    s_add_u32 s{S_J}, s{S_J}, 1
    s_waitcnt vmcnt(0)
    s_barrier
    s_lshl_b32 s5, s{S_R}, 5
    s_lshl_b32 s6, s{S_JB}, 2
    s_add_u32 s5, s5, s6
    s_add_u32 s{S_T2}, s5, {FLAGS + F_H}
    """)
    post_flag(k, P, S_T2, S_J)
    tr(k, 104, S_J)
    k(f"s_add_u32 s{S_SEG}, s{S_SEG}, {RH}\ns_xor_b32 s{S_XB}, s{S_XB}, 32768\ns_cmp_lt_u32 s{S_SEG}, {NSEG}\ns_cbranch_scc1 {P}_loop")
    k("s_waitcnt vmcnt(0)")
    tr_dump(k, (104, 105, 106), WS, S_W)
```

```python
from common import *
from qkv import wait_flag, post_flag, S_ERR, S_SPIN, WS, WSRD, S_W
import qkv

S_JB, S_RHO = 3, 16
OUT_SC = ''
S_SEG, S_CNT, S_AB, S_T0, S_T1, S_T2 = 17, 18, 19, 20, 21, 22
XSRD, OSRD = 24, 32
V_L16, V_ROW, V_FLG, V_T = 1, 2, 3, 4
AW = 32
NWIN = 16
ACC = 8
L_RED = 0

def gk_setup(k, P, kind, merged=False):
    KW = 32 if kind == "wo" else 14
    wptr = A_WO if kind == "wo" else B_W2
    wbytes = (4096 if kind == "wo" else 1792) * 1024
    k(f"""
    s_load_dwordx2 s[36:37], s[0:1], {wptr}
    s_load_dwordx2 s[38:39], s[0:1], {D_WS}
    s_load_dwordx2 s[40:41], s[0:1], {A_X}
    s_load_dwordx2 s[42:43], s[0:1], {D_OUT}
    v_lshrrev_b32 v24, 6, v0
    v_and_b32 v0, 63, v0
    v_readfirstlane_b32 s{S_W}, v24
    v_lshlrev_b32 v{V_L16}, 4, v0
    v_and_b32 v24, 15, v0           ; tok
    v_lshrrev_b32 v25, 4, v0        ; g
    v_lshlrev_b32 v26, 10, v24
    v_lshl_add_u32 v26, v25, 3, v26
    s_and_b32 s5, s{S_W}, 1
    s_lshl_b32 s5, s5, 5
    s_lshl_b32 s6, s{S_JB}, 6
    s_add_u32 s5, s5, s6
    {f"s_and_b32 s6, s{S_RHO}, 1" if kind == "wo" else f"s_lshr_b32 s6, s{S_W}, 1"}
    s_lshl_b32 s6, s6, 14
    s_add_u32 s5, s5, s6
    v_add_u32 v{V_ROW}, s5, v26
    s_waitcnt lgkmcnt(0)
    """)
    srd(k, WS, 38, WS_BYTES)
    srd(k, WSRD, 36, wbytes)
    srd(k, XSRD, 40, 2048 * 1024)
    srd(k, OSRD, 42, 2048 * 1024)
    if kind == "wo":
        k(f"v_and_b32 v26, 31, v0\nv_lshlrev_b32 v26, 2, v26\nv_add_u32 v{V_FLG}, {FLAGS + F_O}, v26")
    else:
        k(f"v_and_b32 v26, 7, v0\nv_min_u32 v26, 6, v26\nv_lshlrev_b32 v26, 2, v26\nv_add_u32 v{V_FLG}, {FLAGS + F_H}, v26")
    k(f"""
    v_lshrrev_b32 v26, 2, v0
    v_lshlrev_b32 v26, 10, v26
    v_bfe_u32 v27, v0, 4, 1
    v_lshlrev_b32 v27, 1, v27
    v_and_b32 v28, 3, v0
    v_xor_b32 v27, v27, v28
    v_lshl_add_u32 v24, v27, 4, v26
    v_bfe_u32 v28, v0, 2, 2
    v_lshl_add_u32 v28, v25, 2, v28
    v_lshlrev_b32 v28, 6, v28
    v_and_b32 v29, 1, v25
    v_lshlrev_b32 v29, 1, v29
    v_bfe_u32 v30, v0, 1, 1
    v_xor_b32 v29, v29, v30
    v_lshl_add_u32 v28, v29, 4, v28
    v_and_b32 v29, 1, v0
    v_lshl_add_u32 v28, v29, 3, v28
    s_lshl_b32 s5, s{S_W}, 15
    v_add_u32 v26, s5, v28
    v_xor_b32 v27, 32, v26
    """)
    nround = 2 if KW == 32 else 1
    kpr = KW // nround
    for rd in range(nround):
        k(f"s_mul_i32 s5, s{S_W}, {KW*32*1024}\ns_lshl_b32 s6, s{S_JB}, 6\ns_add_u32 s5, s5, s6")
        if rd: k(f"s_add_u32 s5, s5, {rd*kpr*32*1024}")
        k(f"s_lshl_b32 s6, s{S_W}, 15")
        n = kpr * 2
        for y in range(n):
            k("s_mov_b32 m0, s6")
            k(f"buffer_load_dwordx4 v24, {S4(WSRD)}, s5 offen lds")
            if y < n - 1: k("s_add_u32 s5, s5, 16384\ns_add_u32 s6, s6, 1024")
        if rd == 0 and merged and kind == "f2":
            k(f"s_lshl_b32 s7, s{S_JB}, 2\ns_lshl_b32 s{S_T0}, s{S_RHO}, 6\ns_add_u32 s7, s7, s{S_T0}\ns_add_u32 s7, s7, {FLAGS + F_G}")
            zero_flag(k, 7, 40)
        k("s_waitcnt vmcnt(0)")
        if rd == 0 and merged and kind == "f2":
            k("s_barrier")
            dbg_add(k, DBG_FLAGS, 40, S_W)
        m = 0
        for kk in range(kpr):
            for nt in range(2):
                for rp in range(2):
                    f = 2 * (rd * kpr + kk) + nt
                    k(f"ds_read_b64_tr_b16 {a(4*f+2*rp,2)}, v{26+nt} offset:{2048*kk+1024*rp}")
                    m += 1
                    if m % 8 == 0: k("s_waitcnt lgkmcnt(4)")
        k("s_waitcnt lgkmcnt(0)")
    k("s_barrier")
    if merged: dbg_wait(k, DBG_FLAGS, N_FLAG_WGS, 40)

def gk_loop(k, P, kind):
    wo = kind == "wo"
    KW = 32 if wo else 14
    NKS = 128 if wo else 56
    ABUF = OF if wo else HF
    NT_ = 1 if wo else 2
    SSTEP = (RW // 2) if wo else RG
    RPROD = RQ if wo else RH
    FSTR = 128 if wo else 32
    if wo: k(f"s_lshr_b32 s{S_SEG}, s{S_RHO}, 1")
    else: k(f"s_mov_b32 s{S_SEG}, s{S_RHO}")
    k(f"s_mov_b32 s{S_ERR}, 0\ns_mov_b32 s{S_CNT}, 0")
    tr_init(k, (28, 29, 30)); tr_imm(k, 30, 1)
    k.label(f"{P}_loop")
    k(f"s_lshl_b32 s{S_T2}, s{S_SEG}, 15")
    if wo:
        k(f"s_mul_hi_u32 s{S_T0}, s{S_SEG}, {-(-(1 << 32) // RG)}\ns_mul_i32 s5, s{S_T0}, {RG}\ns_sub_u32 s5, s{S_SEG}, s5\ns_lshl_b32 s5, s5, 6")
        k(f"s_lshl_b32 s6, s{S_JB}, 2\ns_add_u32 s5, s5, s6\ns_add_u32 s{S_T1}, s5, {FLAGS + F_G}\ns_add_u32 s{S_T0}, s{S_T0}, 1\nv_mov_b32 v5, 0")
        wait_flag(k, P, "g", 5, f"s{S_T1}", S_T0)
        k(f"s_add_u32 s5, s{S_T2}, {GBUF}")
        k(f"buffer_load_dwordx2 v[24:25], v{V_ROW}, {S4(WS)}, s5 offen sc1")
        k(f"buffer_load_dwordx2 v[26:27], v{V_ROW}, {S4(XSRD)}, s{S_T2} offen")
    k(f"s_mul_hi_u32 s{S_T0}, s{S_SEG}, {-(-(1 << 32) // RPROD)}")
    k(f"s_mul_i32 s5, s{S_T0}, {RPROD}\ns_sub_u32 s5, s{S_SEG}, s5\ns_mul_i32 s{S_T1}, s5, {FSTR}\ns_add_u32 s{S_T0}, s{S_T0}, 1")
    k(f"s_mul_i32 s{S_AB}, s{S_SEG}, {2*NKS*1024}\ns_mul_i32 s5, s{S_W}, {KW*1024}\ns_add_u32 s{S_AB}, s{S_AB}, s5\ns_add_u32 s{S_AB}, s{S_AB}, {ABUF}")
    if wo: k(f"s_and_b32 s5, s{S_RHO}, 1\ns_mul_i32 s5, s5, {NKS*1024}\ns_add_u32 s{S_AB}, s{S_AB}, s5")
    else: k(f"s_add_u32 s{S_CNT+0}, s{S_CNT}, 0")
    wait_flag(k, P, "a", V_FLG, f"s{S_T1}", S_T0)
    tr(k, 28, S_SEG)
    S_B1 = 23
    if not wo: k(f"s_add_u32 s{S_B1}, s{S_AB}, {NKS*1024}")
    nfr = NT_ * KW
    def ld(i):
        kk, T = divmod(i, NT_)
        base = S_AB if T == 0 else S_B1
        r = AW + 4 * (i % NWIN)
        q, o = divmod(kk * 1024, 4096)
        if q == 0:
            return [f"buffer_load_dwordx4 {v(r,4)}, v{V_L16}, {S4(WS)}, s{base} offen offset:{o} sc1"]
        return [f"s_add_u32 s5, s{base}, {q*4096}", f"buffer_load_dwordx4 {v(r,4)}, v{V_L16}, {S4(WS)}, s5 offen offset:{o} sc1"]
    for i in range(min(NWIN, nfr)):
        for x in ld(i): k(x)
    issued = min(NWIN, nfr)
    for kk in range(KW):
        k(f"s_waitcnt vmcnt({issued - NT_*(kk+1)})")
        for T in range(NT_):
            for nt in range(2):
                A_ = ACC + 8 * nt + 4 * T
                C_ = "0" if kk == 0 else v(A_, 4)
                k(f"v_mfma_f32_16x16x32_bf16 {v(A_,4)}, {a(4*(2*kk+nt),4)}, {v(AW+4*((NT_*kk+T)%NWIN),4)}, {C_}")
        for T in range(NT_):
            if issued < nfr:
                for x in ld(issued): k(x)
                issued += 1
    k(f"s_lshl_b32 s5, s{S_W}, 12\ns_add_u32 s5, s5, {L_RED}\nv_add_u32 v{V_T}, s5, v{V_L16}")
    for nt in range(2):
        for T in range(NT_):
            k(f"ds_write_b128 v{V_T}, {v(ACC+8*nt+4*T,4)} offset:{(2*T+nt)*1024}")
    k("s_waitcnt lgkmcnt(0)\ns_barrier")
    k(f"s_lshl_b32 s5, s{S_W}, 10\ns_add_u32 s5, s5, {L_RED}\nv_add_u32 v{V_T}, s5, v{V_L16}")
    for w in range(4): k(f"ds_read_b128 {v(40+4*w,4)}, v{V_T} offset:{4096*w}")
    k("s_waitcnt lgkmcnt(0)\ns_barrier")
    if wo: k(f"s_cmp_ge_u32 s{S_W}, 2\ns_cbranch_scc1 {P}_skip")
    for r in range(4):
        k(f"v_add_f32 v{40+r}, v{40+r}, v{44+r}\nv_add_f32 v{48+r}, v{48+r}, v{52+r}\nv_add_f32 v{40+r}, v{40+r}, v{48+r}")
    k("v_cvt_pk_bf16_f32 v44, v40, v41\nv_cvt_pk_bf16_f32 v45, v42, v43")
    k("v_lshlrev_b32 v40, 16, v44\nv_and_b32 v41, 0xffff0000, v44\nv_lshlrev_b32 v42, 16, v45\nv_and_b32 v43, 0xffff0000, v45")
    if wo:
        k("v_lshlrev_b32 v44, 16, v24\nv_and_b32 v45, 0xffff0000, v24\nv_lshlrev_b32 v46, 16, v25\nv_and_b32 v47, 0xffff0000, v25")
        for r in range(4): k(f"v_mul_f32 v{40+r}, v{40+r}, v{44+r}")
        k("v_cvt_pk_bf16_f32 v44, v40, v41\nv_cvt_pk_bf16_f32 v45, v42, v43")
        k("v_lshlrev_b32 v40, 16, v44\nv_and_b32 v41, 0xffff0000, v44\nv_lshlrev_b32 v42, 16, v45\nv_and_b32 v43, 0xffff0000, v45")
        k("v_lshlrev_b32 v44, 16, v26\nv_and_b32 v45, 0xffff0000, v26\nv_lshlrev_b32 v46, 16, v27\nv_and_b32 v47, 0xffff0000, v27")
        for r in range(4): k(f"v_add_f32 v{40+r}, v{40+r}, v{44+r}")
        k("v_cvt_pk_bf16_f32 v44, v40, v41\nv_cvt_pk_bf16_f32 v45, v42, v43")
        k(f"buffer_store_dwordx2 v[44:45], v{V_ROW}, {S4(OSRD)}, s{S_T2} offen {OUT_SC}")
        k.label(f"{P}_skip")
    else:
        for r in range(4):
            k(f"v_mul_f32 v{44+r}, {f2u(-math.log2(math.e)):#x}, v{40+r}")
        for r in range(4): k(f"v_exp_f32 v{44+r}, v{44+r}")
        for r in range(4): k(f"v_add_f32 v{44+r}, 1.0, v{44+r}")
        for r in range(4): k(f"v_rcp_f32 v{44+r}, v{44+r}")
        for r in range(4): k(f"v_mul_f32 v{40+r}, v{40+r}, v{44+r}")
        k("v_cvt_pk_bf16_f32 v44, v40, v41\nv_cvt_pk_bf16_f32 v45, v42, v43")
        k(f"s_add_u32 s5, s{S_T2}, {GBUF}")
        k(f"buffer_store_dwordx2 v[44:45], v{V_ROW}, {S4(WS)}, s5 offen sc1")
        k(f"s_add_u32 s{S_CNT}, s{S_CNT}, 1\ns_waitcnt vmcnt(0)\ns_barrier")
        k(f"s_lshl_b32 s5, s{S_JB}, 2\ns_lshl_b32 s6, s{S_RHO}, 6\ns_add_u32 s5, s5, s6\ns_add_u32 s{S_T1}, s5, {FLAGS + F_G}")
        post_flag(k, P, S_T1, S_CNT)
    tr(k, 29, S_SEG)
    k(f"s_add_u32 s{S_SEG}, s{S_SEG}, {SSTEP}\ns_cmp_lt_u32 s{S_SEG}, {NSEG}\ns_cbranch_scc1 {P}_loop")
    k("s_waitcnt vmcnt(0)")
    tr_imm(k, 30, 2)
    tr_dump(k, (28, 29, 30), WS, S_W)
```

```python
from common import *

WS, WSRD = 8, 12
S_H, S_W, S_R = 3, 4, 16
S_J, S_SEG, S_NJ = 17, 18, 19
S_XB, S_RING, S_T0, S_T1, S_T2 = 20, 21, 22, 23, 24
S_AJ, S_ASEG, S_ARING, S_C, S_ONES, S_ERR, S_SPIN = 25, 26, 27, 28, 29, 30, 31
S_TQ, S_EH = 32, 33
L_XS = 0
L_RING = 65536
RING_E = 24576
NRING = 3
LAG = NRING - 1

V_L16, V_KMR, V_VMR, V_T = 1, 2, 3, 4
V_FLG = 5
MASK = 8
ACC = 24
XF = 72
WV0 = 128

def wf(mat, t, ks):
    f = t * 16 + ks
    if mat == 0: return a(4 * f, 4)
    if mat == 1: return a(128 + 4 * f, 4)
    return v(WV0 + 4 * f, 4)
def wfp(mat, t, ks, rp):
    f = t * 16 + ks
    if mat == 0: return a(4 * f + 2 * rp, 2)
    if mat == 1: return a(128 + 4 * f + 2 * rp, 2)
    return v(WV0 + 4 * f + 2 * rp, 2)
def acc(mat, t, T): return ACC + 16 * mat + 8 * t + 4 * T

def wait_flag(k, P, name, voff, soff, sval, dst=6):
    L = k.newlabel(f"{P}_{name}")
    k(f"s_mov_b32 s{S_SPIN}, 0")
    k.label(L)
    k(f"buffer_load_dword v{dst}, v{voff}, {S4(WS)}, {soff} offen sc1")
    k(f"s_add_u32 s{S_SPIN}, s{S_SPIN}, 1")
    k(f"s_cmp_gt_u32 s{S_SPIN}, 0x8000\ns_cbranch_scc1 {L}_fail")
    k("s_waitcnt vmcnt(0)")
    k(f"v_cmp_gt_u32 vcc, s{sval}, v{dst}")
    k(f"s_cbranch_vccz {L}_ok")
    k("s_sleep 2")
    k(f"s_branch {L}")
    k.label(f"{L}_fail")
    k(f"s_add_u32 s{S_ERR}, s{S_ERR}, 1\ns_waitcnt vmcnt(0)")
    k.label(f"{L}_ok")

def post_flag(k, P, off_sreg, val_sreg):
    L = k.newlabel(f"{P}_pf")
    k(f"s_cmp_lg_u32 s{S_W}, 0\ns_cbranch_scc1 {L}")
    k(f"v_mov_b32 v6, s{val_sreg}\nv_mov_b32 v7, 0")
    k("s_mov_b64 exec, 1")
    k(f"buffer_store_dword v6, v7, {S4(WS)}, s{off_sreg} offen sc1")
    k("s_mov_b64 exec, -1")
    k.label(L)

def qkv_setup(k, P, merged=False):
    k(f"""
    s_load_dwordx4 s[36:39], s[0:1], {A_WQ}
    s_load_dwordx2 s[40:41], s[0:1], {A_WV}
    s_load_dwordx2 s[42:43], s[0:1], {D_WS}
    v_lshrrev_b32 v24, 6, v0
    v_and_b32 v0, 63, v0
    v_readfirstlane_b32 s{S_W}, v24
    v_lshlrev_b32 v{V_L16}, 4, v0
    v_and_b32 v24, 15, v0          ; n / x
    v_lshrrev_b32 v25, 4, v0       ; g
    s_and_b32 s{S_TQ}, s{S_W}, 1
    s_lshr_b32 s{S_EH}, s{S_W}, 1
    v_lshrrev_b32 v26, 2, v24
    v_lshlrev_b32 v26, 1, v26
    v_and_b32 v27, 1, v24
    v_add_u32 v26, v26, v27
    v_lshlrev_b32 v26, 8, v26
    v_lshl_add_u32 v{V_KMR}, v25, 4, v26
    v_lshlrev_b32 v26, 3, v0
    s_lshl_b32 s5, s{S_EH}, 10
    v_add_u32 v{V_VMR}, s5, v26
    s_lshl_b32 s5, s{S_H}, 4
    s_add_u32 s5, s5, {FLAGS + F_KVM}
    v_mov_b32 v{V_FLG}, s5
    s_lshl_b32 s5, s{S_TQ}, 4
    v_add_u32 v26, s5, v24          ; qq
    v_lshlrev_b32 v27, 2, v25       ; 4g
    v_mov_b32 v29, 0xf149f2ca
    """)
    for T in range(2):
        for r in range(4):
            k(f"v_add_u32 v28, {16*T+r}, v27\nv_cmp_gt_u32 vcc, v28, v26\nv_cndmask_b32 v{MASK+4*T+r}, 0, v29, vcc")
    k(f"v_mov_b32 v{MASK+8}, 0\nv_mov_b32 v{MASK+9}, 0\nv_mov_b32 v{MASK+10}, v29\nv_mov_b32 v{MASK+11}, v29")
    k("s_waitcnt lgkmcnt(0)")
    srd(k, WS, 42, WS_BYTES)
    k(f"""
    v_lshrrev_b32 v26, 4, v0
    v_lshlrev_b32 v27, 1, v26
    v_and_b32 v28, 15, v0
    v_xor_b32 v27, v27, v28
    v_lshlrev_b32 v27, 4, v27
    v_lshlrev_b32 v26, 13, v26
    v_add_u32 v26, v26, v27
    s_lshl_b32 s5, s{S_H}, 8
    v_add_u32 v24, s5, v26
    v_xor_b32 v25, 128, v24
    v_bfe_u32 v28, v0, 2, 2        ; r
    v_and_b32 v29, 3, v0           ; c
    v_lshrrev_b32 v30, 4, v0       ; g
    v_lshl_add_u32 v31, v30, 3, v28
    v_lshlrev_b32 v31, 8, v31
    v_and_b32 v32, 1, v30
    v_lshl_add_u32 v32, v32, 2, v28
    v_lshlrev_b32 v32, 1, v32      ; 2F
    v_lshrrev_b32 v33, 1, v29
    s_lshl_b32 s5, s{S_W}, 2
    v_add_u32 v33, s5, v33
    v_xor_b32 v33, v33, v32
    v_lshlrev_b32 v33, 4, v33
    v_and_b32 v34, 1, v29
    v_lshl_add_u32 v33, v34, 3, v33
    v_add_u32 v26, v31, v33        ; t=0, ks<8
    v_xor_b32 v27, 32, v26         ; t=1
    v_add_u32 v28, 0x10000, v26
    v_add_u32 v29, 0x10000, v27
    """)
    for mat, ptr in enumerate((36, 38, 40)):
        srd(k, WSRD, ptr, 512 * 4096 * 2)
        k(f"s_lshl_b32 s5, s{S_W}, 20\ns_lshl_b32 s6, s{S_W}, 15")
        for y in range(32):
            k("s_mov_b32 m0, s6")
            k(f"buffer_load_dwordx4 v{24 + ((y >> 1) & 1)}, {S4(WSRD)}, s5 offen lds")
            if y < 31: k("s_add_u32 s5, s5, 32768\ns_add_u32 s6, s6, 1024")
        if mat == 0 and merged:
            k(f"s_lshl_b32 s7, s{S_H}, 4\ns_lshl_b32 s{S_T0}, s{S_R}, 2\ns_add_u32 s7, s7, s{S_T0}\ns_add_u32 s7, s7, {FLAGS + F_KV}")
            zero_flag(k, 7, 40)
            k(f"s_lshl_b32 s7, s{S_R}, 7\ns_lshl_b32 s{S_T0}, s{S_H}, 2\ns_add_u32 s7, s7, s{S_T0}\ns_add_u32 s7, s7, {FLAGS + F_O}")
            zero_flag(k, 7, 41)
        k("s_waitcnt vmcnt(0)\ns_barrier")
        if mat == 0 and merged: dbg_add(k, DBG_FLAGS, 40, S_W)
        n = 0
        for t in range(2):
            for ks in range(16):
                for rp in range(2):
                    k(f"ds_read_b64_tr_b16 {wfp(mat,t,ks,rp)}, v{26 + t + 2*(ks >> 3)} offset:{8192*(ks & 7) + 1024*rp}")
                    n += 1
                    if n % 8 == 0: k("s_waitcnt lgkmcnt(4)")
        k("s_waitcnt lgkmcnt(0)\ns_barrier")
    if merged:
        dbg_wait(k, DBG_LN, 128, 40)

def xs_dma(k, seg_sreg, buf_sreg):
    k(f"s_lshl_b32 s5, s{seg_sreg}, 15\ns_lshl_b32 s6, s{S_W}, 13\ns_add_u32 s5, s5, s6\ns_add_u32 s5, s5, {XN}")
    k(f"s_add_u32 s6, s6, s{buf_sreg}")
    for half in range(2):
        k("s_mov_b32 m0, s6")
        for i in range(4):
            k(f"buffer_load_dwordx4 v{V_L16}, {S4(WS)}, s5 offen offset:{1024*i} lds")
        if half == 0: k("s_add_u32 s5, s5, 4096\ns_add_u32 s6, s6, 4096")

def qkv_loop(k, P, merged=False):
    c = (128 ** -0.5) * math.log2(math.e)
    k(f"s_mov_b32 s{S_C}, {f2u(c):#x}\ns_mov_b32 s{S_ONES}, 0x3f803f80\ns_mov_b32 s{S_ERR}, 0")
    k(f"s_sub_u32 s5, {NSEG + RQ - 1}, s{S_R}")
    k(f"s_mul_hi_u32 s{S_NJ}, s5, {-(-(1 << 32) // RQ)}")
    k(f"s_mov_b32 s{S_J}, 0\ns_mov_b32 s{S_SEG}, s{S_R}\ns_mov_b32 s{S_XB}, {L_XS}\ns_mov_b32 s{S_RING}, {L_RING}")
    k(f"s_mov_b32 s{S_AJ}, 0\ns_mov_b32 s{S_ASEG}, s{S_R}\ns_mov_b32 s{S_ARING}, {L_RING}")
    tr_init(k, (20, 21, 22)); tr_imm(k, 22, 1)
    xs_dma(k, S_SEG, S_XB)
    k.label(f"{P}_loop")
    k(f"s_add_u32 s{S_T0}, s{S_SEG}, {RQ}\ns_xor_b32 s{S_T1}, s{S_XB}, 32768")
    k(f"s_cmp_lt_u32 s{S_T0}, {NSEG}\ns_cbranch_scc0 {P}_nopf")
    xs_dma(k, S_T0, S_T1)
    k(f"s_waitcnt vmcnt(8)\ns_branch {P}_pf_done")
    k.label(f"{P}_nopf")
    k("s_waitcnt vmcnt(0)")
    k.label(f"{P}_pf_done")
    k("s_barrier")
    k(f"v_add_u32 v{V_T}, s{S_XB}, v{V_L16}")
    def xrd(ks):
        b = XF + 8 * (ks & 1)
        return [f"ds_read_b128 {v(b,4)}, v{V_T} offset:{ks*1024}", f"ds_read_b128 {v(b+4,4)}, v{V_T} offset:{16384+ks*1024}"]
    for x in xrd(0): k(x)
    for ks in range(16):
        if ks < 15:
            for x in xrd(ks + 1): k(x)
            k("s_waitcnt lgkmcnt(2)")
        else:
            k("s_waitcnt lgkmcnt(0)")
        b = XF + 8 * (ks & 1)
        for mat in range(3):
            for t in range(2):
                for T in range(2):
                    A_ = acc(mat, t, T)
                    C_ = "0" if ks == 0 else v(A_, 4)
                    if mat < 2: k(f"v_mfma_f32_16x16x32_bf16 {v(A_,4)}, {wf(mat,t,ks)}, {v(b+4*T,4)}, {C_}")
                    else:       k(f"v_mfma_f32_16x16x32_bf16 {v(A_,4)}, {v(b+4*T,4)}, {wf(mat,t,ks)}, {C_}")
    PK = 72
    ops = []
    for T in range(2):
        for mat, base in ((1, PK), (0, PK + 8)):
            for t in range(2):
                A_ = acc(mat, t, T)
                k(f"v_cvt_pk_bf16_f32 v{base+4*T+2*t}, v{A_}, v{A_+1}\nv_cvt_pk_bf16_f32 v{base+4*T+2*t+1}, v{A_+2}, v{A_+3}")
    for t in range(2):
        for T in range(2):
            A_ = acc(2, t, T)
            k(f"v_cvt_pk_bf16_f32 v{PK+16+4*t+2*T}, v{A_}, v{A_+1}\nv_cvt_pk_bf16_f32 v{PK+16+4*t+2*T+1}, v{A_+2}, v{A_+3}")
    k(f"""
    s_lshl_b32 s5, s{S_H}, 6
    s_add_u32 s5, s5, s{S_SEG}
    s_lshl_b32 s5, s5, 13
    s_lshl_b32 s6, s{S_W}, 10
    s_add_u32 s7, s5, s6
    s_add_u32 s7, s7, {KF}
    buffer_store_dwordx4 {v(PK,4)}, v{V_L16}, {S4(WS)}, s7 offen sc1
    s_add_u32 s7, s7, 4096
    buffer_store_dwordx4 {v(PK+4,4)}, v{V_L16}, {S4(WS)}, s7 offen sc1
    s_lshl_b32 s6, s{S_W}, 11
    s_add_u32 s7, s5, s6
    s_add_u32 s7, s7, {VF}
    buffer_store_dwordx4 {v(PK+16,4)}, v{V_L16}, {S4(WS)}, s7 offen sc1
    buffer_store_dwordx4 {v(PK+20,4)}, v{V_L16}, {S4(WS)}, s7 offen offset:1024 sc1
    s_lshl_b32 s6, s{S_W}, 10
    s_add_u32 s5, s6, s{S_RING}
    v_add_u32 v{V_T}, s5, v{V_L16}
    ds_write_b128 v{V_T}, {v(PK+8,4)}
    ds_write_b128 v{V_T}, {v(PK+12,4)} offset:4096
    ds_write_b128 v{V_T}, {v(PK,4)} offset:8192
    ds_write_b128 v{V_T}, {v(PK+4,4)} offset:12288
    v_add_u32 v{V_T}, s6, v{V_T}
    ds_write_b128 v{V_T}, {v(PK+16,4)} offset:16384
    ds_write_b128 v{V_T}, {v(PK+20,4)} offset:17408
    s_add_u32 s{S_J}, s{S_J}, 1
    s_waitcnt vmcnt(0) lgkmcnt(0)
    s_barrier
    s_lshl_b32 s5, s{S_H}, 4
    s_lshl_b32 s6, s{S_R}, 2
    s_add_u32 s5, s5, s6
    s_add_u32 s{S_T2}, s5, {FLAGS + F_KV}
    """)
    post_flag(k, P, S_T2, S_J)
    tr(k, 20, S_J)
    k(f"""
    s_add_u32 s{S_SEG}, s{S_SEG}, {RQ}
    s_xor_b32 s{S_XB}, s{S_XB}, 32768
    s_add_u32 s{S_RING}, s{S_RING}, {RING_E}
    s_cmp_lt_u32 s{S_RING}, {L_RING + NRING*RING_E}
    s_cselect_b32 s{S_RING}, s{S_RING}, {L_RING}
    s_cmp_gt_u32 s{S_J}, {LAG}
    s_cbranch_scc1 {P}_att
    s_cmp_lt_u32 s{S_J}, s{S_NJ}
    s_cbranch_scc1 {P}_loop
    """)
    k.label(f"{P}_att")
    if merged:
        k(f"s_cmp_lg_u32 s{S_AJ}, 0\ns_cbranch_scc1 {P}_att2")
        dbg_wait(k, DBG_FLAGS, N_FLAG_WGS, 6)
        k.label(f"{P}_att2")
    attend(k, P)
    k(f"""
    s_add_u32 s{S_AJ}, s{S_AJ}, 1
    s_waitcnt vmcnt(0)
    s_barrier
    s_lshl_b32 s5, s{S_R}, 7
    s_lshl_b32 s6, s{S_H}, 2
    s_add_u32 s5, s5, s6
    s_add_u32 s{S_T2}, s5, {FLAGS + F_O}
    """)
    post_flag(k, P, S_T2, S_AJ)
    tr(k, 21, S_AJ)
    k(f"""
    s_add_u32 s{S_ASEG}, s{S_ASEG}, {RQ}
    s_add_u32 s{S_ARING}, s{S_ARING}, {RING_E}
    s_cmp_lt_u32 s{S_ARING}, {L_RING + NRING*RING_E}
    s_cselect_b32 s{S_ARING}, s{S_ARING}, {L_RING}
    s_cmp_lt_u32 s{S_J}, s{S_NJ}
    s_cbranch_scc1 {P}_loop
    s_cmp_lt_u32 s{S_AJ}, s{S_NJ}
    s_cbranch_scc1 {P}_att
    """)
    tr_dump(k, (20, 21, 22), WS, S_W)

def attend(k, P):
    Q, KK, KM_, VV, VMr = 24, 40, 72, 88, 104
    SS = 112
    k(f"s_lshl_b32 s5, s{S_TQ}, 12\ns_add_u32 s5, s5, s{S_ARING}\nv_add_u32 v{V_T}, s5, v{V_L16}")
    for ks in range(4): k(f"ds_read_b128 {v(Q+4*ks,4)}, v{V_T} offset:{1024*ks}")
    k(f"v_add_u32 v{V_T}, s{S_ARING}, v{V_L16}")
    for T in range(2):
        for ks in range(4): k(f"ds_read_b128 {v(KK+16*T+4*ks,4)}, v{V_T} offset:{8192+4096*T+1024*ks}")
    k("s_waitcnt lgkmcnt(0)")
    for ks in range(4):
        for T in range(2):
            C_ = v(MASK + 4 * T, 4) if ks == 0 else v(SS + 4 * T, 4)
            k(f"v_mfma_f32_16x16x32_bf16 {v(SS+4*T,4)}, {v(KK+16*T+4*ks,4)}, {v(Q+4*ks,4)}, {C_}")
    k(f"s_lshl_b32 s5, s{S_EH}, 12\ns_add_u32 s5, s5, s{S_ARING}\nv_add_u32 v{V_T}, s5, v{V_L16}")
    for i in range(4): k(f"ds_read_b128 {v(VV+4*i,4)}, v{V_T} offset:{16384+1024*i}")
    k(f"s_add_u32 s{S_T0}, s{S_ASEG}, 1")
    wait_flag(k, P, "kvm", V_FLG, "0", S_T0)
    k(f"s_lshl_b32 s5, s{S_ASEG}, 5\ns_add_u32 s5, s5, s{S_H}\ns_lshl_b32 s5, s5, 11\ns_add_u32 s6, s5, {KM}\ns_add_u32 s7, s5, {VM}")
    for ks in range(4): k(f"buffer_load_dwordx4 {v(KM_+4*ks,4)}, v{V_KMR}, {S4(WS)}, s6 offen offset:{64*ks} sc1")
    k(f"buffer_load_dwordx2 {v(VMr,2)}, v{V_VMR}, {S4(WS)}, s7 offen sc1")
    k(f"buffer_load_dwordx2 {v(VMr+2,2)}, v{V_VMR}, {S4(WS)}, s7 offen offset:512 sc1")
    k("s_waitcnt vmcnt(2)")
    for ks in range(4):
        C_ = v(MASK + 8, 4) if ks == 0 else v(SS + 8, 4)
        k(f"v_mfma_f32_16x16x32_bf16 {v(SS+8,4)}, {v(KM_+4*ks,4)}, {v(Q+4*ks,4)}, {C_}")
    S = [SS + i for i in range(10)]
    M, M2 = 6, 7
    k(f"v_max3_f32 v{M}, v{S[0]}, v{S[1]}, v{S[2]}\nv_max3_f32 v{M2}, v{S[3]}, v{S[4]}, v{S[5]}")
    k(f"v_max3_f32 v{M}, v{M}, v{S[6]}, v{S[7]}\nv_max3_f32 v{M2}, v{M2}, v{S[8]}, v{S[9]}\nv_max_f32 v{M}, v{M}, v{M2}")
    for sw in ("v_permlane32_swap_b32", "v_permlane16_swap_b32"):
        k(f"v_mov_b32 v{M2}, v{M}\n{sw} v{M}, v{M2}\nv_max_f32 v{M}, v{M}, v{M2}")
    k(f"v_mul_f32 v{M}, {f2u(-(128 ** -0.5) * math.log2(math.e)):#x}, v{M}")
    for r in S: k(f"v_fma_f32 v{r}, v{r}, s{S_C}, v{M}")
    for r in S: k(f"v_exp_f32 v{r}, v{r}")
    PF, P2 = 40, 44
    for i in range(4): k(f"v_cvt_pk_bf16_f32 v{PF+i}, v{SS+2*i}, v{SS+2*i+1}")
    k(f"v_cvt_pk_bf16_f32 v{P2}, v{SS+8}, v{SS+9}\nv_mov_b32 v{P2+1}, 0")
    k("s_waitcnt vmcnt(0) lgkmcnt(0)")
    ZP = 48
    for i in range(4): k(f"v_mov_b32 v{ZP+2*i}, v{VMr+i}\nv_mov_b32 v{ZP+2*i+1}, 0")
    O = 56
    for i in range(4): k(f"v_mfma_f32_16x16x32_bf16 {v(O+4*i,4)}, {v(VV+4*i,4)}, {v(PF,4)}, 0")
    for i in range(4): k(f"v_mfma_f32_16x16x16_bf16 {v(O+4*i,4)}, {v(ZP+2*i,2)}, {v(P2,2)}, {v(O+4*i,4)}")
    k(f"v_dot2_f32_bf16 v{M}, v{PF}, s{S_ONES}, 0\nv_dot2_f32_bf16 v{M2}, v{PF+1}, s{S_ONES}, 0")
    k(f"v_dot2_f32_bf16 v{M}, v{PF+2}, s{S_ONES}, v{M}\nv_dot2_f32_bf16 v{M2}, v{PF+3}, s{S_ONES}, v{M2}")
    k(f"v_dot2_f32_bf16 v{M}, v{P2}, s{S_ONES}, v{M}\nv_add_f32 v{M}, v{M}, v{M2}")
    for sw in ("v_permlane32_swap_b32", "v_permlane16_swap_b32"):
        k(f"v_mov_b32 v{M2}, v{M}\n{sw} v{M}, v{M2}\nv_add_f32 v{M}, v{M}, v{M2}")
    k(f"v_rcp_f32 v{M}, v{M}")
    for r in range(16): k(f"v_mul_f32 v{O+r}, v{O+r}, v{M}")
    PK = 72
    for i in range(4):
        k(f"v_cvt_pk_bf16_f32 v{PK+2*i}, v{O+4*i}, v{O+4*i+1}\nv_cvt_pk_bf16_f32 v{PK+2*i+1}, v{O+4*i+2}, v{O+4*i+3}")
    k(f"""
    s_lshl_b32 s5, s{S_ASEG}, 18
    s_lshl_b32 s6, s{S_TQ}, 17
    s_add_u32 s5, s5, s6
    s_lshl_b32 s6, s{S_H}, 12
    s_add_u32 s5, s5, s6
    s_lshl_b32 s6, s{S_EH}, 11
    s_add_u32 s5, s5, s6
    s_add_u32 s5, s5, {OF}
    buffer_store_dwordx4 {v(PK,4)}, v{V_L16}, {S4(WS)}, s5 offen sc1
    buffer_store_dwordx4 {v(PK+4,4)}, v{V_L16}, {S4(WS)}, s5 offen offset:1024 sc1
    """)
```

```python
import sys
from common import *
import chain, qkv, gemmk, ffn1, ln

NAME = "recurrent_scan__memory_aug_recurrent_mem_tr__dense_activation_mish__prompt_kernel"

def build(stamps=False, opts=''):
    import common
    common.TRACE_ON = 'trace' in opts
    import re as _re
    mm = _re.search(r'D=(\d+),(\d+),(\w*)', opts)
    D1, D2, XO = (int(mm.group(1)), int(mm.group(2)), mm.group(3)) if mm else (1, 2, 'gapgap2')
    k = K()
    k(f"""
    s_cmp_ge_u32 s2, 256
    s_cbranch_scc1 mg_exit
    {"s_memrealtime s[78:79]" if 'trace' in opts else ""}
    {"s_and_b32 s5, s2, 7" if 'spread' not in opts else "s_lshr_b32 s5, s2, 5"}
    {"s_lshr_b32 s6, s2, 3" if 'spread' not in opts else "s_and_b32 s6, s2, 31"}
    s_cmp_eq_u32 s5, 0
    s_cbranch_scc1 mg_chain
    s_cmp_le_u32 s5, 2
    s_cbranch_scc1 mg_wo
    s_cmp_eq_u32 s5, 3
    s_cbranch_scc1 mg_f2
    s_sub_u32 s5, s5, 4
    s_cmp_lt_u32 s6, {8*RQ}
    s_cbranch_scc0 mg_f1sel
    s_mul_i32 s5, s5, {8*RQ}
    s_add_u32 s5, s5, s6
    s_branch mg_qkv
mg_f1sel:
    s_sub_u32 s6, s6, {8*RQ}
    s_mul_i32 s5, s5, {32 - 8*RQ}
    s_add_u32 s5, s5, s6
    s_cmp_lt_u32 s5, {7*RH}
    s_cbranch_scc1 mg_f1
    s_endpgm
    """)
    k.label("mg_chain")
    k("s_mov_b32 s3, s6")
    dbg_srd(k)
    chain.chain_setup(k, "ch", merged=True)
    if 'forceslow' in opts: k("s_branch mg_chain_slow")
    chain.xcc_decide(k, "ch", "mg_chain_slow")
    chain.chain_loop(k, "ch", stamps=('st' in opts.split()), dbg=('dbg' in opts), flags=True, D1=D1, D2=D2, X=XO + 'merged')
    k("s_endpgm")
    k.label("mg_chain_slow")
    k("s_waitcnt vmcnt(0)")
    chain.chain_loop(k, "cs", stamps=False, dbg=('dbg' in opts), flags=True, sc='sc1', X='merged')
    k("s_endpgm")
    k.label("mg_wo")
    if 'nowo' in opts: k("s_endpgm")
    k("s_and_b32 s3, s6, 15\ns_lshr_b32 s6, s6, 4\ns_sub_u32 s5, s5, 1\ns_lshl_b32 s5, s5, 1\ns_add_u32 s16, s5, s6")
    dbg_srd(k)
    k(f"s_and_b32 s5, s2, 7\ns_cmp_lg_u32 s5, 1" if 'spread' not in opts else "s_lshr_b32 s5, s2, 5\ns_cmp_lg_u32 s5, 1")
    k("s_cbranch_scc1 mg_wo_noln")
    k(f"s_load_dwordx2 s[36:37], s[0:1], {A_X}\ns_load_dwordx2 s[38:39], s[0:1], {D_WS}\nv_mov_b32 v100, v0\nv_lshrrev_b32 v1, 6, v0\nv_and_b32 v0, 63, v0\nv_readfirstlane_b32 s20, v1")
    k(("s_lshr_b32 s5, s2, 3" if 'spread' not in opts else "s_and_b32 s5, s2, 31") + "\ns_lshl_b32 s5, s5, 2\ns_add_u32 s20, s20, s5\ns_waitcnt lgkmcnt(0)")
    srd(k, 8, 38, WS_BYTES); srd(k, 12, 36, 2048 * 1024)
    ln.ln_role(k, "ln", 20, 8, 12)
    k("s_waitcnt vmcnt(0)")
    dbg_add(k, DBG_LN, 4)
    k("v_mov_b32 v0, v100")
    k.label("mg_wo_noln")
    gemmk.gk_setup(k, "wo", "wo", merged=True); gemmk.gk_loop(k, "wo", "wo")
    k("s_endpgm")
    k.label("mg_f2")
    if 'noffn' in opts: k("s_endpgm")
    k("s_and_b32 s3, s6, 15\ns_lshr_b32 s16, s6, 4")
    dbg_srd(k)
    gemmk.gk_setup(k, "f2", "f2", merged=True); gemmk.gk_loop(k, "f2", "f2")
    k("s_endpgm")
    k.label("mg_qkv")
    k(f"s_mul_hi_u32 s3, s5, {-(-(1 << 32) // RQ)}\ns_mul_i32 s6, s3, {RQ}\ns_sub_u32 s16, s5, s6")
    dbg_srd(k)
    qkv.qkv_setup(k, "qk", merged=True); qkv.qkv_loop(k, "qk", merged=True)
    k("s_endpgm")
    k.label("mg_f1")
    if 'noffn' in opts: k("s_endpgm")
    k(f"s_lshr_b32 s3, s5, 1\ns_and_b32 s16, s5, 1")
    dbg_srd(k)
    ffn1.f1_setup(k, "f1", merged=True); ffn1.f1_loop(k, "f1")
    k.label("mg_exit")
    k("s_endpgm")
    mega = k.finish()
    hdr = open('recurrent_scan__memory_aug_recurrent_mem_tr__dense_activation_mish__prompt.s.ref').read().split("; Override launch")[0]
    txt = hdr
    txt += f"; @launch grid=(256,1,1) block=(256,1,1) lds=163840\n"
    txt += '.amdgcn_target "amdgcn-amd-amdhsa--gfx950"\n.text\n'
    txt += kernel_text(NAME, mega, 512, 256)
    print("mega instrs", len(k.ins), "nops", k.nops, file=sys.stderr)
    return txt
if __name__ == "__main__":
    open(sys.argv[1], "w").write(build(opts=" ".join(sys.argv[2:])))
```

```python
from asm import *
from layout import *
import common
from common import dbg_srd, dbg_add, dbg_wait, DBG, DBG_FLAGS, DBG_LN, N_FLAG_WGS
import math, struct

def f2u(x): return struct.unpack("<I", struct.pack("<f", x))[0]

L_WO = 0
L_KS = 131072
L_MX = 147456
L_QX = 155648
L_KX = L_QX + 2304
L_OX = L_KX + 2304
RSX = 288
S_H, S_W = 3, 4
WS = 8
WSRD = 12
S_STEP = 20
S_MEMC, S_MEMN, S_MEMP = 21, 22, 23
S_INBC, S_INBC1, S_INBP = 24, 25, 26
S_KFN, S_VFN, S_KM, S_VM = 27, 28, 29, 30
S_KSM0 = 31
S_SPIN = 33
S_C = 32
S_T0, S_T1, S_T2 = 34, 35, 36
S_ERR = 37
S_KSLOT = 38
S_FLG = 39
S_JUNK = 19
V_IDX, V_L16, V_FLV, V_MEMP, V_MEMW = 1, 2, 3, 4, 5
V_MR = 6
V_PART, V_INB, V_PUB = 9, 10, 11
V_SEL = 12
V_QW, V_QR, V_KR, V_OW, V_WO, V_KMO, V_VMO = 16, 17, 18, 19, 20, 21, 22
V_TMP = 23
V_WARM = 0
AQ, AK, AV = 24, 32, 40
MA = [48, 52, 56, 60, 64, 68, 72, 76]
KSEG = 80
QB = [48, 52, 112, 116]
KA = [80, 84, 88, 92]
VSEG = 120
WSLOT = [96, 104, 80, 88, 112, 56, 64, 72, 120]
WS10 = 40
WACC = [28, 36, 40, 44]
OA = [24, 32, 48, 52]
OUT = [120, 124]
WV0 = 128

def wfrag(mat, t, u):
    f = t * 8 + u
    if mat == 0: return a(8 * f, 8)
    if mat == 1: return a(128 + 8 * f, 8)
    return v(WV0 + 8 * f, 8)
def wfrag_pair(mat, t, u, rp):
    f = t * 8 + u
    if mat == 0: return a(8 * f + 2 * rp, 2)
    if mat == 1: return a(128 + 8 * f + 2 * rp, 2)
    return v(WV0 + 8 * f + 2 * rp, 2)

def srd(k, r, ptr, nbytes):
    k(f"s_mov_b32 s{r}, s{ptr}")
    k(f"s_and_b32 s{r+1}, s{ptr+1}, 0xffff")
    k(f"s_mov_b32 s{r+2}, {nbytes}")
    k(f"s_mov_b32 s{r+3}, 0x20000")

class Stamps:
    def __init__(self, k, on): self.k = k; self.on = on; self.used = []
    def init(self, n=16):
        if not self.on: return
        for i in range(n): self.k(f"s_mov_b32 s{44+i}, 0")
        self.k("s_memtime s[40:41]\ns_waitcnt lgkmcnt(0)\ns_mov_b32 s42, s40")
    def __call__(self, i):
        if not self.on: return
        self.used.append(i)
        self.k(f"s_memtime s[{64+2*i}:{65+2*i}]")
    def collect(self):
        if not self.on: return
        self.k("s_waitcnt lgkmcnt(0)")
        prev = 42
        for i in self.used:
            self.k(f"s_sub_u32 s43, s{64+2*i}, s{prev}\ns_add_u32 s{44+i}, s{44+i}, s43")
            prev = 64 + 2 * i
        self.k(f"s_mov_b32 s42, s{prev}")

def sm(k, mat, t, u):
    acc = [AQ, AK, AV][mat] + 4 * t
    k(f"v_smfmac_f32_16x16x64_bf16 {v(acc,4)}, {v(MA[u],4)}, {wfrag(mat,t,u)}, v{V_IDX}")

def chain_setup(k, P, merged=False):
    k(f"""
    s_load_dwordx8 s[16:23], s[0:1], {A_WQ}
    s_load_dwordx2 s[24:25], s[0:1], {A_MEM0}
    s_load_dwordx2 s[26:27], s[0:1], {D_WS}
    v_lshrrev_b32 v24, 6, v0
    v_and_b32 v0, 63, v0
    v_readfirstlane_b32 s{S_W}, v24
    v_and_b32 v24, 15, v0          ; n
    v_lshrrev_b32 v25, 4, v0       ; g
    v_lshlrev_b32 v{V_L16}, 4, v0
    v_and_b32 v26, 1, v0
    v_mul_u32_u24 v26, 0xaaaa, v26
    v_add_u32 v{V_IDX}, 0x4444, v26
    s_lshl_b32 s5, s{S_W}, 11
    v_add_u32 v{V_MEMP}, s5, v{V_L16}
    v_add_u32 v{V_MEMW}, {L_MX}, v{V_MEMP}
    v_xor_b32 v{V_MR}, 2048, v{V_MEMW}
    v_xor_b32 v{V_MR+1}, 4096, v{V_MEMW}
    v_xor_b32 v{V_MR+2}, 6144, v{V_MEMW}
    s_lshl_b32 s5, s{S_W}, 4
    v_lshrrev_b32 v26, 1, v24
    v_add_u32 v26, s5, v26
    v_lshlrev_b32 v26, 12, v26
    s_lshl_b32 s5, s{S_H}, 7
    v_add_u32 v26, s5, v26
    v_and_b32 v27, 1, v24
    v_lshlrev_b32 v27, 6, v27
    v_add_u32 v26, v26, v27
    v_lshlrev_b32 v27, 4, v25
    v_add_u32 v{V_PART}, v26, v27
    s_and_b32 s7, s{S_W}, 1
    s_lshl_b32 s6, s{S_H}, 1
    s_add_u32 s6, s6, s7
    s_lshl_b32 s5, s6, 12
    v_add_u32 v{V_INB}, s5, v{V_L16}
    s_lshr_b32 s5, s6, 3
    s_lshl_b32 s5, s5, 10
    s_bfe_u32 s7, s6, 0x20001
    s_lshl_b32 s7, s7, 8
    s_add_u32 s5, s5, s7
    s_and_b32 s7, s6, 1
    s_lshl_b32 s7, s7, 4
    s_add_u32 s5, s5, s7
    v_and_b32 v26, 3, v24
    v_lshlrev_b32 v26, 1, v26
    v_and_b32 v27, 1, v25
    v_add_u32 v28, v26, v27          ; m
    v_lshlrev_b32 v26, 5, v28
    v_bfe_u32 v30, v24, 2, 1         ; nb
    v_lshl_add_u32 v26, v30, 3, v26
    v_add_u32 v{V_PUB}, s5, v26
    v_and_b32 v26, 3, v24
    v_bfe_u32 v27, v24, 2, 1
    v_lshlrev_b32 v27, 4, v27
    v_mov_b32 v29, 0x3f80
    v_lshlrev_b32 v29, v27, v29
    """)
    for r in range(4):
        k(f"v_cmp_eq_u32 vcc, {r}, v26\nv_cndmask_b32 v{V_SEL+r}, 0, v29, vcc")
    k(f"""
    v_mul_u32_u24 v26, {2*RSX}, v25
    v_lshrrev_b32 v27, 2, v24
    v_lshlrev_b32 v27, 4, v27
    v_add_u32 v26, v26, v27
    v_and_b32 v27, 3, v24
    v_lshlrev_b32 v27, 1, v27
    v_add_u32 v26, v26, v27
    s_lshl_b32 s5, s{S_W}, 6
    s_add_u32 s5, s5, {L_QX}
    v_add_u32 v{V_QW}, s5, v26
    v_and_b32 v26, 7, v24
    v_mul_u32_u24 v26, {RSX}, v26
    v_lshlrev_b32 v27, 4, v25
    v_add_u32 v26, v26, v27
    v_add_u32 v{V_QR}, {L_QX}, v26
    ; m'(x) = 2*(x>>2) + (x&1)
    v_lshrrev_b32 v26, 2, v24
    v_lshlrev_b32 v26, 1, v26
    v_and_b32 v29, 1, v24
    v_add_u32 v29, v26, v29
    v_mul_u32_u24 v26, {RSX}, v29
    v_add_u32 v26, v26, v27
    v_add_u32 v{V_KR}, {L_KX}, v26
    v_lshlrev_b32 v26, 8, v29
    v_add_u32 v26, v26, v27
    s_lshl_b32 s5, s{S_W}, 6
    v_add_u32 v{V_KMO}, s5, v26
    v_lshlrev_b32 v26, 3, v0
    s_lshl_b32 s5, s{S_W}, 9
    v_add_u32 v{V_VMO}, s5, v26
    v_and_b32 v26, 7, v24
    v_lshlrev_b32 v26, 4, v26
    v_lshrrev_b32 v27, 1, v25
    v_lshlrev_b32 v27, 7, v27
    v_add_u32 v26, v26, v27
    v_and_b32 v27, 1, v25
    v_lshlrev_b32 v27, 3, v27
    v_add_u32 v26, v26, v27
    s_lshl_b32 s5, s{S_W}, 9
    s_add_u32 s5, s5, {L_OX}
    v_add_u32 v{V_OW}, s5, v26
    s_lshl_b32 s5, s{S_W}, 15
    v_add_u32 v{V_WO}, s5, v{V_L16}
    s_waitcnt lgkmcnt(0)
    """)
    srd(k, WS, 26, WS_BYTES)
    srd(k, WSRD, 24, 8192)
    k(f"""
    s_cmp_ge_u32 s{S_W}, 2
    s_cbranch_scc1 {P}_nopub0
    s_lshr_b32 s5, s6, 3
    s_lshl_b32 s5, s5, 6
    s_and_b32 s7, s6, 7
    s_lshl_b32 s7, s7, 1
    s_add_u32 s5, s5, s7
    s_lshl_b32 s5, s5, 1
    v_lshlrev_b32 v26, 10, v28
    v_lshl_add_u32 v26, v30, 1, v26
    v_add_u32 v26, s5, v26
    buffer_load_ushort v40, v26, s[{WSRD}:{WSRD+3}], 0 offen
    buffer_load_ushort v41, v26, s[{WSRD}:{WSRD+3}], 0 offen offset:32
    buffer_load_ushort v42, v26, s[{WSRD}:{WSRD+3}], 0 offen offset:64
    buffer_load_ushort v43, v26, s[{WSRD}:{WSRD+3}], 0 offen offset:96
    """)
    k.label(f"{P}_nopub0")
    k(f"""
    v_lshrrev_b32 v26, 4, v0
    v_lshlrev_b32 v27, 1, v26
    v_and_b32 v28, 15, v0
    v_xor_b32 v27, v27, v28
    v_lshlrev_b32 v27, 4, v27
    v_lshlrev_b32 v26, 13, v26
    v_add_u32 v26, v26, v27
    s_lshl_b32 s5, s{S_H}, 8
    v_add_u32 v24, s5, v26
    v_xor_b32 v25, 128, v24
    v_bfe_u32 v28, v0, 2, 2        ; r
    v_and_b32 v29, 3, v0           ; c
    v_lshrrev_b32 v30, 4, v0       ; gB
    v_and_b32 v31, 1, v28          ; r&1
    v_lshrrev_b32 v32, 1, v28      ; r>>1
    v_and_b32 v33, 1, v30          ; gB&1
    v_lshrrev_b32 v34, 1, v30      ; gB>>1
    v_lshlrev_b32 v35, 4, v31
    v_lshl_add_u32 v35, v34, 2, v35
    v_lshl_add_u32 v35, v32, 1, v35
    v_add_u32 v35, v35, v33        ; Lrow
    v_lshlrev_b32 v35, 8, v35
    v_lshlrev_b32 v36, 2, v31
    v_lshl_add_u32 v36, v32, 1, v36
    v_add_u32 v36, v36, v33        ; F
    v_lshlrev_b32 v36, 1, v36      ; 2F
    v_lshrrev_b32 v37, 1, v29      ; c>>1
    s_lshl_b32 s5, s{S_W}, 2
    v_add_u32 v37, s5, v37
    v_xor_b32 v37, v37, v36
    v_lshlrev_b32 v37, 4, v37
    v_and_b32 v38, 1, v29
    v_lshl_add_u32 v37, v38, 3, v37
    v_add_u32 v35, v35, v37
    s_lshl_b32 s5, s{S_W}, 15
    v_add_u32 v26, s5, v35
    v_xor_b32 v27, 32, v26
    """)
    for mat in range(3):
        srd(k, WSRD, 16 + 2 * mat, 512 * 4096 * 2)
        k(f"s_lshl_b32 s5, s{S_W}, 20\ns_lshl_b32 s6, s{S_W}, 15")
        for y in range(32):
            k(f"s_mov_b32 m0, s6")
            k(f"buffer_load_dwordx4 v{24 + ((y >> 2) & 1)}, s[{WSRD}:{WSRD+3}], s5 offen lds")
            if y < 31: k(f"s_add_u32 s5, s5, 32768\ns_add_u32 s6, s6, 1024")
        if mat == 0 and merged:
            for r in range(4): k(f"v_mov_b32 v{44+r}, -1")
            k(f"s_lshl_b32 s7, s{S_H}, 13\ns_add_u32 s7, s7, {INBOX}")
            for slot in range(3):
                k(f"buffer_store_dwordx4 v[44:47], v{V_MEMP}, s[{WS}:{WS+3}], s7 offen sc1")
                k(f"buffer_store_dwordx4 v[44:47], v{V_MEMP}, s[{WS}:{WS+3}], s7 offen offset:1024 sc1")
                if slot < 2: k("s_add_u32 s7, s7, 0x40000")
            for slot in range(1, 4):
                k(f"s_mov_b32 s7, {MEMR + slot*8192}\nbuffer_store_dwordx2 v[44:45], v{V_PUB}, s[{WS}:{WS+3}], s7 offen sc1")
            k(f"s_lshl_b32 s7, s{S_H}, 4\ns_add_u32 s7, s7, {FLAGS + F_KVM}\nv_mov_b32 v48, 0")
            k(f"buffer_store_dword v48, off, s[{WS}:{WS+3}], s7 sc1")
        k("s_waitcnt vmcnt(0)")
        if mat == 0:
            k(f"s_cmp_ge_u32 s{S_W}, 2\ns_cbranch_scc1 {P}_nopub1")
            k(f"v_lshl_or_b32 v40, v41, 16, v40\nv_lshl_or_b32 v41, v43, 16, v42\ns_mov_b32 s7, {MEMR}")
            k(f"buffer_store_dwordx2 v[40:41], v{V_PUB}, s[{WS}:{WS+3}], s7 offen sc1")
            k.label(f"{P}_nopub1")
        k("s_barrier")
        if mat == 0 and merged: dbg_add(k, DBG_FLAGS, 46, S_W)
        if mat == 1 and merged:
            La = f"{P}_ann"
            k(f"s_cmp_lg_u32 s{S_W}, 0\ns_cbranch_scc1 {La}")
            k("s_getreg_b32 s70, hwreg(HW_REG_XCC_ID, 0, 4)\ns_mul_i32 s70, s70, 6\ns_lshl_b64 s[70:71], 1, s70\ns_add_u32 s71, s71, 0x10000")
            k("v_mov_b32 v44, s70\nv_mov_b32 v45, s71\ns_mov_b64 exec, 1")
            k(f"buffer_atomic_add_x2 v[44:45], off, s[{DBG}:{DBG+3}], 0 sc1")
            k("s_mov_b64 exec, -1")
            k.label(La)
        for t in range(2):
            for u in range(8):
                k(f"v_xor_b32 v28, {u*16384}, v{26+t}")
                for rp in range(4):
                    off = 8192 * (rp & 1) + 2048 * (rp >> 1)
                    k(f"ds_read_b64_tr_b16 {wfrag_pair(mat,t,u,rp)}, v28 offset:{off}")
                if u % 2 == 1: k("s_waitcnt lgkmcnt(0)")
        k("s_waitcnt lgkmcnt(0)\ns_barrier")
    srd(k, WSRD, 22, 4096 * 512 * 2)
    k(f"""
    v_lshrrev_b32 v26, 4, v0
    v_and_b32 v27, 1, v26
    v_lshlrev_b32 v27, 2, v27        ; 4*(row&1)
    v_and_b32 v28, 15, v0
    v_xor_b32 v27, v27, v28
    v_lshlrev_b32 v27, 4, v27
    v_lshlrev_b32 v26, 10, v26
    v_add_u32 v26, v26, v27
    s_lshl_b32 s5, s{S_W}, 8
    v_add_u32 v24, s5, v26
    v_xor_b32 v25, 128, v24
    s_lshl_b32 s5, s{S_H}, 17
    s_lshl_b32 s6, s{S_W}, 15
    """)
    for y in range(32):
        k("s_mov_b32 m0, s6")
        k(f"buffer_load_dwordx4 v{24 + (y & 1)}, s[{WSRD}:{WSRD+3}], s5 offen lds")
        if y < 31: k("s_add_u32 s5, s5, 4096\ns_add_u32 s6, s6, 1024")
    k(f"""
    v_lshlrev_b32 v35, 3, v34
    v_lshl_add_u32 v35, v33, 2, v35
    v_add_u32 v35, v35, v31
    v_lshlrev_b32 v35, 8, v35
    v_lshlrev_b32 v36, 2, v31
    v_lshl_add_u32 v36, v33, 3, v36
    v_lshrrev_b32 v37, 1, v29
    v_lshl_add_u32 v37, v32, 1, v37
    v_xor_b32 v37, v37, v36
    v_lshlrev_b32 v37, 4, v37
    v_lshl_add_u32 v37, v38, 3, v37
    v_add_u32 v35, v35, v37
    s_lshl_b32 s5, s{S_W}, 15
    v_add_u32 v28, s5, v35
    """)
    if merged:
        k(f"buffer_load_dwordx2 v[112:113], off, s[{DBG}:{DBG+3}], 0 sc1")
        k(f"buffer_load_dword v114, off, s[{DBG}:{DBG+3}], 0 offset:{DBG_FLAGS} sc1")
    k("s_waitcnt vmcnt(0)")
    TMP = 48
    for half in range(2):
        for tau in range(4):
            k(f"v_xor_b32 v29, {64*tau}, v28")
            for e2 in range(2):
                eb = 2 * half + e2
                for rp in range(4):
                    off = (32 * eb + 16 * (rp >> 1) + 2 * (rp & 1)) * 256
                    k(f"ds_read_b64_tr_b16 {v(TMP+16*tau+8*e2+2*rp,2)}, v29 offset:{off}")
            k("s_waitcnt lgkmcnt(0)")
        for tau in range(4):
            for e2 in range(2):
                for hf in range(2):
                    k(f"ds_write_b128 v{V_WO}, {v(TMP+16*tau+8*e2+4*hf,4)} offset:{half*16384+tau*4096+e2*2048+hf*1024}")
        k("s_waitcnt lgkmcnt(0)")
    k("s_barrier")
    k(f"""
    v_and_b32 v24, 0x3e0, v{V_L16}
    v_lshrrev_b32 v24, 1, v24
    v_add_u32 v{V_WARM}, {L_OX}, v24
    """)

def step_offsets(k):
    k(f"""
    s_and_b32 s5, s{S_STEP}, 3
    s_lshl_b32 s5, s5, 13
    s_add_u32 s{S_MEMC}, s5, {MEMR}
    s_add_u32 s5, s{S_STEP}, 1
    s_and_b32 s5, s5, 3
    s_lshl_b32 s5, s5, 13
    s_add_u32 s{S_MEMN}, s5, {MEMR}
    s_add_u32 s5, s{S_STEP}, 3
    s_and_b32 s5, s5, 3
    s_lshl_b32 s5, s5, 13
    s_add_u32 s{S_MEMP}, s5, {MEMR}
    s_and_b32 s5, s{S_STEP}, 1
    s_lshl_b32 s6, s5, 18
    s_add_u32 s{S_INBC}, s6, {INBOX}
    s_add_u32 s{S_INBC1}, s{S_INBC}, 32768
    s_xor_b32 s6, s6, 0x40000
    s_add_u32 s{S_INBP}, s6, {INBOX}
    s_lshl_b32 s6, s5, 13
    s_add_u32 s{S_KSLOT}, s6, {L_KS}
    s_xor_b32 s6, s6, 8192
    s_lshl_b32 s7, s{S_W}, 11
    s_add_u32 s6, s6, s7
    s_add_u32 s{S_KSM0}, s6, {L_KS}
    s_lshl_b32 s5, s{S_H}, 6
    s_add_u32 s5, s5, s{S_STEP}
    s_add_u32 s5, s5, 1
    s_lshl_b32 s5, s5, 13
    s_add_u32 s{S_KFN}, s5, {KF}
    s_add_u32 s{S_VFN}, s5, {VF}
    s_lshl_b32 s5, s{S_STEP}, 5
    s_add_u32 s5, s5, s{S_H}
    s_lshl_b32 s5, s5, 11
    s_add_u32 s{S_KM}, s5, {KM}
    s_add_u32 s{S_VM}, s5, {VM}
    """)

def poll(k, P, name, r0, voff, soff, tmp, tmp2, cnt=None):
    L = f"{P}_{name}"
    k(f"s_mov_b32 s{S_SPIN}, 0")
    k.label(L)
    k(f"buffer_load_dwordx4 {v(r0,4)}, v{voff}, s[{WS}:{WS+3}], s{soff} offen sc1")
    k(f"buffer_load_dwordx4 {v(r0+4,4)}, v{voff}, s[{WS}:{WS+3}], s{soff} offen offset:1024 sc1")
    k(f"s_add_u32 s{S_SPIN}, s{S_SPIN}, 1")
    if cnt is not None: k(f"s_add_u32 s{cnt}, s{cnt}, 1")
    k(f"s_cmp_gt_u32 s{S_SPIN}, 20000")
    k(f"s_cbranch_scc1 {L}_fail")
    k("s_waitcnt vmcnt(0)")
    k(f"v_max3_u32 v{tmp}, v{r0}, v{r0+1}, v{r0+2}")
    k(f"v_max3_u32 v{tmp2}, v{r0+3}, v{r0+4}, v{r0+5}")
    k(f"v_max3_u32 v{tmp}, v{tmp}, v{r0+6}, v{r0+7}")
    k(f"v_max_u32 v{tmp}, v{tmp}, v{tmp2}")
    k(f"v_cmp_eq_u32 vcc, -1, v{tmp}")
    k(f"s_cbranch_vccnz {L}")
    k(f"s_branch {L}_ok")
    k.label(f"{L}_fail")
    k(f"s_add_u32 s{S_ERR}, s{S_ERR}, 1")
    k("s_waitcnt vmcnt(0)")
    k.label(f"{L}_ok")

def ilv(k, main, fill, start=0, per=1):
    fill = list(fill)
    for i, m in enumerate(main):
        k(m)
        if i >= start:
            for _ in range(per):
                if fill: k(fill.pop(0))
    for f in fill: k(f)

def smt(mat, t, u):
    acc = [AQ, AK, AV][mat] + 4 * t
    return f"v_smfmac_f32_16x16x64_bf16 {v(acc,4)}, {v(MA[u],4)}, {wfrag(mat,t,u)}, v{V_IDX}"

def chain_loop(k, P, stamps=False, dbg=True, D1=0, D2=0, X='', flags=False, sc=''):
    ST = Stamps(k, stamps)
    FT = 'ft' in X
    def ft(i):
        if FT: k(f"s_memrealtime s[{64+2*i}:{65+2*i}]")
    def ft_flush():
        if not FT: return
        L = k.newlabel(f"{P}_ft")
        k(f"s_waitcnt lgkmcnt(0)\ns_sub_u32 s5, s{S_STEP}, 21\ns_cmp_gt_u32 s5, 7\ns_cbranch_scc1 {L}")
        k(f"s_lshl_b32 s5, s5, 4\ns_lshl_b32 s6, s{S_W}, 7\ns_add_u32 s5, s5, s6\ns_add_u32 s5, s5, {L_OX + 2048}\nv_mov_b32 v112, s5")
        for i in range(4): k(f"v_mov_b32 v113, s{64+2*i}\nds_write_b32 v112, v113 offset:{4*i}")
        k("s_waitcnt lgkmcnt(0)")
        k.label(L)
    WSs = f"s[{WS}:{WS+3}]"
    c = (128 ** -0.5) * math.log2(math.e)
    S_ONES = 41 if not stamps else 62
    S_RST = 18
    S_FR, S_FC = 16, 17
    S_FNEED, S_FOFF, S_FNEED2, S_FOFF2 = 39, 38, 26, 31
    S_INBPv = 28
    S_KVMF = 60 if stamps else 42
    INB_SLOT = 0x40000
    k(f"s_mov_b32 s{S_C}, {f2u(c):#x}")
    k(f"s_mov_b32 s{S_ONES}, 0x3f803f80")
    k(f"s_mov_b32 s{S_ERR}, 0")
    k(f"s_lshl_b32 s5, s{S_W}, 8\ns_add_u32 s{S_JUNK}, s5, {L_OX + 2048}")
    SENT = 116
    def flag_spin(tag):
        L = k.newlabel(f"{P}_{tag}")
        k(f"v_readfirstlane_b32 s5, v{V_FLV}")
        k(f"s_cmp_ge_u32 s5, s{S_FNEED}\ns_cbranch_scc1 {L}_ok")
        k(f"s_mov_b32 s{S_SPIN}, 0")
        k.label(L)
        k(f"v_mov_b32 v{V_FLV}, 0")
        k(f"buffer_load_dword v{V_FLV}, v{V_FLV}, {WSs}, s{S_FOFF} offen sc1")
        k(f"s_add_u32 s{S_SPIN}, s{S_SPIN}, 1\ns_cmp_gt_u32 s{S_SPIN}, 0x8000\ns_cbranch_scc1 {L}_fail")
        k(f"s_waitcnt vmcnt(0)\nv_readfirstlane_b32 s5, v{V_FLV}")
        k(f"s_cmp_ge_u32 s5, s{S_FNEED}\ns_cbranch_scc0 {L}\ns_branch {L}_ok")
        k.label(f"{L}_fail")
        k(f"s_add_u32 s{S_ERR}, s{S_ERR}, 1\ns_waitcnt vmcnt(0)")
        k.label(f"{L}_ok")
    def flag_next(seg_plus):
        k(f"s_lshl_b32 s5, s{S_H}, 4\ns_lshl_b32 s{S_FOFF2}, s{S_FR}, 2\ns_add_u32 s{S_FOFF2}, s{S_FOFF2}, s5")
        k(f"s_add_u32 s{S_FOFF2}, s{S_FOFF2}, {FLAGS + F_KV}")
        k(f"s_add_u32 s5, s{S_STEP}, {seg_plus}\ns_cmp_ge_u32 s5, {NSEG}\ns_cselect_b32 s{S_FNEED2}, 0, s{S_FC}")
        k(f"s_add_u32 s{S_FR}, s{S_FR}, 1\ns_cmp_eq_u32 s{S_FR}, {RQ}\ns_cselect_b32 s{S_FR}, 0, s{S_FR}\ns_addc_u32 s{S_FC}, s{S_FC}, 0")
    S_KSM0v = 29 + 0
    def k_dma01():
        return [f"buffer_load_dwordx4 v{V_MEMP}, {WSs}, s{S_KFN} offen lds",
                f"buffer_load_dwordx4 v{V_MEMP}, {WSs}, s{S_KFN} offen offset:1024 lds"]
    S_KM0 = 28
    S_KRD = 61 if not stamps else 63
    k(f"""
    s_mov_b32 s{S_STEP}, 0
    s_mov_b32 s{S_MEMC}, {MEMR}
    s_mov_b32 s{S_MEMN}, {MEMR + 8192}
    s_mov_b32 s{S_MEMP}, {MEMR + 3*8192}
    s_mov_b32 s{S_INBC}, {INBOX}
    s_mov_b32 s{S_INBC1}, {INBOX + 32768}
    s_lshl_b32 s5, s{S_H}, 13
    s_add_u32 s{S_RST}, s5, {INBOX + 2*INB_SLOT}
    s_lshl_b32 s5, s{S_H}, 11
    s_add_u32 s{S_KM}, s5, {KM}
    s_add_u32 s{S_VM}, s5, {VM}
    s_lshl_b32 s5, s{S_H}, 19
    s_add_u32 s{S_KFN}, s5, {KF}
    s_lshl_b32 s5, s{S_H}, 4
    s_add_u32 s{S_KVMF}, s5, {FLAGS + F_KVM}
    s_lshl_b32 s5, s{S_W}, 11
    s_add_u32 s{S_KM0}, s5, {L_KS}
    s_mov_b32 s{S_KRD}, {L_KS}
    """)
    if flags and 'merged' in X:
        k(f"v_lshlrev_b32 v56, 3, v{V_L16}\ns_lshl_b32 s5, s{S_H}, 13\ns_add_u32 s5, s5, {INBOX}\ns_cmp_eq_u32 s{S_W}, 3\ns_cbranch_scc1 {P}_pfm")
        k(f"s_lshl_b32 s6, s{S_W}, 18\ns_add_u32 s5, s5, s6\nbuffer_load_dword v57, v56, {WSs}, s5 offen sc1\ns_branch {P}_pfd")
        k.label(f"{P}_pfm")
        k(f"s_mov_b32 s5, {MEMR}")
        for i in range(4):
            k(f"buffer_load_dword v{57+i}, v56, {WSs}, s5 offen sc1")
            if i < 3: k("s_add_u32 s5, s5, 8192")
        k.label(f"{P}_pfd")
        Lf = f"{P}_fr"
        k("s_mov_b32 s72, 0")
        k.label(Lf)
        k(f"v_readfirstlane_b32 s5, v114\ns_cmp_ge_u32 s5, {N_FLAG_WGS}\ns_cbranch_scc1 {Lf}_ok")
        k(f"s_add_u32 s72, s72, 1\ns_cmp_gt_u32 s72, 0x20000\ns_cbranch_scc1 {Lf}_ok")
        k(f"s_sleep 4\nbuffer_load_dword v114, off, s[{DBG}:{DBG+3}], 0 offset:{DBG_FLAGS} sc1\ns_waitcnt vmcnt(0)\ns_branch {Lf}")
        k.label(f"{Lf}_ok")
    if flags:
        k(f"s_lshl_b32 s5, s{S_H}, 4\ns_add_u32 s{S_FOFF}, s5, {FLAGS + F_KV}\ns_mov_b32 s{S_FNEED}, 1\nv_mov_b32 v{V_FLV}, 0")
        flag_spin("f0")
    k(f"s_mov_b32 m0, s{S_KM0}")
    for x in k_dma01(): k(x)
    if flags:
        k(f"s_add_u32 s{S_FOFF}, s{S_FOFF}, 4\nv_mov_b32 v{V_FLV}, 0")
        k(f"buffer_load_dword v{V_FLV}, v{V_FLV}, {WSs}, s{S_FOFF} offen sc1")
        k(f"s_mov_b32 s{S_FR}, {2 % RQ}\ns_mov_b32 s{S_FC}, {2 // RQ + 1}")
        flag_next(2)
    k(f"s_add_u32 s{S_T0}, s{S_KFN}, {VF - KF}")
    k(f"s_add_u32 s{S_KFN}, s{S_KFN}, 8192\ns_xor_b32 s{S_KM0}, s{S_KM0}, 8192")
    for r in range(AQ, AQ + 24): k(f"v_mov_b32 v{r}, 0")
    for r in range(4): k(f"v_mov_b32 v{SENT+r}, -1")
    k("s_waitcnt vmcnt(0)")
    ST.init()
    cold = []
    MB = VSEG
    def mem_poll_issue(r=MA[0]):
        k(f"buffer_load_dwordx4 {v(r,4)}, v{V_MEMP}, {WSs}, s{S_MEMC} offen sc1")
        k(f"buffer_load_dwordx4 {v(r+4,4)}, v{V_MEMP}, {WSs}, s{S_MEMC} offen offset:1024 sc1")
    def mem_check(r):
        k(f"v_max3_u32 v{V_TMP}, v{r}, v{r+1}, v{r+2}")
        k(f"v_max3_u32 v{MA[2]}, v{r+3}, v{r+4}, v{r+5}")
        k(f"v_max3_u32 v{V_TMP}, v{V_TMP}, v{r+6}, v{r+7}")
        k(f"v_max_u32 v{V_TMP}, v{V_TMP}, v{MA[2]}")
        k(f"v_cmp_eq_u32 vcc, -1, v{V_TMP}")
    def k_frag_reads():
        k(f"v_add_u32 v{V_TMP}, s{S_KRD}, v{V_L16}")
        for T in range(2):
            for ks in range(4): k(f"ds_read_b128 {v(KSEG+16*T+4*ks,4)}, v{V_TMP} offset:{(4*T+ks)*1024}")
    k("s_barrier")
    k(f"s_mov_b32 s{S_SPIN}, 0")
    mem_poll_issue()
    k_frag_reads()
    mem_poll_issue(MB)
    k.label(f"{P}_step")
    k("s_waitcnt vmcnt(2)")
    ST(0)
    ft(0)
    if common.TRACE_ON: k("s_memrealtime s[96:97]")
    mem_check(MA[0])
    own = [smt(mat, t, u) for u in (0, 1) for mat in range(3) for t in range(2)]
    k(f"s_cbranch_vccnz {P}_pm_retry")
    def cold_pm():
        k.label(f"{P}_pm_retry")
        mem_poll_issue()
        if stamps: k("s_add_u32 s58, s58, 1")
        k("s_waitcnt vmcnt(2)")
        mem_check(MB)
        k(f"s_cbranch_vccz {P}_pm_b")
        mem_poll_issue(MB)
        k(f"s_add_u32 s{S_SPIN}, s{S_SPIN}, 1")
        k(f"s_cmp_gt_u32 s{S_SPIN}, 100000\ns_cbranch_scc0 {P}_step")
        k(f"s_add_u32 s{S_ERR}, s{S_ERR}, 1\ns_waitcnt vmcnt(0)\ns_branch {P}_pm_ok")
        k.label(f"{P}_pm_b")
        for r in range(8): k(f"v_mov_b32 v{MA[0]+r}, v{MB+r}")
        k(f"s_branch {P}_pm_ok")
    cold.append(cold_pm)
    k.label(f"{P}_pm_ok")
    k(f"ds_write_b128 v{V_MEMW}, {v(MA[0],4)}")
    k(own[0])
    k(f"ds_write_b128 v{V_MEMW}, {v(MA[1],4)} offset:1024")
    if dbg:
        k(f"s_lshl_b32 s5, s{S_STEP}, 13\ns_add_u32 s5, s5, {MEMDBG}")
        k(f"buffer_store_dwordx4 {v(MA[0],4)}, v{V_MEMP}, {WSs}, s5 offen")
        k(f"buffer_store_dwordx4 {v(MA[1],4)}, v{V_MEMP}, {WSs}, s5 offen offset:1024")
    k(f"buffer_load_dwordx4 {v(VSEG,4)}, v{V_MEMP}, {WSs}, s{S_T0} offen")
    k(own[1])
    if flags: k(f"v_readfirstlane_b32 s5, v{V_FLV}")
    k(own[2])
    k(f"buffer_load_dwordx4 {v(VSEG+4,4)}, v{V_MEMP}, {WSs}, s{S_T0} offen offset:1024")
    if flags: k(f"s_cmp_ge_u32 s5, s{S_FNEED}")
    k(own[3])
    if flags:
        k(f"s_cbranch_scc0 {P}_fs_slow")
        def cold_fs():
            k.label(f"{P}_fs_slow")
            flag_spin("fs")
            k(f"s_branch {P}_fs_ok")
        cold.append(cold_fs)
        k.label(f"{P}_fs_ok")
    k(own[4]); k(own[5])
    k("s_waitcnt lgkmcnt(0)\ns_barrier")
    ST(1)
    rd = [f"ds_read_b128 {v(MA[uu],4)}, v{V_MR + uu//2 - 1} offset:{1024*(uu&1)}" for uu in range(2, 8)]
    k(rd[0])
    ilv(k, own[6:], rd[1:])
    ST(2)
    if flags: k(f"v_mov_b32 v{V_TMP}, s{S_STEP}")
    for u in range(2, 8):
        k(f"s_waitcnt lgkmcnt({7 - u})")
        for t in range(2):
            k(smt(0, t, u))
        if u == 2 and flags:
            k(f"buffer_store_dword v{V_TMP}, off, {WSs}, s{S_KVMF} sc1")
        if u == 3: k(f"buffer_store_dwordx4 {v(SENT,4)}, v{V_MEMP}, {WSs}, s{S_RST} offen {sc}")
        if u == 5: k(f"buffer_store_dwordx4 {v(SENT,4)}, v{V_MEMP}, {WSs}, s{S_RST} offen offset:1024 {sc}")
    qe = [f"v_add_f32 v{AQ}, v{AQ}, v{AQ+1}", f"v_add_f32 v{AQ+2}, v{AQ+2}, v{AQ+3}",
          f"v_add_f32 v{AQ+4}, v{AQ+4}, v{AQ+5}", f"v_add_f32 v{AQ+6}, v{AQ+6}, v{AQ+7}",
          f"v_cvt_pk_bf16_f32 v{AQ}, v{AQ}, v{AQ+2}", f"v_cvt_pk_bf16_f32 v{AQ+4}, v{AQ+4}, v{AQ+6}",
          f"ds_write_b16 v{V_QW}, v{AQ}", f"ds_write_b16_d16_hi v{V_QW}, v{AQ} offset:{RSX}",
          f"ds_write_b16 v{V_QW}, v{AQ+4} offset:8", f"ds_write_b16_d16_hi v{V_QW}, v{AQ+4} offset:{RSX+8}"]
    km = [smt(1, t, u) for u in range(2, 8) for t in range(2)]
    for i, m in enumerate(km):
        k(m)
        if 1 <= i <= 5:
            for _ in range(2):
                if qe: k(qe.pop(0))
        if i == 6:
            k(f"s_mov_b32 m0, s{S_KM0}"); k(k_dma01()[0])
        if i == 7: k(k_dma01()[1])
        if i == 8 and flags:
            k(f"buffer_load_dword v{V_FLV}, off, {WSs}, s{S_FOFF2} sc1")
        if i == 9:
            k(f"s_waitcnt vmcnt({8 if flags else 6}) lgkmcnt(0)\ns_barrier")
            for ks in range(2): k(f"ds_read_b128 {v(QB[ks],4)}, v{V_QR} offset:{64*ks}")
        if i == 10:
            for ks in range(2, 4): k(f"ds_read_b128 {v(QB[ks],4)}, v{V_QR} offset:{64*ks}")
    ST(3)
    vm = [smt(2, t, u) for u in range(2, 8) for t in range(2)]
    ke = [f"v_add_f32 v{AK}, v{AK}, v{AK+1}", f"v_add_f32 v{AK+2}, v{AK+2}, v{AK+3}",
          f"v_add_f32 v{AK+4}, v{AK+4}, v{AK+5}", f"v_add_f32 v{AK+6}, v{AK+6}, v{AK+7}",
          f"v_cvt_pk_bf16_f32 v{AK}, v{AK}, v{AK+2}", f"v_cvt_pk_bf16_f32 v{AK+4}, v{AK+4}, v{AK+6}"]
    D = L_KX - L_QX
    kw = [f"ds_write_b16 v{V_QW}, v{AK} offset:{D}", f"ds_write_b16_d16_hi v{V_QW}, v{AK} offset:{D+RSX}",
          f"ds_write_b16 v{V_QW}, v{AK+4} offset:{D+8}", f"ds_write_b16_d16_hi v{V_QW}, v{AK+4} offset:{D+RSX+8}"]
    k(vm[0]); k(vm[1])
    k(ke[0]); k(ke[1]); k(vm[2]); k(ke[2]); k(ke[3]); k(vm[3]); k(ke[4]); k(ke[5])
    k(kw[0]); k(kw[1]); k(vm[4]); k(kw[2]); k(kw[3])
    k("s_waitcnt lgkmcnt(4)")
    sg = []
    for ks in range(4):
        for T in range(2):
            acc = AQ + 4 * T
            sg.append(f"v_mfma_f32_16x16x32_bf16 {v(acc,4)}, {v(KSEG+16*T+4*ks,4)}, {v(QB[ks],4)}, {'0' if ks == 0 else v(acc,4)}")
    t2i = [f"v_mov_b32 v{AK}, 0", f"v_mov_b32 v{AK+1}, 0", f"v_mov_b32 v{AK+2}, 0xf149f2ca", f"v_mov_b32 v{AK+3}, 0xf149f2ca",
           f"s_lshl_b32 s5, s{S_W}, 6", f"v_add_u32 v{V_TMP}, s5, v{V_KR}"]
    for i in range(4): k(sg[i])
    k("s_waitcnt lgkmcnt(0)\ns_barrier")
    ST(4)
    for ks in range(4): k(f"ds_read_b128 {v(KA[ks] + 0,4)}, v{V_KR} offset:{64*ks}") if False else None
    ilv(k, sg[4:], t2i, per=2)
    for ks in range(4): k(f"ds_read_b128 {v(KA[ks],4)}, v{V_KR} offset:{64*ks}")
    k(f"ds_read_b128 {v(AK+4,4)}, v{V_TMP}")
    def wo_off(f):
        u, eb, tau = f >> 3, (f & 7) >> 1, 2 * (f >> 3) + (f & 1)
        return (eb >> 1) * 16384 + tau * 4096 + (eb & 1) * 2048
    def wslot(f): return WS10 if f == 0 else WSLOT[(f - 1) % 9]
    def wo_read(f):
        slot = wslot(f)
        return [f"ds_read_b128 {v(slot+4*half,4)}, v{V_WO} offset:{wo_off(f)+half*1024}" for half in range(2)]
    w01 = wo_read(1) + wo_read(2)
    S = [AQ + i for i in range(8)] + [AK, AK + 1]
    M, M2 = AK + 4, AK + 5
    X1, X2 = V_TMP, MA[0] + 0
    for i, m in enumerate(vm[5:]):
        k(m)
        if i >= 3: k(w01[i - 3])
    k("s_waitcnt lgkmcnt(5)")
    ve = [f"v_add_f32 v{AV}, v{AV}, v{AV+1}", f"v_add_f32 v{AV+2}, v{AV+2}, v{AV+3}",
          f"v_add_f32 v{AV+4}, v{AV+4}, v{AV+5}", f"v_add_f32 v{AV+6}, v{AV+6}, v{AV+7}",
          f"v_cvt_pk_bf16_f32 v{AV}, v{AV}, v{AV+2}", f"v_cvt_pk_bf16_f32 v{AV+1}, v{AV+4}, v{AV+6}"]
    ms = [f"v_mfma_f32_16x16x32_bf16 {v(AK,4)}, {v(KA[ks],4)}, {v(QB[ks],4)}, {v(AK,4)}" for ks in range(4)]
    X1, X2 = V_TMP, AV + 6
    k(ms[0]); k(f"v_max3_f32 v{X1}, v{S[0]}, v{S[1]}, v{S[2]}"); k(f"v_max3_f32 v{X1}, v{X1}, v{S[3]}, v{S[4]}")
    k(ms[1]); k(f"v_max3_f32 v{X1}, v{X1}, v{S[5]}, v{S[6]}"); k(f"v_max_f32 v{X1}, v{X1}, v{S[7]}")
    k(ms[2]); k(ve[0]); k(ve[1])
    k(ms[3]); k(ve[2]); k(ve[3]); k(ve[4]); k(ve[5])
    k("s_waitcnt lgkmcnt(4)")
    kms = "" if 'plainkm' in X else "sc1"
    if 'nokm' not in X:
        k(f"buffer_store_dwordx4 {v(AK+4,4)}, v{V_KMO}, {WSs}, s{S_KM} offen {kms}")
        k(f"buffer_store_dwordx2 {v(AV,2)}, v{V_VMO}, {WSs}, s{S_VM} offen {kms}")
    else:
        k(f"buffer_store_dwordx4 {v(AK+4,4)}, v{V_KMO}, {WSs}, s{S_RST} offen offset:2048") if False else k("s_nop 0")
    ST(5)
    rest = [x for f in (3, 4, 5, 6, 7, 8) for x in wo_read(f)]
    k(f"v_mov_b32 v{AV+2}, v{AV+1}\nv_mov_b32 v{AV+3}, 0")
    k(f"v_max3_f32 v{M}, v{X1}, v{S[8]}, v{S[9]}")
    k(f"v_mov_b32 v{M2}, v{M}")
    k(f"v_mov_b32 v{QB[0]}, s{S_ONES}\nv_mov_b32 v{QB[0]+1}, s{S_ONES}")
    k(f"v_permlane32_swap_b32 v{M}, v{M2}")
    k(f"v_max_f32 v{M}, v{M}, v{M2}")
    k(f"v_mov_b32 v{M2}, v{M}")
    k(f"v_mov_b32 v{QB[0]+2}, s{S_ONES}\nv_mov_b32 v{QB[0]+3}, s{S_ONES}")
    k(f"v_permlane16_swap_b32 v{M}, v{M2}")
    k(f"v_max_f32 v{M}, v{M}, v{M2}")
    k(f"v_mul_f32 v{M}, {f2u(-c):#x}, v{M}")
    k(f"s_cmp_eq_u32 s{S_STEP}, {NSEG-1}")
    for r in S[::2]:
        k(f"v_pk_fma_f32 {v(r,2)}, {v(r,2)}, s[{S_C}:{S_C+1}], {v(M,2)} op_sel_hi:[1,0,0]")
    for i, r in enumerate(S):
        k(f"v_exp_f32 v{r}, v{r}")
        if i % 2 == 1 and rest: k(rest.pop(0))
    for i in range(4): k(f"v_cvt_pk_bf16_f32 v{AQ+i}, v{AQ+2*i}, v{AQ+2*i+1}")
    k(f"v_cvt_pk_bf16_f32 v{AK}, v{AK}, v{AK+1}\nv_mov_b32 v{AK+1}, 0")
    ST(6)
    O0, O1 = AQ + 4, AV + 4
    Lr, L2 = AK + 2, AK + 3
    k(f"s_waitcnt vmcnt({(8 if flags else 6) - (2 if 'nokm' in X else 0)})")
    ONES = QB[0]
    LA = AK + 4
    k(f"v_mfma_f32_16x16x32_bf16 {v(LA,4)}, {v(ONES,4)}, {v(AQ,4)}, 0")
    k(f"s_cbranch_scc1 {P}_done")
    rest += wo_read(9)
    k(f"v_mfma_f32_16x16x32_bf16 {v(O0,4)}, {v(VSEG,4)}, {v(AQ,4)}, 0")
    k(rest.pop(0)); k(rest.pop(0))
    k(f"v_mfma_f32_16x16x32_bf16 {v(O1,4)}, {v(VSEG+4,4)}, {v(AQ,4)}, 0")
    W8 = rest[-2:]; rest = rest[:-2]
    k(rest.pop(0)); k(rest.pop(0))
    k(f"v_mfma_f32_16x16x16_bf16 {v(LA,4)}, {v(ONES,2)}, {v(AK,2)}, {v(LA,4)}")
    k(rest.pop(0)); k(rest.pop(0))
    k(f"v_mfma_f32_16x16x16_bf16 {v(O0,4)}, {v(AV,2)}, {v(AK,2)}, {v(O0,4)}")
    for x in rest: k(x)
    k(f"v_mfma_f32_16x16x16_bf16 {v(O1,4)}, {v(AV+2,2)}, {v(AK,2)}, {v(O1,4)}")
    k(f"v_rcp_f32 v{Lr}, v{LA}")
    for x in W8: k(x)
    for r in (0, 2): k(f"v_pk_mul_f32 {v(O0+r,2)}, {v(O0+r,2)}, {v(Lr,2)} op_sel_hi:[1,0]")
    k(f"v_cvt_pk_bf16_f32 v{O0}, v{O0}, v{O0+1}\nv_cvt_pk_bf16_f32 v{O0+1}, v{O0+2}, v{O0+3}")
    k(f"ds_write_b64 v{V_OW}, {v(O0,2)}")
    for r in (0, 2): k(f"v_pk_mul_f32 {v(O1+r,2)}, {v(O1+r,2)}, {v(Lr,2)} op_sel_hi:[1,0]")
    k(f"v_cvt_pk_bf16_f32 v{O1}, v{O1}, v{O1+1}\nv_cvt_pk_bf16_f32 v{O1+1}, v{O1+2}, v{O1+3}")
    k(f"ds_write_b64 v{V_OW}, {v(O1,2)} offset:256")
    ST(7)
    for x in wo_read(0): k(x)
    for r in range(4): k(f"v_mov_b32 v{WACC[1]+r}, 0")
    k("s_waitcnt lgkmcnt(2)\ns_barrier")
    for eb in range(4): k(f"ds_read_b128 {v(OA[eb],4)}, v{V_WARM} offset:{512*eb}")
    for r in range(4): k(f"v_mov_b32 v{WACC[0]+r}, 0")
    ST(8)
    inflight = [('w', 0), ('w', 0), ('oa', 0), ('oa', 1), ('oa', 2), ('oa', 3)]
    def wait_for(tag):
        if tag in inflight:
            last = max(i for i, x in enumerate(inflight) if x == tag)
            k(f"s_waitcnt lgkmcnt({len(inflight) - 1 - last})")
            del inflight[:last + 1]
    def epi(u):
        a0, a1 = WACC[2*u], WACC[2*u+1]
        return [f"v_cvt_pk_bf16_f32 v{a0}, v{a0}, v{a0+2}", f"v_cvt_pk_bf16_f32 v{a0+1}, v{a0+1}, v{a0+3}",
                f"v_cvt_pk_bf16_f32 v{a0+2}, v{a1}, v{a1+2}", f"v_cvt_pk_bf16_f32 v{a0+3}, v{a1+1}, v{a1+3}"]
    for f in range(16):
        u, eb, tau = f >> 3, (f & 7) >> 1, 2 * (f >> 3) + (f & 1)
        wait_for(('oa', eb)); wait_for(('w', f))
        k(f"v_smfmac_f32_16x16x64_bf16 {v(WACC[tau],4)}, {v(OA[eb],4)}, {v(wslot(f),8)}, v{V_IDX}")
        if 1 <= f and f + 9 < 16:
            for x in wo_read(f + 9): k(x)
            inflight += [('w', f + 9)] * 2
        if 1 <= f <= 7: k(f"v_mov_b32 v{WS10 + f - 1}, 0")
        if f == 7: k(f"v_mov_b32 v{WS10 + 7}, 0")
        if f == 9:
            for x in epi(0): k(x)
        if f == 10:
            k(f"buffer_store_dwordx4 {v(WACC[0],4)}, v{V_PART}, {WSs}, s{S_INBC} offen {sc}")
    for x in epi(1): k(x)
    k(f"buffer_store_dwordx4 {v(WACC[2],4)}, v{V_PART}, {WSs}, s{S_INBC1} offen {sc}")
    ST(9)
    ft(1)
    if common.TRACE_ON:
        k(f"s_waitcnt lgkmcnt(0)\ns_lshl_b32 s5, s{S_STEP}, 2\ns_add_u32 s5, s5, {L_OX + 2048 + 1024}\nv_mov_b32 v56, s5\nv_mov_b32 v57, s96\nds_write_b32 v56, v57")
    for r in range(AQ, AQ + 8): k(f"v_mov_b32 v{r}, 0")
    for r in range(4): k(f"v_mov_b32 v{SENT+r}, -1")
    k(f"s_mov_b32 s{S_T1}, s{S_MEMN}\ns_mov_b32 s{S_T2}, s{S_INBC}\ns_mov_b32 s7, s{S_MEMP}")
    k(f"""
    s_mov_b32 s{S_MEMP}, s{S_MEMC}
    s_mov_b32 s{S_MEMC}, s{S_MEMN}
    s_add_u32 s5, s{S_MEMN}, 0x2000
    s_and_b32 s5, s5, 0x7fff
    s_or_b32 s{S_MEMN}, s5, {MEMR}
    s_lshl_b32 s6, s{S_H}, 13
    s_add_u32 s{S_RST}, s{S_INBC}, s6
    s_add_u32 s5, s{S_INBC}, {INB_SLOT}
    s_cmp_ge_u32 s5, {INBOX + 3*INB_SLOT}
    s_cselect_b32 s{S_INBC}, {INBOX}, s5
    s_add_u32 s{S_INBC1}, s{S_INBC}, 32768
    s_add_u32 s{S_KM}, s{S_KM}, 65536
    s_add_u32 s{S_VM}, s{S_VM}, 65536
    s_add_u32 s{S_T0}, s{S_KFN}, {VF - KF}
    s_add_u32 s{S_KFN}, s{S_KFN}, {0 if 'fixkv' in X else 8192}
    s_xor_b32 s{S_KM0}, s{S_KM0}, 8192
    s_xor_b32 s{S_KRD}, s{S_KRD}, 8192
    """)
    assert MEMR == 0x10000 and L_KS % 16384 == 0
    if flags:
        k(f"s_mov_b32 s{S_FOFF}, s{S_FOFF2}\ns_mov_b32 s{S_FNEED}, s{S_FNEED2}")
        flag_next(3)
    k(f"s_add_u32 s{S_STEP}, s{S_STEP}, 1")
    k(f"s_cmp_ge_u32 s{S_W}, 2\ns_cbranch_scc1 {P}_w23")
    if D1: k(f"s_sleep {D1}")
    ST(12)
    L = f"{P}_pi"
    IA, IB = 56, 80
    def inb_issue(r):
        for i in range(4):
            k(f"buffer_load_dwordx4 {v(r+4*i,4)}, v{V_INB}, {WSs}, s{S_T2} offen offset:{1024*i} sc1")
    def inb_reduce(r, pend):
        R = lambda i: r + i
        chk = [f"v_max3_u32 v76, v{R(0)}, v{R(1)}, v{R(2)}", f"v_max3_u32 v77, v{R(3)}, v{R(4)}, v{R(5)}", f"v_max3_u32 v76, v76, v{R(6)}, v{R(7)}",
               f"v_max3_u32 v77, v77, v{R(8)}, v{R(9)}", f"v_max3_u32 v76, v76, v{R(10)}, v{R(11)}", f"v_max3_u32 v77, v77, v{R(12)}, v{R(13)}",
               f"v_max3_u32 v76, v76, v{R(14)}, v{R(15)}", "v_max_u32 v76, v76, v77"]
        k(f"s_waitcnt vmcnt({pend+3})")
        k(f"v_mfma_f32_16x16x32_bf16 v[72:75], {v(V_SEL,4)}, {v(r,4)}, 0"); k(chk[0])
        k(f"s_waitcnt vmcnt({pend+2})")
        k(f"v_mfma_f32_16x16x32_bf16 v[72:75], {v(V_SEL,4)}, {v(r+4,4)}, v[72:75]"); k(chk[1]); k(chk[2])
        k(f"s_waitcnt vmcnt({pend+1})")
        k(f"v_mfma_f32_16x16x32_bf16 v[72:75], {v(V_SEL,4)}, {v(r+8,4)}, v[72:75]"); k(chk[3]); k(chk[4])
        k(f"s_waitcnt vmcnt({pend})")
        k(chk[5]); k(chk[6]); k(chk[7])
        k(f"v_cmp_eq_u32 vcc, -1, v76")
        k(f"v_mfma_f32_16x16x32_bf16 v[72:75], {v(V_SEL,4)}, {v(r+12,4)}, v[72:75]")
    k(f"s_mov_b32 s{S_SPIN}, 0")
    inb_issue(IA)
    for r in range(AQ + 8, AQ + 24): k(f"v_mov_b32 v{r}, 0")
    if 'gap2' in X: k("s_sleep 1")
    inb_issue(IB)
    k.label(L)
    inb_reduce(IA, 4)
    k(f"s_cbranch_vccnz {L}_retry")
    def cold_pi():
        k.label(f"{L}_retry")
        inb_issue(IA)
        if stamps: k("s_add_u32 s59, s59, 1")
        inb_reduce(IB, 4)
        k(f"s_cbranch_vccz {L}_ok")
        inb_issue(IB)
        k(f"s_add_u32 s{S_SPIN}, s{S_SPIN}, 1")
        k(f"s_cmp_gt_u32 s{S_SPIN}, 100000\ns_cbranch_scc0 {L}")
        k(f"s_add_u32 s{S_ERR}, s{S_ERR}, 1\ns_waitcnt vmcnt(0)\ns_branch {L}_ok")
    cold.append(cold_pi)
    k.label(f"{L}_ok")
    ST(10)
    ft(2)
    for r in range(4):
        k(f"v_add_f32_dpp v{72+r}, v{72+r}, v{72+r} row_ror:8 row_mask:0xf bank_mask:0xf")
    k("v_cvt_pk_bf16_f32 v72, v72, v73\nv_cvt_pk_bf16_f32 v73, v74, v75")
    k(f"buffer_store_dwordx2 v[72:73], v{V_PUB}, {WSs}, s{S_T1} offen {sc}")
    k.label(f"{P}_join")
    k("s_barrier")
    ST(11)
    ft(3)
    ft_flush()
    ST.collect()
    if D2: k(f"s_sleep {D2}")
    k(f"s_mov_b32 s{S_SPIN}, 0")
    mem_poll_issue()
    k("s_waitcnt vmcnt(3)")
    k_frag_reads()
    if 'gap' in X: k("s_sleep 1")
    mem_poll_issue(MB)
    k(f"s_branch {P}_step")
    k.label(f"{P}_w23")
    if 'ackt' in X: k("s_waitcnt vmcnt(0)\ns_memtime s[88:89]")
    for r in range(AQ + 8, AQ + 24): k(f"v_mov_b32 v{r}, 0")
    k("s_waitcnt vmcnt(2)")
    k(f"buffer_store_dwordx2 {v(SENT,2)}, v{V_PUB}, {WSs}, s7 offen {sc}")
    if stamps: k("s_memtime s[84:85]" if 'ackt' in X else "s_memtime s[88:89]\ns_memtime s[84:85]")
    k(f"s_branch {P}_join")
    for cb in cold: cb()
    k.label(f"{P}_done")
    k("s_waitcnt vmcnt(0)\ns_barrier")
    if flags:
        k(f"s_cmp_lg_u32 s{S_W}, 2\ns_cbranch_scc1 {P}_nfin\nv_mov_b32 v{MA[0]}, {NSEG}\ns_mov_b64 exec, 1")
        k(f"buffer_store_dword v{MA[0]}, v{V_L16}, {WSs}, s{S_KVMF} offen sc1")
        k("s_mov_b64 exec, -1\ns_waitcnt vmcnt(0)")
        k.label(f"{P}_nfin")
    if FT:
        k(f"s_waitcnt lgkmcnt(0)\ns_barrier\nv_lshrrev_b32 v56, 2, v{V_L16}\ns_lshl_b32 s6, s{S_W}, 8\nv_add_u32 v56, s6, v56")
        k(f"v_add_u32 v57, {L_OX + 2048}, v56\nds_read_b32 v58, v57\ns_waitcnt lgkmcnt(0)")
        k(f"s_lshl_b32 s5, s{S_H}, 10\ns_add_u32 s5, s5, {TRACE}\nbuffer_store_dword v58, v56, {WSs}, s5 offen\ns_waitcnt vmcnt(0)")
    if stamps and flags:
        k(f"s_lshl_b32 s5, s2, 10\ns_lshl_b32 s6, s{S_W}, 6\ns_add_u32 s5, s5, s6\ns_add_u32 s5, s5, {TRACE + 256}\nv_mov_b32 v56, 0")
        for j in range(4):
            for r in range(4): k(f"v_mov_b32 v{60+4*j+r}, s{44+4*j+r}")
            k(f"buffer_store_dwordx4 {v(60+4*j,4)}, v56, {WSs}, s5 offen offset:{16*j}")
        k("s_waitcnt vmcnt(0)")
    if common.TRACE_ON:
        k(f"s_memrealtime s[98:99]\ns_waitcnt lgkmcnt(0)\nv_mov_b32 v56, {L_OX + 2048 + 1024 + 63*4}\nv_mov_b32 v57, s98\nds_write_b32 v56, v57\ns_waitcnt lgkmcnt(0)")
        k(f"v_lshrrev_b32 v56, 2, v{V_L16}\nv_add_u32 v57, {L_OX + 2048 + 1024}, v56\nds_read_b32 v58, v57\ns_waitcnt lgkmcnt(0)")
        k(f"s_lshl_b32 s5, s2, 10\ns_add_u32 s5, s5, {TRACE}\nbuffer_store_dword v58, v56, {WSs}, s5 offen\ns_waitcnt vmcnt(0)")
    return ST


def xcc_decide(k, P, slow_label):
    L = f"{P}_xd"
    k("s_mov_b32 s72, 0")
    k.label(L)
    k("v_readfirstlane_b32 s70, v112\nv_readfirstlane_b32 s71, v113")
    k(f"s_lshr_b32 s5, s71, 16\ns_cmp_ge_u32 s5, 32\ns_cbranch_scc1 {L}_all")
    k(f"s_add_u32 s72, s72, 1\ns_cmp_gt_u32 s72, 0x20000\ns_cbranch_scc1 {slow_label}")
    k(f"s_sleep 4\nbuffer_load_dwordx2 v[112:113], off, s[{DBG}:{DBG+3}], 0 sc1\ns_waitcnt vmcnt(0)\ns_branch {L}")
    k.label(f"{L}_all")
    k("s_getreg_b32 s5, hwreg(HW_REG_XCC_ID, 0, 4)\ns_mul_i32 s5, s5, 6\ns_lshr_b64 s[70:71], s[70:71], s5\ns_and_b32 s5, s70, 63")
    k(f"s_cmp_lg_u32 s5, 32\ns_cbranch_scc1 {slow_label}")
```

```python
from common import *

WS, WSRD = 8, 12
S_H, S_W, S_R = 3, 4, 16
S_J, S_SEG, S_NJ = 17, 18, 19
S_XB, S_RING, S_T0, S_T1, S_T2 = 20, 21, 22, 23, 24
S_AJ, S_ASEG, S_ARING, S_C, S_ONES, S_ERR, S_SPIN = 25, 26, 27, 28, 29, 30, 31
S_TQ, S_EH = 32, 33
L_XS = 131072
L_RING = 32768
RING_E = 24576
NRING = 3
LAG = NRING - 1

V_L16, V_KMR, V_VMR, V_T = 1, 2, 3, 4
V_FLG = 5
MASK = 8
ACC = 24
XF = 72
WV0 = 128

def wf(mat, t, ks):
    f = t * 16 + ks
    if mat == 0: return a(4 * f, 4)
    if mat == 1: return a(128 + 4 * f, 4)
    return v(WV0 + 4 * f, 4)
def wfp(mat, t, ks, rp):
    f = t * 16 + ks
    if mat == 0: return a(4 * f + 2 * rp, 2)
    if mat == 1: return a(128 + 4 * f + 2 * rp, 2)
    return v(WV0 + 4 * f + 2 * rp, 2)
def acc(mat, t, T): return ACC + 16 * mat + 8 * t + 4 * T

def wait_flag(k, P, name, voff, soff, sval, dst=6):
    L = k.newlabel(f"{P}_{name}")
    k(f"s_mov_b32 s{S_SPIN}, 0")
    k.label(L)
    k(f"buffer_load_dword v{dst}, v{voff}, {S4(WS)}, {soff} offen sc1")
    k(f"s_add_u32 s{S_SPIN}, s{S_SPIN}, 1")
    k(f"s_cmp_gt_u32 s{S_SPIN}, 0x8000\ns_cbranch_scc1 {L}_fail")
    k("s_waitcnt vmcnt(0)")
    k(f"v_cmp_gt_u32 vcc, s{sval}, v{dst}")
    k(f"s_cbranch_vccz {L}_ok")
    k("s_sleep 2")
    k(f"s_branch {L}")
    k.label(f"{L}_fail")
    k(f"s_add_u32 s{S_ERR}, s{S_ERR}, 1\ns_waitcnt vmcnt(0)")
    k.label(f"{L}_ok")

def post_flag(k, P, off_sreg, val_sreg):
    L = k.newlabel(f"{P}_pf")
    k(f"s_cmp_lg_u32 s{S_W}, 0\ns_cbranch_scc1 {L}")
    k(f"v_mov_b32 v6, s{val_sreg}\nv_mov_b32 v7, 0")
    k("s_mov_b64 exec, 1")
    k(f"buffer_store_dword v6, v7, {S4(WS)}, s{off_sreg} offen sc1")
    k("s_mov_b64 exec, -1")
    k.label(L)

def qkv_setup(k, P, merged=False):
    k(f"""
    s_load_dwordx4 s[36:39], s[0:1], {A_WQ}
    s_load_dwordx2 s[40:41], s[0:1], {A_WV}
    s_load_dwordx2 s[42:43], s[0:1], {D_WS}
    v_lshrrev_b32 v24, 6, v0
    v_and_b32 v0, 63, v0
    v_readfirstlane_b32 s{S_W}, v24
    v_lshlrev_b32 v{V_L16}, 4, v0
    v_and_b32 v24, 15, v0          ; n / x
    v_lshrrev_b32 v25, 4, v0       ; g
    s_and_b32 s{S_TQ}, s{S_W}, 1
    s_lshr_b32 s{S_EH}, s{S_W}, 1
    v_lshrrev_b32 v26, 2, v24
    v_lshlrev_b32 v26, 1, v26
    v_and_b32 v27, 1, v24
    v_add_u32 v26, v26, v27
    v_lshlrev_b32 v26, 8, v26
    v_lshl_add_u32 v{V_KMR}, v25, 4, v26
    v_lshlrev_b32 v26, 3, v0
    s_lshl_b32 s5, s{S_EH}, 10
    v_add_u32 v{V_VMR}, s5, v26
    s_lshl_b32 s5, s{S_H}, 4
    s_add_u32 s5, s5, {FLAGS + F_KVM}
    v_mov_b32 v{V_FLG}, s5
    s_lshl_b32 s5, s{S_TQ}, 4
    v_add_u32 v26, s5, v24          ; qq
    v_lshlrev_b32 v27, 2, v25       ; 4g
    v_mov_b32 v29, 0xf149f2ca
    """)
    for T in range(2):
        for r in range(4):
            k(f"v_add_u32 v28, {16*T+r}, v27\nv_cmp_gt_u32 vcc, v28, v26\nv_cndmask_b32 v{MASK+4*T+r}, 0, v29, vcc")
    k(f"v_mov_b32 v{MASK+8}, 0\nv_mov_b32 v{MASK+9}, 0\nv_mov_b32 v{MASK+10}, v29\nv_mov_b32 v{MASK+11}, v29")
    k("s_waitcnt lgkmcnt(0)")
    srd(k, WS, 42, WS_BYTES)
    k(f"""
    v_lshrrev_b32 v26, 4, v0
    v_lshlrev_b32 v27, 1, v26
    v_and_b32 v28, 15, v0
    v_xor_b32 v27, v27, v28
    v_lshlrev_b32 v27, 4, v27
    v_lshlrev_b32 v26, 13, v26
    v_add_u32 v26, v26, v27
    s_lshl_b32 s5, s{S_H}, 8
    v_add_u32 v24, s5, v26
    v_xor_b32 v25, 128, v24
    v_bfe_u32 v28, v0, 2, 2        ; r
    v_and_b32 v29, 3, v0           ; c
    v_lshrrev_b32 v30, 4, v0       ; g
    v_lshl_add_u32 v31, v30, 3, v28
    v_lshlrev_b32 v31, 8, v31
    v_and_b32 v32, 1, v30
    v_lshl_add_u32 v32, v32, 2, v28
    v_lshlrev_b32 v32, 1, v32      ; 2F
    v_lshrrev_b32 v33, 1, v29
    s_lshl_b32 s5, s{S_W}, 2
    v_add_u32 v33, s5, v33
    v_xor_b32 v33, v33, v32
    v_lshlrev_b32 v33, 4, v33
    v_and_b32 v34, 1, v29
    v_lshl_add_u32 v33, v34, 3, v33
    v_add_u32 v26, v31, v33        ; t=0, ks<8
    v_xor_b32 v27, 32, v26         ; t=1
    v_add_u32 v28, 0x10000, v26
    v_add_u32 v29, 0x10000, v27
    """)
    for mat, ptr in enumerate((36, 38, 40)):
        if mat == 2 and merged:
            dbg_wait(k, DBG_LN, 128, 40)
            k(f"s_mov_b32 s{S_XB}, {L_XS}")
            xs_dma(k, S_R, S_XB)
        srd(k, WSRD, ptr, 512 * 4096 * 2)
        k(f"s_lshl_b32 s5, s{S_W}, 20\ns_lshl_b32 s6, s{S_W}, 15")
        for y in range(32):
            k("s_mov_b32 m0, s6")
            k(f"buffer_load_dwordx4 v{24 + ((y >> 1) & 1)}, {S4(WSRD)}, s5 offen lds")
            if y < 31: k("s_add_u32 s5, s5, 32768\ns_add_u32 s6, s6, 1024")
        if mat == 0 and merged:
            k(f"s_lshl_b32 s7, s{S_H}, 4\ns_lshl_b32 s{S_T0}, s{S_R}, 2\ns_add_u32 s7, s7, s{S_T0}\ns_add_u32 s7, s7, {FLAGS + F_KV}")
            zero_flag(k, 7, 40)
            k(f"s_lshl_b32 s7, s{S_R}, 7\ns_lshl_b32 s{S_T0}, s{S_H}, 2\ns_add_u32 s7, s7, s{S_T0}\ns_add_u32 s7, s7, {FLAGS + F_O}")
            zero_flag(k, 7, 41)
        k("s_waitcnt vmcnt(0)\ns_barrier")
        if mat == 0 and merged: dbg_add(k, DBG_FLAGS, 40, S_W)
        n = 0
        for t in range(2):
            for ks in range(16):
                for rp in range(2):
                    k(f"ds_read_b64_tr_b16 {wfp(mat,t,ks,rp)}, v{26 + t + 2*(ks >> 3)} offset:{8192*(ks & 7) + 1024*rp}")
                    n += 1
                    if n % 8 == 0: k("s_waitcnt lgkmcnt(4)")
        k("s_waitcnt lgkmcnt(0)\ns_barrier")

def xs_dma(k, seg_sreg, buf_sreg):
    k(f"s_lshl_b32 s5, s{seg_sreg}, 15\ns_lshl_b32 s6, s{S_W}, 13\ns_add_u32 s5, s5, s6\ns_add_u32 s5, s5, {XN}")
    k(f"s_add_u32 s6, s6, s{buf_sreg}")
    for half in range(2):
        k("s_mov_b32 m0, s6")
        for i in range(4):
            k(f"buffer_load_dwordx4 v{V_L16}, {S4(WS)}, s5 offen offset:{1024*i} sc1 lds")
        if half == 0: k("s_add_u32 s5, s5, 4096\ns_add_u32 s6, s6, 4096")

def qkv_loop(k, P, merged=False):
    c = (128 ** -0.5) * math.log2(math.e)
    k(f"s_mov_b32 s{S_C}, {f2u(c):#x}\ns_mov_b32 s{S_ONES}, 0x3f803f80\ns_mov_b32 s{S_ERR}, 0")
    k(f"s_sub_u32 s5, {NSEG + RQ - 1}, s{S_R}")
    k(f"s_mul_hi_u32 s{S_NJ}, s5, {-(-(1 << 32) // RQ)}")
    k(f"s_mov_b32 s{S_J}, 0\ns_mov_b32 s{S_SEG}, s{S_R}\ns_mov_b32 s{S_XB}, {L_XS}\ns_mov_b32 s{S_RING}, {L_RING}")
    k(f"s_mov_b32 s{S_AJ}, 0\ns_mov_b32 s{S_ASEG}, s{S_R}\ns_mov_b32 s{S_ARING}, {L_RING}")
    tr_init(k, (20, 21, 22)); tr_imm(k, 22, 1)
    if not merged: xs_dma(k, S_SEG, S_XB)
    k.label(f"{P}_loop")
    k(f"s_add_u32 s{S_T0}, s{S_SEG}, {RQ}\ns_xor_b32 s{S_T1}, s{S_XB}, {L_XS}")
    k(f"s_cmp_lt_u32 s{S_T0}, {NSEG}\ns_cbranch_scc0 {P}_nopf")
    xs_dma(k, S_T0, S_T1)
    k(f"s_waitcnt vmcnt(8)\ns_branch {P}_pf_done")
    k.label(f"{P}_nopf")
    k("s_waitcnt vmcnt(0)")
    k.label(f"{P}_pf_done")
    k("s_barrier")
    k(f"v_add_u32 v{V_T}, s{S_XB}, v{V_L16}")
    def xrd(ks):
        b = XF + 8 * (ks & 1)
        return [f"ds_read_b128 {v(b,4)}, v{V_T} offset:{ks*1024}", f"ds_read_b128 {v(b+4,4)}, v{V_T} offset:{16384+ks*1024}"]
    for x in xrd(0): k(x)
    for ks in range(16):
        if ks < 15:
            for x in xrd(ks + 1): k(x)
            k("s_waitcnt lgkmcnt(2)")
        else:
            k("s_waitcnt lgkmcnt(0)")
        b = XF + 8 * (ks & 1)
        for mat in range(3):
            for t in range(2):
                for T in range(2):
                    A_ = acc(mat, t, T)
                    C_ = "0" if ks == 0 else v(A_, 4)
                    if mat < 2: k(f"v_mfma_f32_16x16x32_bf16 {v(A_,4)}, {wf(mat,t,ks)}, {v(b+4*T,4)}, {C_}")
                    else:       k(f"v_mfma_f32_16x16x32_bf16 {v(A_,4)}, {v(b+4*T,4)}, {wf(mat,t,ks)}, {C_}")
    PK = 72
    ops = []
    for T in range(2):
        for mat, base in ((1, PK), (0, PK + 8)):
            for t in range(2):
                A_ = acc(mat, t, T)
                k(f"v_cvt_pk_bf16_f32 v{base+4*T+2*t}, v{A_}, v{A_+1}\nv_cvt_pk_bf16_f32 v{base+4*T+2*t+1}, v{A_+2}, v{A_+3}")
    for t in range(2):
        for T in range(2):
            A_ = acc(2, t, T)
            k(f"v_cvt_pk_bf16_f32 v{PK+16+4*t+2*T}, v{A_}, v{A_+1}\nv_cvt_pk_bf16_f32 v{PK+16+4*t+2*T+1}, v{A_+2}, v{A_+3}")
    k(f"""
    s_lshl_b32 s5, s{S_H}, 6
    s_add_u32 s5, s5, s{S_SEG}
    s_lshl_b32 s5, s5, 13
    s_lshl_b32 s6, s{S_W}, 10
    s_add_u32 s7, s5, s6
    s_add_u32 s7, s7, {KF}
    buffer_store_dwordx4 {v(PK,4)}, v{V_L16}, {S4(WS)}, s7 offen sc1
    s_add_u32 s7, s7, 4096
    buffer_store_dwordx4 {v(PK+4,4)}, v{V_L16}, {S4(WS)}, s7 offen sc1
    s_lshl_b32 s6, s{S_W}, 11
    s_add_u32 s7, s5, s6
    s_add_u32 s7, s7, {VF}
    buffer_store_dwordx4 {v(PK+16,4)}, v{V_L16}, {S4(WS)}, s7 offen sc1
    buffer_store_dwordx4 {v(PK+20,4)}, v{V_L16}, {S4(WS)}, s7 offen offset:1024 sc1
    s_lshl_b32 s6, s{S_W}, 10
    s_add_u32 s5, s6, s{S_RING}
    v_add_u32 v{V_T}, s5, v{V_L16}
    ds_write_b128 v{V_T}, {v(PK+8,4)}
    ds_write_b128 v{V_T}, {v(PK+12,4)} offset:4096
    ds_write_b128 v{V_T}, {v(PK,4)} offset:8192
    ds_write_b128 v{V_T}, {v(PK+4,4)} offset:12288
    v_add_u32 v{V_T}, s6, v{V_T}
    ds_write_b128 v{V_T}, {v(PK+16,4)} offset:16384
    ds_write_b128 v{V_T}, {v(PK+20,4)} offset:17408
    s_add_u32 s{S_J}, s{S_J}, 1
    s_waitcnt vmcnt(0) lgkmcnt(0)
    s_barrier
    s_lshl_b32 s5, s{S_H}, 4
    s_lshl_b32 s6, s{S_R}, 2
    s_add_u32 s5, s5, s6
    s_add_u32 s{S_T2}, s5, {FLAGS + F_KV}
    """)
    post_flag(k, P, S_T2, S_J)
    tr(k, 20, S_J)
    k(f"""
    s_add_u32 s{S_SEG}, s{S_SEG}, {RQ}
    s_xor_b32 s{S_XB}, s{S_XB}, {L_XS}
    s_add_u32 s{S_RING}, s{S_RING}, {RING_E}
    s_cmp_lt_u32 s{S_RING}, {L_RING + NRING*RING_E}
    s_cselect_b32 s{S_RING}, s{S_RING}, {L_RING}
    s_cmp_gt_u32 s{S_J}, {LAG}
    s_cbranch_scc1 {P}_att
    s_cmp_lt_u32 s{S_J}, s{S_NJ}
    s_cbranch_scc1 {P}_loop
    """)
    k.label(f"{P}_att")
    if merged:
        k(f"s_cmp_lg_u32 s{S_AJ}, 0\ns_cbranch_scc1 {P}_att2")
        dbg_wait(k, DBG_FLAGS, N_FLAG_WGS, 6)
        k.label(f"{P}_att2")
    attend(k, P)
    k(f"""
    s_add_u32 s{S_AJ}, s{S_AJ}, 1
    s_waitcnt vmcnt(0)
    s_barrier
    s_lshl_b32 s5, s{S_R}, 7
    s_lshl_b32 s6, s{S_H}, 2
    s_add_u32 s5, s5, s6
    s_add_u32 s{S_T2}, s5, {FLAGS + F_O}
    """)
    post_flag(k, P, S_T2, S_AJ)
    tr(k, 21, S_AJ)
    k(f"""
    s_add_u32 s{S_ASEG}, s{S_ASEG}, {RQ}
    s_add_u32 s{S_ARING}, s{S_ARING}, {RING_E}
    s_cmp_lt_u32 s{S_ARING}, {L_RING + NRING*RING_E}
    s_cselect_b32 s{S_ARING}, s{S_ARING}, {L_RING}
    s_cmp_lt_u32 s{S_J}, s{S_NJ}
    s_cbranch_scc1 {P}_loop
    s_cmp_lt_u32 s{S_AJ}, s{S_NJ}
    s_cbranch_scc1 {P}_att
    """)
    tr_dump(k, (20, 21, 22), WS, S_W)

def attend(k, P):
    Q, KK, KM_, VV, VMr = 24, 40, 72, 88, 104
    SS = 112
    k(f"s_lshl_b32 s5, s{S_TQ}, 12\ns_add_u32 s5, s5, s{S_ARING}\nv_add_u32 v{V_T}, s5, v{V_L16}")
    for ks in range(4): k(f"ds_read_b128 {v(Q+4*ks,4)}, v{V_T} offset:{1024*ks}")
    k(f"v_add_u32 v{V_T}, s{S_ARING}, v{V_L16}")
    for T in range(2):
        for ks in range(4): k(f"ds_read_b128 {v(KK+16*T+4*ks,4)}, v{V_T} offset:{8192+4096*T+1024*ks}")
    k("s_waitcnt lgkmcnt(0)")
    for ks in range(4):
        for T in range(2):
            C_ = v(MASK + 4 * T, 4) if ks == 0 else v(SS + 4 * T, 4)
            k(f"v_mfma_f32_16x16x32_bf16 {v(SS+4*T,4)}, {v(KK+16*T+4*ks,4)}, {v(Q+4*ks,4)}, {C_}")
    k(f"s_lshl_b32 s5, s{S_EH}, 12\ns_add_u32 s5, s5, s{S_ARING}\nv_add_u32 v{V_T}, s5, v{V_L16}")
    for i in range(4): k(f"ds_read_b128 {v(VV+4*i,4)}, v{V_T} offset:{16384+1024*i}")
    k(f"s_add_u32 s{S_T0}, s{S_ASEG}, 1")
    wait_flag(k, P, "kvm", V_FLG, "0", S_T0)
    k(f"s_lshl_b32 s5, s{S_ASEG}, 5\ns_add_u32 s5, s5, s{S_H}\ns_lshl_b32 s5, s5, 11\ns_add_u32 s6, s5, {KM}\ns_add_u32 s7, s5, {VM}")
    for ks in range(4): k(f"buffer_load_dwordx4 {v(KM_+4*ks,4)}, v{V_KMR}, {S4(WS)}, s6 offen offset:{64*ks} sc1")
    k(f"buffer_load_dwordx2 {v(VMr,2)}, v{V_VMR}, {S4(WS)}, s7 offen sc1")
    k(f"buffer_load_dwordx2 {v(VMr+2,2)}, v{V_VMR}, {S4(WS)}, s7 offen offset:512 sc1")
    k("s_waitcnt vmcnt(2)")
    for ks in range(4):
        C_ = v(MASK + 8, 4) if ks == 0 else v(SS + 8, 4)
        k(f"v_mfma_f32_16x16x32_bf16 {v(SS+8,4)}, {v(KM_+4*ks,4)}, {v(Q+4*ks,4)}, {C_}")
    S = [SS + i for i in range(10)]
    M, M2 = 6, 7
    k(f"v_max3_f32 v{M}, v{S[0]}, v{S[1]}, v{S[2]}\nv_max3_f32 v{M2}, v{S[3]}, v{S[4]}, v{S[5]}")
    k(f"v_max3_f32 v{M}, v{M}, v{S[6]}, v{S[7]}\nv_max3_f32 v{M2}, v{M2}, v{S[8]}, v{S[9]}\nv_max_f32 v{M}, v{M}, v{M2}")
    for sw in ("v_permlane32_swap_b32", "v_permlane16_swap_b32"):
        k(f"v_mov_b32 v{M2}, v{M}\n{sw} v{M}, v{M2}\nv_max_f32 v{M}, v{M}, v{M2}")
    k(f"v_mul_f32 v{M}, {f2u(-(128 ** -0.5) * math.log2(math.e)):#x}, v{M}")
    for r in S: k(f"v_fma_f32 v{r}, v{r}, s{S_C}, v{M}")
    for r in S: k(f"v_exp_f32 v{r}, v{r}")
    PF, P2 = 40, 44
    for i in range(4): k(f"v_cvt_pk_bf16_f32 v{PF+i}, v{SS+2*i}, v{SS+2*i+1}")
    k(f"v_cvt_pk_bf16_f32 v{P2}, v{SS+8}, v{SS+9}\nv_mov_b32 v{P2+1}, 0")
    k("s_waitcnt vmcnt(0) lgkmcnt(0)")
    ZP = 48
    for i in range(4): k(f"v_mov_b32 v{ZP+2*i}, v{VMr+i}\nv_mov_b32 v{ZP+2*i+1}, 0")
    O = 56
    for i in range(4): k(f"v_mfma_f32_16x16x32_bf16 {v(O+4*i,4)}, {v(VV+4*i,4)}, {v(PF,4)}, 0")
    for i in range(4): k(f"v_mfma_f32_16x16x16_bf16 {v(O+4*i,4)}, {v(ZP+2*i,2)}, {v(P2,2)}, {v(O+4*i,4)}")
    k(f"v_dot2_f32_bf16 v{M}, v{PF}, s{S_ONES}, 0\nv_dot2_f32_bf16 v{M2}, v{PF+1}, s{S_ONES}, 0")
    k(f"v_dot2_f32_bf16 v{M}, v{PF+2}, s{S_ONES}, v{M}\nv_dot2_f32_bf16 v{M2}, v{PF+3}, s{S_ONES}, v{M2}")
    k(f"v_dot2_f32_bf16 v{M}, v{P2}, s{S_ONES}, v{M}\nv_add_f32 v{M}, v{M}, v{M2}")
    for sw in ("v_permlane32_swap_b32", "v_permlane16_swap_b32"):
        k(f"v_mov_b32 v{M2}, v{M}\n{sw} v{M}, v{M2}\nv_add_f32 v{M}, v{M}, v{M2}")
    k(f"v_rcp_f32 v{M}, v{M}")
    for r in range(16): k(f"v_mul_f32 v{O+r}, v{O+r}, v{M}")
    PK = 72
    for i in range(4):
        k(f"v_cvt_pk_bf16_f32 v{PK+2*i}, v{O+4*i}, v{O+4*i+1}\nv_cvt_pk_bf16_f32 v{PK+2*i+1}, v{O+4*i+2}, v{O+4*i+3}")
    k(f"""
    s_lshl_b32 s5, s{S_ASEG}, 18
    s_lshl_b32 s6, s{S_TQ}, 17
    s_add_u32 s5, s5, s6
    s_lshl_b32 s6, s{S_H}, 12
    s_add_u32 s5, s5, s6
    s_lshl_b32 s6, s{S_EH}, 11
    s_add_u32 s5, s5, s6
    s_add_u32 s5, s5, {OF}
    buffer_store_dwordx4 {v(PK,4)}, v{V_L16}, {S4(WS)}, s5 offen sc1
    buffer_store_dwordx4 {v(PK+4,4)}, v{V_L16}, {S4(WS)}, s5 offen offset:1024 sc1
    """)
```

```python
import sys
from common import *
import chain, qkv, gemmk, ffn1, ln

NAME = "recurrent_scan__memory_aug_recurrent_mem_tr__dense_activation_mish__prompt_kernel"

def build(stamps=False, opts=''):
    import common
    common.TRACE_ON = 'trace' in opts
    import re as _re
    mm = _re.search(r'D=(\d+),(\d+),(\w*)', opts)
    D1, D2, XO = (int(mm.group(1)), int(mm.group(2)), mm.group(3)) if mm else (1, 2, 'gapgap2')
    k = K()
    k(f"""
    s_cmp_ge_u32 s2, 256
    s_cbranch_scc1 mg_exit
    {"s_memrealtime s[78:79]" if 'trace' in opts else ""}
    {"s_and_b32 s5, s2, 7" if 'spread' not in opts else "s_lshr_b32 s5, s2, 5"}
    {"s_lshr_b32 s6, s2, 3" if 'spread' not in opts else "s_and_b32 s6, s2, 31"}
    s_cmp_eq_u32 s5, 0
    s_cbranch_scc1 mg_chain
    s_cmp_le_u32 s5, 2
    s_cbranch_scc1 mg_wo
    s_cmp_eq_u32 s5, 3
    s_cbranch_scc1 mg_f2
    s_sub_u32 s5, s5, 4
    s_cmp_lt_u32 s6, {8*RQ}
    s_cbranch_scc0 mg_f1sel
    s_mul_i32 s5, s5, {8*RQ}
    s_add_u32 s5, s5, s6
    s_branch mg_qkv
mg_f1sel:
    s_sub_u32 s6, s6, {8*RQ}
    s_mul_i32 s5, s5, {32 - 8*RQ}
    s_add_u32 s5, s5, s6
    s_cmp_lt_u32 s5, {7*RH}
    s_cbranch_scc1 mg_f1
    s_endpgm
    """)
    k.label("mg_chain")
    k("s_mov_b32 s3, s6")
    dbg_srd(k)
    chain.chain_setup(k, "ch", merged=True)
    if 'forceslow' in opts: k("s_branch mg_chain_slow")
    chain.xcc_decide(k, "ch", "mg_chain_slow")
    chain.chain_loop(k, "ch", stamps=('st' in opts.split()), dbg=('dbg' in opts), flags=True, D1=D1, D2=D2, X=XO + 'merged')
    k("s_endpgm")
    k.label("mg_chain_slow")
    k("s_waitcnt vmcnt(0)")
    chain.chain_loop(k, "cs", stamps=False, dbg=('dbg' in opts), flags=True, sc='sc1', X='merged')
    k("s_endpgm")
    k.label("mg_wo")
    if 'nowo' in opts: k("s_endpgm")
    k("s_and_b32 s3, s6, 15\ns_lshr_b32 s6, s6, 4\ns_sub_u32 s5, s5, 1\ns_lshl_b32 s5, s5, 1\ns_add_u32 s16, s5, s6")
    dbg_srd(k)
    k(f"s_and_b32 s5, s2, 7\ns_cmp_lg_u32 s5, 1" if 'spread' not in opts else "s_lshr_b32 s5, s2, 5\ns_cmp_lg_u32 s5, 1")
    k("s_cbranch_scc1 mg_wo_noln")
    k(f"s_load_dwordx2 s[36:37], s[0:1], {A_X}\ns_load_dwordx2 s[38:39], s[0:1], {D_WS}\nv_mov_b32 v100, v0\nv_lshrrev_b32 v1, 6, v0\nv_and_b32 v0, 63, v0\nv_readfirstlane_b32 s20, v1")
    k(("s_lshr_b32 s5, s2, 3" if 'spread' not in opts else "s_and_b32 s5, s2, 31") + "\ns_lshl_b32 s5, s5, 2\ns_add_u32 s20, s20, s5\ns_waitcnt lgkmcnt(0)")
    srd(k, 8, 38, WS_BYTES); srd(k, 12, 36, 2048 * 1024)
    ln.ln_role(k, "ln", 20, 8, 12)
    k("s_waitcnt vmcnt(0)")
    dbg_add(k, DBG_LN, 4)
    k("v_mov_b32 v0, v100")
    k.label("mg_wo_noln")
    if 'delay' in opts.split():
        k("v_lshrrev_b32 v1, 6, v0\nv_readfirstlane_b32 s4, v1")
        dbg_wait(k, 4, 0x200000, 2)
    gemmk.gk_setup(k, "wo", "wo", merged=True); gemmk.gk_loop(k, "wo", "wo")
    k("s_endpgm")
    k.label("mg_f2")
    if 'noffn' in opts: k("s_endpgm")
    k("s_and_b32 s3, s6, 15\ns_lshr_b32 s16, s6, 4")
    dbg_srd(k)
    if 'delay' in opts.split():
        k("v_lshrrev_b32 v1, 6, v0\nv_readfirstlane_b32 s4, v1")
        dbg_wait(k, 4, 0x200000, 2)
    gemmk.gk_setup(k, "f2", "f2", merged=True); gemmk.gk_loop(k, "f2", "f2")
    k("s_endpgm")
    k.label("mg_qkv")
    k(f"s_mul_hi_u32 s3, s5, {-(-(1 << 32) // RQ)}\ns_mul_i32 s6, s3, {RQ}\ns_sub_u32 s16, s5, s6")
    dbg_srd(k)
    qkv.qkv_setup(k, "qk", merged=True); qkv.qkv_loop(k, "qk", merged=True)
    k("s_endpgm")
    k.label("mg_f1")
    if 'noffn' in opts: k("s_endpgm")
    k(f"s_lshr_b32 s3, s5, 1\ns_and_b32 s16, s5, 1")
    dbg_srd(k)
    if 'delay' in opts.split() and 'f1early' not in opts:
        k("v_lshrrev_b32 v1, 6, v0\nv_readfirstlane_b32 s4, v1")
        dbg_wait(k, 4, 0x200000, 2)
    ffn1.f1_setup(k, "f1", merged=True); ffn1.f1_loop(k, "f1")
    k.label("mg_exit")
    k("s_endpgm")
    mega = k.finish()
    hdr = open('recurrent_scan__memory_aug_recurrent_mem_tr__dense_activation_mish__prompt.s.ref').read().split("; Override launch")[0]
    txt = hdr
    txt += f"; @launch grid=(256,1,1) block=(256,1,1) lds=163840\n"
    txt += '.amdgcn_target "amdgcn-amd-amdhsa--gfx950"\n.text\n'
    txt += kernel_text(NAME, mega, 512, 256)
    print("mega instrs", len(k.ins), "nops", k.nops, file=sys.stderr)
    return txt
if __name__ == "__main__":
    open(sys.argv[1], "w").write(build(opts=" ".join(sys.argv[2:])))
```

```python
from asm import *
from layout import *
import common
from common import dbg_srd, dbg_add, dbg_wait, DBG, DBG_FLAGS, DBG_LN, N_FLAG_WGS
import math, struct

def f2u(x): return struct.unpack("<I", struct.pack("<f", x))[0]

L_WO = 0
L_KS = 131072
L_MX = 147456
L_QX = 155648
L_KX = L_QX + 2304
L_OX = L_KX + 2304
RSX = 288
S_H, S_W = 3, 4
WS = 8
WSRD = 12
S_STEP = 20
S_MEMC, S_MEMN, S_MEMP = 21, 22, 23
S_INBC, S_INBC1, S_INBP = 24, 25, 26
S_KFN, S_VFN, S_KM, S_VM = 27, 28, 29, 30
S_KSM0 = 31
S_SPIN = 33
S_C = 32
S_T0, S_T1, S_T2 = 34, 35, 36
S_ERR = 37
S_KSLOT = 38
S_FLG = 39
S_JUNK = 19
V_IDX, V_L16, V_FLV, V_MEMP, V_MEMW = 1, 2, 3, 4, 5
V_MR = 6
V_PART, V_INB, V_PUB = 9, 10, 11
V_SEL = 12
V_QW, V_QR, V_KR, V_OW, V_WO, V_KMO, V_VMO = 16, 17, 18, 19, 20, 21, 22
V_TMP = 23
V_WARM = 0
AQ, AK, AV = 24, 32, 40
MA = [48, 52, 56, 60, 64, 68, 72, 76]
KSEG = 80
QB = [48, 52, 112, 116]
KA = [80, 84, 88, 92]
VSEG = 120
WSLOT = [96, 104, 80, 88, 112, 56, 64, 72, 120]
WS10 = 40
WACC = [28, 36, 40, 44]
OA = [24, 32, 48, 52]
OUT = [120, 124]
WV0 = 128

def wfrag(mat, t, u):
    f = t * 8 + u
    if mat == 0: return a(8 * f, 8)
    if mat == 1: return a(128 + 8 * f, 8)
    return v(WV0 + 8 * f, 8)
def wfrag_pair(mat, t, u, rp):
    f = t * 8 + u
    if mat == 0: return a(8 * f + 2 * rp, 2)
    if mat == 1: return a(128 + 8 * f + 2 * rp, 2)
    return v(WV0 + 8 * f + 2 * rp, 2)

def srd(k, r, ptr, nbytes):
    k(f"s_mov_b32 s{r}, s{ptr}")
    k(f"s_and_b32 s{r+1}, s{ptr+1}, 0xffff")
    k(f"s_mov_b32 s{r+2}, {nbytes}")
    k(f"s_mov_b32 s{r+3}, 0x20000")

class Stamps:
    def __init__(self, k, on): self.k = k; self.on = on; self.used = []
    def init(self, n=16):
        if not self.on: return
        for i in range(n): self.k(f"s_mov_b32 s{44+i}, 0")
        self.k("s_memtime s[40:41]\ns_waitcnt lgkmcnt(0)\ns_mov_b32 s42, s40")
    def __call__(self, i):
        if not self.on: return
        self.used.append(i)
        self.k(f"s_memtime s[{64+2*i}:{65+2*i}]")
    def collect(self):
        if not self.on: return
        self.k("s_waitcnt lgkmcnt(0)")
        prev = 42
        for i in self.used:
            self.k(f"s_sub_u32 s43, s{64+2*i}, s{prev}\ns_add_u32 s{44+i}, s{44+i}, s43")
            prev = 64 + 2 * i
        self.k(f"s_mov_b32 s42, s{prev}")

def sm(k, mat, t, u):
    acc = [AQ, AK, AV][mat] + 4 * t
    k(f"v_smfmac_f32_16x16x64_bf16 {v(acc,4)}, {v(MA[u],4)}, {wfrag(mat,t,u)}, v{V_IDX}")

def chain_setup(k, P, merged=False):
    k(f"""
    s_load_dwordx8 s[16:23], s[0:1], {A_WQ}
    s_load_dwordx2 s[24:25], s[0:1], {A_MEM0}
    s_load_dwordx2 s[26:27], s[0:1], {D_WS}
    v_lshrrev_b32 v24, 6, v0
    v_and_b32 v0, 63, v0
    v_readfirstlane_b32 s{S_W}, v24
    v_and_b32 v24, 15, v0          ; n
    v_lshrrev_b32 v25, 4, v0       ; g
    v_lshlrev_b32 v{V_L16}, 4, v0
    v_and_b32 v26, 1, v0
    v_mul_u32_u24 v26, 0xaaaa, v26
    v_add_u32 v{V_IDX}, 0x4444, v26
    s_lshl_b32 s5, s{S_W}, 11
    v_add_u32 v{V_MEMP}, s5, v{V_L16}
    v_add_u32 v{V_MEMW}, {L_MX}, v{V_MEMP}
    v_xor_b32 v{V_MR}, 2048, v{V_MEMW}
    v_xor_b32 v{V_MR+1}, 4096, v{V_MEMW}
    v_xor_b32 v{V_MR+2}, 6144, v{V_MEMW}
    s_lshl_b32 s5, s{S_W}, 4
    v_lshrrev_b32 v26, 2, v24
    v_add_u32 v26, s5, v26
    v_lshlrev_b32 v26, 12, v26
    s_lshl_b32 s5, s{S_H}, 7
    v_add_u32 v26, s5, v26
    v_and_b32 v27, 3, v24
    v_lshlrev_b32 v27, 5, v27
    v_add_u32 v26, v26, v27
    v_lshlrev_b32 v27, 3, v25
    v_add_u32 v{V_PART}, v26, v27
    s_and_b32 s7, s{S_W}, 1
    s_lshl_b32 s6, s{S_H}, 1
    s_add_u32 s6, s6, s7
    s_lshl_b32 s5, s6, 12
    v_add_u32 v{V_INB}, s5, v{V_L16}
    s_lshr_b32 s5, s6, 3
    s_lshl_b32 s5, s5, 10
    s_bfe_u32 s7, s6, 0x20001
    s_lshl_b32 s7, s7, 8
    s_add_u32 s5, s5, s7
    s_and_b32 s7, s6, 1
    s_lshl_b32 s7, s7, 4
    s_add_u32 s5, s5, s7
    v_and_b32 v26, 1, v24
    v_lshlrev_b32 v26, 2, v26
    v_lshrrev_b32 v27, 3, v24
    v_lshl_add_u32 v26, v27, 1, v26
    v_and_b32 v27, 1, v25
    v_add_u32 v28, v26, v27          ; m
    v_lshlrev_b32 v26, 5, v28
    v_bfe_u32 v30, v24, 1, 2         ; nn
    v_lshl_add_u32 v26, v30, 2, v26
    v_add_u32 v{V_PUB}, s5, v26
    v_and_b32 v26, 3, v24
    v_bfe_u32 v27, v24, 2, 1
    v_lshlrev_b32 v27, 4, v27
    v_mov_b32 v29, 0x3f80
    v_lshlrev_b32 v29, v27, v29
    """)
    for r in range(4):
        k(f"v_cmp_eq_u32 vcc, {r}, v26\nv_cndmask_b32 v{V_SEL+r}, 0, v29, vcc")
    k(f"""
    v_mul_u32_u24 v26, {2*RSX}, v25
    v_lshrrev_b32 v27, 2, v24
    v_lshlrev_b32 v27, 4, v27
    v_add_u32 v26, v26, v27
    v_and_b32 v27, 3, v24
    v_lshlrev_b32 v27, 1, v27
    v_add_u32 v26, v26, v27
    s_lshl_b32 s5, s{S_W}, 6
    s_add_u32 s5, s5, {L_QX}
    v_add_u32 v{V_QW}, s5, v26
    v_and_b32 v26, 7, v24
    v_mul_u32_u24 v26, {RSX}, v26
    v_lshlrev_b32 v27, 4, v25
    v_add_u32 v26, v26, v27
    v_add_u32 v{V_QR}, {L_QX}, v26
    ; m'(x) = 2*(x>>2) + (x&1)
    v_lshrrev_b32 v26, 2, v24
    v_lshlrev_b32 v26, 1, v26
    v_and_b32 v29, 1, v24
    v_add_u32 v29, v26, v29
    v_mul_u32_u24 v26, {RSX}, v29
    v_add_u32 v26, v26, v27
    v_add_u32 v{V_KR}, {L_KX}, v26
    v_lshlrev_b32 v26, 8, v29
    v_add_u32 v26, v26, v27
    s_lshl_b32 s5, s{S_W}, 6
    v_add_u32 v{V_KMO}, s5, v26
    v_lshlrev_b32 v26, 3, v0
    s_lshl_b32 s5, s{S_W}, 9
    v_add_u32 v{V_VMO}, s5, v26
    v_and_b32 v26, 7, v24
    v_lshlrev_b32 v26, 4, v26
    v_lshrrev_b32 v27, 1, v25
    v_lshlrev_b32 v27, 7, v27
    v_add_u32 v26, v26, v27
    v_and_b32 v27, 1, v25
    v_lshlrev_b32 v27, 3, v27
    v_add_u32 v26, v26, v27
    s_lshl_b32 s5, s{S_W}, 9
    s_add_u32 s5, s5, {L_OX}
    v_add_u32 v{V_OW}, s5, v26
    s_lshl_b32 s5, s{S_W}, 15
    v_add_u32 v{V_WO}, s5, v{V_L16}
    s_waitcnt lgkmcnt(0)
    """)
    srd(k, WS, 26, WS_BYTES)
    srd(k, WSRD, 24, 8192)
    k(f"""
    s_cmp_ge_u32 s{S_W}, 2
    s_cbranch_scc1 {P}_nopub0
    s_lshr_b32 s5, s6, 2
    s_lshl_b32 s5, s5, 5
    s_and_b32 s7, s6, 3
    s_lshl_b32 s7, s7, 2
    s_add_u32 s5, s5, s7
    s_lshl_b32 s5, s5, 1
    v_lshlrev_b32 v26, 10, v28
    v_lshl_add_u32 v26, v30, 1, v26
    v_add_u32 v26, s5, v26
    buffer_load_ushort v40, v26, s[{WSRD}:{WSRD+3}], 0 offen
    buffer_load_ushort v41, v26, s[{WSRD}:{WSRD+3}], 0 offen offset:32
    """)
    k.label(f"{P}_nopub0")
    k(f"""
    v_lshrrev_b32 v26, 4, v0
    v_bfe_u32 v27, v0, 5, 1
    v_lshlrev_b32 v27, 1, v27
    v_and_b32 v28, 15, v0
    v_xor_b32 v27, v27, v28
    v_lshlrev_b32 v27, 4, v27
    v_lshlrev_b32 v26, 13, v26
    v_add_u32 v26, v26, v27
    s_lshl_b32 s5, s{S_H}, 8
    v_add_u32 v24, s5, v26
    v_xor_b32 v25, 64, v24
    v_xor_b32 v39, 128, v24
    v_xor_b32 v23, 192, v24
    v_bfe_u32 v28, v0, 2, 2        ; r
    v_and_b32 v29, 3, v0           ; c
    v_lshrrev_b32 v30, 4, v0       ; gB
    v_and_b32 v31, 1, v28          ; r&1
    v_lshrrev_b32 v32, 1, v28      ; r>>1
    v_and_b32 v33, 1, v30          ; gB&1
    v_lshrrev_b32 v34, 1, v30      ; gB>>1
    v_lshlrev_b32 v35, 4, v31
    v_lshl_add_u32 v35, v34, 3, v35
    v_lshl_add_u32 v35, v32, 2, v35
    v_lshl_add_u32 v35, v33, 1, v35 ; Lrow
    v_lshlrev_b32 v35, 8, v35
    v_lshlrev_b32 v36, 2, v31
    v_lshl_add_u32 v36, v32, 1, v36
    v_add_u32 v36, v36, v33        ; F
    v_lshlrev_b32 v36, 1, v36      ; 2F
    v_lshrrev_b32 v37, 1, v29      ; c>>1
    s_lshl_b32 s5, s{S_W}, 2
    v_add_u32 v37, s5, v37
    v_xor_b32 v37, v37, v36
    v_lshlrev_b32 v37, 4, v37
    v_and_b32 v38, 1, v29
    v_lshl_add_u32 v37, v38, 3, v37
    v_add_u32 v35, v35, v37
    s_lshl_b32 s5, s{S_W}, 15
    v_add_u32 v26, s5, v35
    v_xor_b32 v27, 32, v26
    """)
    for mat in range(3):
        srd(k, WSRD, 16 + 2 * mat, 512 * 4096 * 2)
        k(f"s_lshl_b32 s5, s{S_W}, 20\ns_lshl_b32 s6, s{S_W}, 15")
        for y in range(32):
            k(f"s_mov_b32 m0, s6")
            k(f"buffer_load_dwordx4 v{(24, 25, 39, 23)[(y & 1) + 2 * ((y >> 2) & 1)]}, s[{WSRD}:{WSRD+3}], s5 offen lds")
            if y < 31: k(f"s_add_u32 s5, s5, 32768\ns_add_u32 s6, s6, 1024")
        if mat == 0 and merged:
            for r in range(4): k(f"v_mov_b32 v{44+r}, -1")
            k(f"s_lshl_b32 s7, s{S_H}, 13\ns_add_u32 s7, s7, {INBOX}")
            for slot in range(3):
                k(f"buffer_store_dwordx4 v[44:47], v{V_MEMP}, s[{WS}:{WS+3}], s7 offen sc1")
                k(f"buffer_store_dwordx4 v[44:47], v{V_MEMP}, s[{WS}:{WS+3}], s7 offen offset:1024 sc1")
                if slot < 2: k("s_add_u32 s7, s7, 0x40000")
            for slot in range(1, 4):
                k(f"s_mov_b32 s7, {MEMR + slot*8192}\nbuffer_store_dword v44, v{V_PUB}, s[{WS}:{WS+3}], s7 offen sc1")
            k(f"s_lshl_b32 s7, s{S_H}, 4\ns_add_u32 s7, s7, {FLAGS + F_KVM}\nv_mov_b32 v48, 0")
            k(f"buffer_store_dword v48, off, s[{WS}:{WS+3}], s7 sc1")
        k("s_waitcnt vmcnt(0)")
        if mat == 0:
            k(f"s_cmp_ge_u32 s{S_W}, 2\ns_cbranch_scc1 {P}_nopub1")
            k(f"v_lshl_or_b32 v40, v41, 16, v40\ns_mov_b32 s7, {MEMR}")
            k(f"buffer_store_dword v40, v{V_PUB}, s[{WS}:{WS+3}], s7 offen sc1")
            k.label(f"{P}_nopub1")
        k("s_barrier")
        if mat == 0 and merged: dbg_add(k, DBG_FLAGS, 46, S_W)
        if mat == 1 and merged:
            La = f"{P}_ann"
            k(f"s_cmp_lg_u32 s{S_W}, 0\ns_cbranch_scc1 {La}")
            k("s_getreg_b32 s70, hwreg(HW_REG_XCC_ID, 0, 4)\ns_mul_i32 s70, s70, 6\ns_lshl_b64 s[70:71], 1, s70\ns_add_u32 s71, s71, 0x10000")
            k("v_mov_b32 v44, s70\nv_mov_b32 v45, s71\ns_mov_b64 exec, 1")
            k(f"buffer_atomic_add_x2 v[44:45], off, s[{DBG}:{DBG+3}], 0 sc1")
            k("s_mov_b64 exec, -1")
            k.label(La)
        for t in range(2):
            for u in range(8):
                k(f"v_xor_b32 v28, {u*16384}, v{26+t}")
                for rp in range(4):
                    off = 8192 * (rp >> 1) + 256 * (rp & 1)
                    k(f"ds_read_b64_tr_b16 {wfrag_pair(mat,t,u,rp)}, v28 offset:{off}")
                if u % 2 == 1: k("s_waitcnt lgkmcnt(0)")
        k("s_waitcnt lgkmcnt(0)\ns_barrier")
    srd(k, WSRD, 22, 4096 * 512 * 2)
    k(f"""
    v_lshrrev_b32 v26, 4, v0
    v_and_b32 v27, 1, v26
    v_lshlrev_b32 v27, 2, v27        ; 4*(row&1)
    v_and_b32 v28, 15, v0
    v_xor_b32 v27, v27, v28
    v_lshlrev_b32 v27, 4, v27
    v_lshlrev_b32 v26, 10, v26
    v_add_u32 v26, v26, v27
    s_lshl_b32 s5, s{S_W}, 8
    v_add_u32 v24, s5, v26
    v_xor_b32 v25, 128, v24
    s_lshl_b32 s5, s{S_H}, 17
    s_lshl_b32 s6, s{S_W}, 15
    """)
    for y in range(32):
        k("s_mov_b32 m0, s6")
        k(f"buffer_load_dwordx4 v{24 + (y & 1)}, s[{WSRD}:{WSRD+3}], s5 offen lds")
        if y < 31: k("s_add_u32 s5, s5, 4096\ns_add_u32 s6, s6, 1024")
    k(f"""
    v_lshlrev_b32 v35, 3, v34
    v_lshl_add_u32 v35, v33, 2, v35
    v_add_u32 v35, v35, v31
    v_lshlrev_b32 v35, 8, v35
    v_lshlrev_b32 v36, 2, v31
    v_lshl_add_u32 v36, v33, 3, v36
    v_lshrrev_b32 v37, 1, v29
    v_lshl_add_u32 v37, v32, 1, v37
    v_xor_b32 v37, v37, v36
    v_lshlrev_b32 v37, 4, v37
    v_lshl_add_u32 v37, v38, 3, v37
    v_add_u32 v35, v35, v37
    s_lshl_b32 s5, s{S_W}, 15
    v_add_u32 v28, s5, v35
    """)
    if merged:
        k(f"buffer_load_dwordx2 v[112:113], off, s[{DBG}:{DBG+3}], 0 sc1")
        k(f"buffer_load_dword v114, off, s[{DBG}:{DBG+3}], 0 offset:{DBG_FLAGS} sc1")
    k("s_waitcnt vmcnt(0)")
    TMP = 48
    for half in range(2):
        for tau in range(4):
            k(f"v_xor_b32 v29, {64*tau}, v28")
            for e2 in range(2):
                eb = 2 * half + e2
                for rp in range(4):
                    off = (32 * eb + 16 * (rp >> 1) + 2 * (rp & 1)) * 256
                    k(f"ds_read_b64_tr_b16 {v(TMP+16*tau+8*e2+2*rp,2)}, v29 offset:{off}")
            k("s_waitcnt lgkmcnt(0)")
        for tau in range(4):
            for e2 in range(2):
                for hf in range(2):
                    k(f"ds_write_b128 v{V_WO}, {v(TMP+16*tau+8*e2+4*hf,4)} offset:{half*16384+tau*4096+e2*2048+hf*1024}")
        k("s_waitcnt lgkmcnt(0)")
    k("s_barrier")
    k(f"""
    v_and_b32 v24, 0x3e0, v{V_L16}
    v_lshrrev_b32 v24, 1, v24
    v_add_u32 v{V_WARM}, {L_OX}, v24
    """)

def step_offsets(k):
    k(f"""
    s_and_b32 s5, s{S_STEP}, 3
    s_lshl_b32 s5, s5, 13
    s_add_u32 s{S_MEMC}, s5, {MEMR}
    s_add_u32 s5, s{S_STEP}, 1
    s_and_b32 s5, s5, 3
    s_lshl_b32 s5, s5, 13
    s_add_u32 s{S_MEMN}, s5, {MEMR}
    s_add_u32 s5, s{S_STEP}, 3
    s_and_b32 s5, s5, 3
    s_lshl_b32 s5, s5, 13
    s_add_u32 s{S_MEMP}, s5, {MEMR}
    s_and_b32 s5, s{S_STEP}, 1
    s_lshl_b32 s6, s5, 18
    s_add_u32 s{S_INBC}, s6, {INBOX}
    s_add_u32 s{S_INBC1}, s{S_INBC}, 32768
    s_xor_b32 s6, s6, 0x40000
    s_add_u32 s{S_INBP}, s6, {INBOX}
    s_lshl_b32 s6, s5, 13
    s_add_u32 s{S_KSLOT}, s6, {L_KS}
    s_xor_b32 s6, s6, 8192
    s_lshl_b32 s7, s{S_W}, 11
    s_add_u32 s6, s6, s7
    s_add_u32 s{S_KSM0}, s6, {L_KS}
    s_lshl_b32 s5, s{S_H}, 6
    s_add_u32 s5, s5, s{S_STEP}
    s_add_u32 s5, s5, 1
    s_lshl_b32 s5, s5, 13
    s_add_u32 s{S_KFN}, s5, {KF}
    s_add_u32 s{S_VFN}, s5, {VF}
    s_lshl_b32 s5, s{S_STEP}, 5
    s_add_u32 s5, s5, s{S_H}
    s_lshl_b32 s5, s5, 11
    s_add_u32 s{S_KM}, s5, {KM}
    s_add_u32 s{S_VM}, s5, {VM}
    """)

def poll(k, P, name, r0, voff, soff, tmp, tmp2, cnt=None):
    L = f"{P}_{name}"
    k(f"s_mov_b32 s{S_SPIN}, 0")
    k.label(L)
    k(f"buffer_load_dwordx4 {v(r0,4)}, v{voff}, s[{WS}:{WS+3}], s{soff} offen sc1")
    k(f"buffer_load_dwordx4 {v(r0+4,4)}, v{voff}, s[{WS}:{WS+3}], s{soff} offen offset:1024 sc1")
    k(f"s_add_u32 s{S_SPIN}, s{S_SPIN}, 1")
    if cnt is not None: k(f"s_add_u32 s{cnt}, s{cnt}, 1")
    k(f"s_cmp_gt_u32 s{S_SPIN}, 20000")
    k(f"s_cbranch_scc1 {L}_fail")
    k("s_waitcnt vmcnt(0)")
    k(f"v_max3_u32 v{tmp}, v{r0}, v{r0+1}, v{r0+2}")
    k(f"v_max3_u32 v{tmp2}, v{r0+3}, v{r0+4}, v{r0+5}")
    k(f"v_max3_u32 v{tmp}, v{tmp}, v{r0+6}, v{r0+7}")
    k(f"v_max_u32 v{tmp}, v{tmp}, v{tmp2}")
    k(f"v_cmp_eq_u32 vcc, -1, v{tmp}")
    k(f"s_cbranch_vccnz {L}")
    k(f"s_branch {L}_ok")
    k.label(f"{L}_fail")
    k(f"s_add_u32 s{S_ERR}, s{S_ERR}, 1")
    k("s_waitcnt vmcnt(0)")
    k.label(f"{L}_ok")

def ilv(k, main, fill, start=0, per=1):
    fill = list(fill)
    for i, m in enumerate(main):
        k(m)
        if i >= start:
            for _ in range(per):
                if fill: k(fill.pop(0))
    for f in fill: k(f)

def smt(mat, t, u):
    acc = [AQ, AK, AV][mat] + 4 * t
    return f"v_smfmac_f32_16x16x64_bf16 {v(acc,4)}, {v(MA[u],4)}, {wfrag(mat,t,u)}, v{V_IDX}"

def chain_loop(k, P, stamps=False, dbg=True, D1=0, D2=0, X='', flags=False, sc=''):
    ST = Stamps(k, stamps)
    FT = 'ft' in X
    def ft(i):
        if FT: k(f"s_memrealtime s[{64+2*i}:{65+2*i}]")
    def ft_flush():
        if not FT: return
        L = k.newlabel(f"{P}_ft")
        k(f"s_waitcnt lgkmcnt(0)\ns_sub_u32 s5, s{S_STEP}, 21\ns_cmp_gt_u32 s5, 7\ns_cbranch_scc1 {L}")
        k(f"s_lshl_b32 s5, s5, 4\ns_lshl_b32 s6, s{S_W}, 7\ns_add_u32 s5, s5, s6\ns_add_u32 s5, s5, {L_OX + 2048}\nv_mov_b32 v112, s5")
        for i in range(4): k(f"v_mov_b32 v113, s{64+2*i}\nds_write_b32 v112, v113 offset:{4*i}")
        k("s_waitcnt lgkmcnt(0)")
        k.label(L)
    WSs = f"s[{WS}:{WS+3}]"
    c = (128 ** -0.5) * math.log2(math.e)
    S_ONES = 41 if not stamps else 62
    S_RST = 18
    S_FR, S_FC = 16, 17
    S_FNEED, S_FOFF, S_FNEED2, S_FOFF2 = 39, 38, 26, 31
    S_INBPv = 28
    S_KVMF = 60 if stamps else 42
    S_INB1, S_INB3 = (43 if not stamps else 61), 19
    INB_SLOT = 0x40000
    k(f"s_mov_b32 s{S_C}, {f2u(c):#x}")
    k(f"s_mov_b32 s{S_ONES}, 0x3f803f80")
    k(f"s_mov_b32 s{S_ERR}, 0")
    SENT = 116
    def flag_spin(tag):
        L = k.newlabel(f"{P}_{tag}")
        k(f"v_readfirstlane_b32 s5, v{V_FLV}")
        k(f"s_cmp_ge_u32 s5, s{S_FNEED}\ns_cbranch_scc1 {L}_ok")
        k(f"s_mov_b32 s{S_SPIN}, 0")
        k.label(L)
        k(f"v_mov_b32 v{V_FLV}, 0")
        k(f"buffer_load_dword v{V_FLV}, v{V_FLV}, {WSs}, s{S_FOFF} offen sc1")
        k(f"s_add_u32 s{S_SPIN}, s{S_SPIN}, 1\ns_cmp_gt_u32 s{S_SPIN}, 0x8000\ns_cbranch_scc1 {L}_fail")
        k(f"s_waitcnt vmcnt(0)\nv_readfirstlane_b32 s5, v{V_FLV}")
        k(f"s_cmp_ge_u32 s5, s{S_FNEED}\ns_cbranch_scc0 {L}\ns_branch {L}_ok")
        k.label(f"{L}_fail")
        k(f"s_add_u32 s{S_ERR}, s{S_ERR}, 1\ns_waitcnt vmcnt(0)")
        k.label(f"{L}_ok")
    def flag_next(seg_plus):
        k(f"s_lshl_b32 s5, s{S_H}, 4\ns_lshl_b32 s{S_FOFF2}, s{S_FR}, 2\ns_add_u32 s{S_FOFF2}, s{S_FOFF2}, s5")
        k(f"s_add_u32 s{S_FOFF2}, s{S_FOFF2}, {FLAGS + F_KV}")
        k(f"s_add_u32 s5, s{S_STEP}, {seg_plus}\ns_cmp_ge_u32 s5, {NSEG}\ns_cselect_b32 s{S_FNEED2}, 0, s{S_FC}")
        k(f"s_add_u32 s{S_FR}, s{S_FR}, 1\ns_cmp_eq_u32 s{S_FR}, {RQ}\ns_cselect_b32 s{S_FR}, 0, s{S_FR}\ns_addc_u32 s{S_FC}, s{S_FC}, 0")
    S_KSM0v = 29 + 0
    def k_dma01():
        return [f"buffer_load_dwordx4 v{V_MEMP}, {WSs}, s{S_KFN} offen lds",
                f"buffer_load_dwordx4 v{V_MEMP}, {WSs}, s{S_KFN} offen offset:1024 lds"]
    S_KM0 = 28
    S_KRD = 61 if not stamps else 63
    k(f"""
    s_mov_b32 s{S_STEP}, 0
    s_mov_b32 s{S_MEMC}, {MEMR}
    s_mov_b32 s{S_MEMN}, {MEMR + 8192}
    s_mov_b32 s{S_MEMP}, {MEMR + 3*8192}
    s_mov_b32 s{S_INBC}, {INBOX}
    s_mov_b32 s{S_INBC1}, {INBOX + 32768}
    s_mov_b32 s{S_INB1}, {INBOX + 16384}
    s_mov_b32 s{S_INB3}, {INBOX + 49152}
    s_lshl_b32 s5, s{S_H}, 13
    s_add_u32 s{S_RST}, s5, {INBOX + 2*INB_SLOT}
    s_lshl_b32 s5, s{S_H}, 11
    s_add_u32 s{S_KM}, s5, {KM}
    s_add_u32 s{S_VM}, s5, {VM}
    s_lshl_b32 s5, s{S_H}, 19
    s_add_u32 s{S_KFN}, s5, {KF}
    s_lshl_b32 s5, s{S_H}, 4
    s_add_u32 s{S_KVMF}, s5, {FLAGS + F_KVM}
    s_lshl_b32 s5, s{S_W}, 11
    s_add_u32 s{S_KM0}, s5, {L_KS}
    s_mov_b32 s{S_KRD}, {L_KS}
    """)
    if flags and 'merged' in X:
        k(f"v_lshlrev_b32 v56, 3, v{V_L16}\ns_lshl_b32 s5, s{S_H}, 13\ns_add_u32 s5, s5, {INBOX}\ns_cmp_eq_u32 s{S_W}, 3\ns_cbranch_scc1 {P}_pfm")
        k(f"s_lshl_b32 s6, s{S_W}, 18\ns_add_u32 s5, s5, s6\nbuffer_load_dword v57, v56, {WSs}, s5 offen sc1\ns_branch {P}_pfd")
        k.label(f"{P}_pfm")
        k(f"s_mov_b32 s5, {MEMR}")
        for i in range(4):
            k(f"buffer_load_dword v{57+i}, v56, {WSs}, s5 offen sc1")
            if i < 3: k("s_add_u32 s5, s5, 8192")
        k.label(f"{P}_pfd")
        Lf = f"{P}_fr"
        k("s_mov_b32 s72, 0")
        k.label(Lf)
        k(f"v_readfirstlane_b32 s5, v114\ns_cmp_ge_u32 s5, {N_FLAG_WGS}\ns_cbranch_scc1 {Lf}_ok")
        k(f"s_add_u32 s72, s72, 1\ns_cmp_gt_u32 s72, 0x20000\ns_cbranch_scc1 {Lf}_ok")
        k(f"s_sleep 4\nbuffer_load_dword v114, off, s[{DBG}:{DBG+3}], 0 offset:{DBG_FLAGS} sc1\ns_waitcnt vmcnt(0)\ns_branch {Lf}")
        k.label(f"{Lf}_ok")
    if flags:
        k(f"s_lshl_b32 s5, s{S_H}, 4\ns_add_u32 s{S_FOFF}, s5, {FLAGS + F_KV}\ns_mov_b32 s{S_FNEED}, 1\nv_mov_b32 v{V_FLV}, 0")
        flag_spin("f0")
    k(f"s_mov_b32 m0, s{S_KM0}")
    for x in k_dma01(): k(x)
    if flags:
        k(f"s_add_u32 s{S_FOFF}, s{S_FOFF}, 4\nv_mov_b32 v{V_FLV}, 0")
        k(f"buffer_load_dword v{V_FLV}, v{V_FLV}, {WSs}, s{S_FOFF} offen sc1")
        k(f"s_mov_b32 s{S_FR}, {2 % RQ}\ns_mov_b32 s{S_FC}, {2 // RQ + 1}")
        flag_next(2)
    k(f"s_add_u32 s{S_T0}, s{S_KFN}, {VF - KF}")
    k(f"s_add_u32 s{S_KFN}, s{S_KFN}, 8192\ns_xor_b32 s{S_KM0}, s{S_KM0}, 8192")
    for r in range(AQ, AQ + 24): k(f"v_mov_b32 v{r}, 0")
    for r in range(4): k(f"v_mov_b32 v{SENT+r}, -1")
    k("s_waitcnt vmcnt(0)")
    ST.init()
    cold = []
    MB = VSEG
    def mem_poll_issue(r=MA[0]):
        k(f"buffer_load_dwordx4 {v(r,4)}, v{V_MEMP}, {WSs}, s{S_MEMC} offen sc1")
        k(f"buffer_load_dwordx4 {v(r+4,4)}, v{V_MEMP}, {WSs}, s{S_MEMC} offen offset:1024 sc1")
    def mem_check(r):
        k(f"v_max3_u32 v{V_TMP}, v{r}, v{r+1}, v{r+2}")
        k(f"v_max3_u32 v{MA[2]}, v{r+3}, v{r+4}, v{r+5}")
        k(f"v_max3_u32 v{V_TMP}, v{V_TMP}, v{r+6}, v{r+7}")
        k(f"v_max_u32 v{V_TMP}, v{V_TMP}, v{MA[2]}")
        k(f"v_cmp_eq_u32 vcc, -1, v{V_TMP}")
    def k_frag_reads():
        k(f"v_add_u32 v{V_TMP}, s{S_KRD}, v{V_L16}")
        for T in range(2):
            for ks in range(4): k(f"ds_read_b128 {v(KSEG+16*T+4*ks,4)}, v{V_TMP} offset:{(4*T+ks)*1024}")
    k("s_barrier")
    k(f"s_mov_b32 s{S_SPIN}, 0")
    mem_poll_issue()
    k_frag_reads()
    mem_poll_issue(MB)
    k.label(f"{P}_step")
    k("s_waitcnt vmcnt(2)")
    ST(0)
    ft(0)
    if common.TRACE_ON: k("s_memrealtime s[96:97]")
    mem_check(MA[0])
    own = [smt(mat, t, u) for u in (0, 1) for mat in range(3) for t in range(2)]
    k(f"s_cbranch_vccnz {P}_pm_retry")
    def cold_pm():
        k.label(f"{P}_pm_retry")
        mem_poll_issue()
        if stamps: k("s_add_u32 s58, s58, 1")
        k("s_waitcnt vmcnt(2)")
        mem_check(MB)
        k(f"s_cbranch_vccz {P}_pm_b")
        mem_poll_issue(MB)
        k(f"s_add_u32 s{S_SPIN}, s{S_SPIN}, 1")
        k(f"s_cmp_gt_u32 s{S_SPIN}, 100000\ns_cbranch_scc0 {P}_step")
        k(f"s_add_u32 s{S_ERR}, s{S_ERR}, 1\ns_waitcnt vmcnt(0)\ns_branch {P}_pm_ok")
        k.label(f"{P}_pm_b")
        for r in range(8): k(f"v_mov_b32 v{MA[0]+r}, v{MB+r}")
        k(f"s_branch {P}_pm_ok")
    cold.append(cold_pm)
    k.label(f"{P}_pm_ok")
    k(f"ds_write_b128 v{V_MEMW}, {v(MA[0],4)}")
    k(own[0])
    k(f"ds_write_b128 v{V_MEMW}, {v(MA[1],4)} offset:1024")
    if dbg:
        k(f"s_lshl_b32 s5, s{S_STEP}, 13\ns_add_u32 s5, s5, {MEMDBG}")
        k(f"buffer_store_dwordx4 {v(MA[0],4)}, v{V_MEMP}, {WSs}, s5 offen")
        k(f"buffer_store_dwordx4 {v(MA[1],4)}, v{V_MEMP}, {WSs}, s5 offen offset:1024")
    k(f"buffer_load_dwordx4 {v(VSEG,4)}, v{V_MEMP}, {WSs}, s{S_T0} offen")
    k(own[1])
    if flags: k(f"v_readfirstlane_b32 s5, v{V_FLV}")
    k(own[2])
    k(f"buffer_load_dwordx4 {v(VSEG+4,4)}, v{V_MEMP}, {WSs}, s{S_T0} offen offset:1024")
    if flags: k(f"s_cmp_ge_u32 s5, s{S_FNEED}")
    k(own[3])
    if flags:
        k(f"s_cbranch_scc0 {P}_fs_slow")
        def cold_fs():
            k.label(f"{P}_fs_slow")
            flag_spin("fs")
            k(f"s_branch {P}_fs_ok")
        cold.append(cold_fs)
        k.label(f"{P}_fs_ok")
    k(own[4]); k(own[5])
    k("s_waitcnt lgkmcnt(0)\ns_barrier")
    ST(1)
    rd = [f"ds_read_b128 {v(MA[uu],4)}, v{V_MR + uu//2 - 1} offset:{1024*(uu&1)}" for uu in range(2, 8)]
    k(rd[0])
    ilv(k, own[6:], rd[1:])
    ST(2)
    if flags: k(f"v_mov_b32 v{V_TMP}, s{S_STEP}")
    for u in range(2, 8):
        k(f"s_waitcnt lgkmcnt({7 - u})")
        for t in range(2):
            k(smt(0, t, u))
        if u == 2 and flags:
            k(f"buffer_store_dword v{V_TMP}, off, {WSs}, s{S_KVMF} sc1")
        if u == 3: k(f"buffer_store_dwordx4 {v(SENT,4)}, v{V_MEMP}, {WSs}, s{S_RST} offen {sc}")
        if u == 5: k(f"buffer_store_dwordx4 {v(SENT,4)}, v{V_MEMP}, {WSs}, s{S_RST} offen offset:1024 {sc}")
    qe = [f"v_add_f32 v{AQ}, v{AQ}, v{AQ+1}", f"v_add_f32 v{AQ+2}, v{AQ+2}, v{AQ+3}",
          f"v_add_f32 v{AQ+4}, v{AQ+4}, v{AQ+5}", f"v_add_f32 v{AQ+6}, v{AQ+6}, v{AQ+7}",
          f"v_cvt_pk_bf16_f32 v{AQ}, v{AQ}, v{AQ+2}", f"v_cvt_pk_bf16_f32 v{AQ+4}, v{AQ+4}, v{AQ+6}",
          f"ds_write_b16 v{V_QW}, v{AQ}", f"ds_write_b16_d16_hi v{V_QW}, v{AQ} offset:{RSX}",
          f"ds_write_b16 v{V_QW}, v{AQ+4} offset:8", f"ds_write_b16_d16_hi v{V_QW}, v{AQ+4} offset:{RSX+8}"]
    km = [smt(1, t, u) for u in range(2, 8) for t in range(2)]
    for i, m in enumerate(km):
        k(m)
        if 1 <= i <= 5:
            for _ in range(2):
                if qe: k(qe.pop(0))
        if i == 6:
            k(f"s_mov_b32 m0, s{S_KM0}"); k(k_dma01()[0])
        if i == 7: k(k_dma01()[1])
        if i == 8 and flags:
            k(f"buffer_load_dword v{V_FLV}, off, {WSs}, s{S_FOFF2} sc1")
        if i == 9:
            k(f"s_waitcnt vmcnt({8 if flags else 6}) lgkmcnt(0)\ns_barrier")
            for ks in range(2): k(f"ds_read_b128 {v(QB[ks],4)}, v{V_QR} offset:{64*ks}")
        if i == 10:
            for ks in range(2, 4): k(f"ds_read_b128 {v(QB[ks],4)}, v{V_QR} offset:{64*ks}")
    ST(3)
    vm = [smt(2, t, u) for u in range(2, 8) for t in range(2)]
    ke = [f"v_add_f32 v{AK}, v{AK}, v{AK+1}", f"v_add_f32 v{AK+2}, v{AK+2}, v{AK+3}",
          f"v_add_f32 v{AK+4}, v{AK+4}, v{AK+5}", f"v_add_f32 v{AK+6}, v{AK+6}, v{AK+7}",
          f"v_cvt_pk_bf16_f32 v{AK}, v{AK}, v{AK+2}", f"v_cvt_pk_bf16_f32 v{AK+4}, v{AK+4}, v{AK+6}"]
    D = L_KX - L_QX
    kw = [f"ds_write_b16 v{V_QW}, v{AK} offset:{D}", f"ds_write_b16_d16_hi v{V_QW}, v{AK} offset:{D+RSX}",
          f"ds_write_b16 v{V_QW}, v{AK+4} offset:{D+8}", f"ds_write_b16_d16_hi v{V_QW}, v{AK+4} offset:{D+RSX+8}"]
    k(vm[0]); k(vm[1])
    k(ke[0]); k(ke[1]); k(vm[2]); k(ke[2]); k(ke[3]); k(vm[3]); k(ke[4]); k(ke[5])
    k(kw[0]); k(kw[1]); k(vm[4]); k(kw[2]); k(kw[3])
    k("s_waitcnt lgkmcnt(4)")
    sg = []
    for ks in range(4):
        for T in range(2):
            acc = AQ + 4 * T
            sg.append(f"v_mfma_f32_16x16x32_bf16 {v(acc,4)}, {v(KSEG+16*T+4*ks,4)}, {v(QB[ks],4)}, {'0' if ks == 0 else v(acc,4)}")
    t2i = [f"v_mov_b32 v{AK}, 0", f"v_mov_b32 v{AK+1}, 0", f"v_mov_b32 v{AK+2}, 0xf149f2ca", f"v_mov_b32 v{AK+3}, 0xf149f2ca",
           f"s_lshl_b32 s5, s{S_W}, 6", f"v_add_u32 v{V_TMP}, s5, v{V_KR}"]
    for i in range(4): k(sg[i])
    k("s_waitcnt lgkmcnt(0)\ns_barrier")
    ST(4)
    for ks in range(4): k(f"ds_read_b128 {v(KA[ks] + 0,4)}, v{V_KR} offset:{64*ks}") if False else None
    ilv(k, sg[4:], t2i, per=2)
    for ks in range(4): k(f"ds_read_b128 {v(KA[ks],4)}, v{V_KR} offset:{64*ks}")
    k(f"ds_read_b128 {v(AK+4,4)}, v{V_TMP}")
    def wo_off(f):
        tau, eb = f >> 2, f & 3
        return (eb >> 1) * 16384 + tau * 4096 + (eb & 1) * 2048
    def wslot(f): return WS10 if f == 0 else WSLOT[(f - 1) % 9]
    def wo_read(f):
        slot = wslot(f)
        return [f"ds_read_b128 {v(slot+4*half,4)}, v{V_WO} offset:{wo_off(f)+half*1024}" for half in range(2)]
    w01 = wo_read(1) + wo_read(2)
    S = [AQ + i for i in range(8)] + [AK, AK + 1]
    M, M2 = AK + 4, AK + 5
    X1, X2 = V_TMP, MA[0] + 0
    for i, m in enumerate(vm[5:]):
        k(m)
        if i >= 3: k(w01[i - 3])
    k("s_waitcnt lgkmcnt(5)")
    ve = [f"v_add_f32 v{AV}, v{AV}, v{AV+1}", f"v_add_f32 v{AV+2}, v{AV+2}, v{AV+3}",
          f"v_add_f32 v{AV+4}, v{AV+4}, v{AV+5}", f"v_add_f32 v{AV+6}, v{AV+6}, v{AV+7}",
          f"v_cvt_pk_bf16_f32 v{AV}, v{AV}, v{AV+2}", f"v_cvt_pk_bf16_f32 v{AV+1}, v{AV+4}, v{AV+6}"]
    ms = [f"v_mfma_f32_16x16x32_bf16 {v(AK,4)}, {v(KA[ks],4)}, {v(QB[ks],4)}, {v(AK,4)}" for ks in range(4)]
    X1, X2 = V_TMP, AV + 6
    k(ms[0]); k(f"v_max3_f32 v{X1}, v{S[0]}, v{S[1]}, v{S[2]}"); k(f"v_max3_f32 v{X1}, v{X1}, v{S[3]}, v{S[4]}")
    k(ms[1]); k(f"v_max3_f32 v{X1}, v{X1}, v{S[5]}, v{S[6]}"); k(f"v_max_f32 v{X1}, v{X1}, v{S[7]}")
    k(ms[2]); k(ve[0]); k(ve[1])
    k(ms[3]); k(ve[2]); k(ve[3]); k(ve[4]); k(ve[5])
    k("s_waitcnt lgkmcnt(4)")
    kms = "" if 'plainkm' in X else "sc1"
    if 'nokm' not in X:
        k(f"buffer_store_dwordx4 {v(AK+4,4)}, v{V_KMO}, {WSs}, s{S_KM} offen {kms}")
        k(f"buffer_store_dwordx2 {v(AV,2)}, v{V_VMO}, {WSs}, s{S_VM} offen {kms}")
    else:
        k(f"buffer_store_dwordx4 {v(AK+4,4)}, v{V_KMO}, {WSs}, s{S_RST} offen offset:2048") if False else k("s_nop 0")
    ST(5)
    rest = [x for f in (3, 4, 5, 6, 7, 8) for x in wo_read(f)]
    k(f"v_mov_b32 v{AV+2}, v{AV+1}\nv_mov_b32 v{AV+3}, 0")
    k(f"v_max3_f32 v{M}, v{X1}, v{S[8]}, v{S[9]}")
    k(f"v_mov_b32 v{M2}, v{M}")
    k(f"v_mov_b32 v{QB[0]}, s{S_ONES}\nv_mov_b32 v{QB[0]+1}, s{S_ONES}")
    k(f"v_permlane32_swap_b32 v{M}, v{M2}")
    k(f"v_max_f32 v{M}, v{M}, v{M2}")
    k(f"v_mov_b32 v{M2}, v{M}")
    k(f"v_mov_b32 v{QB[0]+2}, s{S_ONES}\nv_mov_b32 v{QB[0]+3}, s{S_ONES}")
    k(f"v_permlane16_swap_b32 v{M}, v{M2}")
    k(f"v_max_f32 v{M}, v{M}, v{M2}")
    k(f"v_mul_f32 v{M}, {f2u(-c):#x}, v{M}")
    k(f"s_cmp_eq_u32 s{S_STEP}, {NSEG-1}")
    for r in S[::2]:
        k(f"v_pk_fma_f32 {v(r,2)}, {v(r,2)}, s[{S_C}:{S_C+1}], {v(M,2)} op_sel_hi:[1,0,0]")
    for i, r in enumerate(S):
        k(f"v_exp_f32 v{r}, v{r}")
        if i % 2 == 1 and rest: k(rest.pop(0))
    for i in range(4): k(f"v_cvt_pk_bf16_f32 v{AQ+i}, v{AQ+2*i}, v{AQ+2*i+1}")
    k(f"v_cvt_pk_bf16_f32 v{AK}, v{AK}, v{AK+1}\nv_mov_b32 v{AK+1}, 0")
    ST(6)
    O0, O1 = AQ + 4, AV + 4
    Lr, L2 = AK + 2, AK + 3
    k(f"s_waitcnt vmcnt({(8 if flags else 6) - (2 if 'nokm' in X else 0)})")
    ONES = QB[0]
    LA = AK + 4
    k(f"v_mfma_f32_16x16x32_bf16 {v(LA,4)}, {v(ONES,4)}, {v(AQ,4)}, 0")
    k(f"s_cbranch_scc1 {P}_done")
    rest += wo_read(9)
    k(f"v_mfma_f32_16x16x32_bf16 {v(O0,4)}, {v(VSEG,4)}, {v(AQ,4)}, 0")
    k(rest.pop(0)); k(rest.pop(0))
    k(f"v_mfma_f32_16x16x32_bf16 {v(O1,4)}, {v(VSEG+4,4)}, {v(AQ,4)}, 0")
    W8 = rest[-2:]; rest = rest[:-2]
    k(rest.pop(0)); k(rest.pop(0))
    k(f"v_mfma_f32_16x16x16_bf16 {v(LA,4)}, {v(ONES,2)}, {v(AK,2)}, {v(LA,4)}")
    k(rest.pop(0)); k(rest.pop(0))
    k(f"v_mfma_f32_16x16x16_bf16 {v(O0,4)}, {v(AV,2)}, {v(AK,2)}, {v(O0,4)}")
    for x in rest: k(x)
    k(f"v_mfma_f32_16x16x16_bf16 {v(O1,4)}, {v(AV+2,2)}, {v(AK,2)}, {v(O1,4)}")
    k(f"v_rcp_f32 v{Lr}, v{LA}")
    for x in W8: k(x)
    for r in (0, 2): k(f"v_pk_mul_f32 {v(O0+r,2)}, {v(O0+r,2)}, {v(Lr,2)} op_sel_hi:[1,0]")
    k(f"v_cvt_pk_bf16_f32 v{O0}, v{O0}, v{O0+1}\nv_cvt_pk_bf16_f32 v{O0+1}, v{O0+2}, v{O0+3}")
    k(f"ds_write_b64 v{V_OW}, {v(O0,2)}")
    for r in (0, 2): k(f"v_pk_mul_f32 {v(O1+r,2)}, {v(O1+r,2)}, {v(Lr,2)} op_sel_hi:[1,0]")
    k(f"v_cvt_pk_bf16_f32 v{O1}, v{O1}, v{O1+1}\nv_cvt_pk_bf16_f32 v{O1+1}, v{O1+2}, v{O1+3}")
    k(f"ds_write_b64 v{V_OW}, {v(O1,2)} offset:256")
    ST(7)
    for x in wo_read(0): k(x)
    for r in range(4): k(f"v_mov_b32 v{WACC[1]+r}, 0")
    k("s_waitcnt lgkmcnt(2)\ns_barrier")
    for eb in range(4): k(f"ds_read_b128 {v(OA[eb],4)}, v{V_WARM} offset:{512*eb}")
    for r in range(4): k(f"v_mov_b32 v{WACC[0]+r}, 0")
    ST(8)
    inflight = [('w', 0), ('w', 0), ('oa', 0), ('oa', 1), ('oa', 2), ('oa', 3)]
    def wait_for(tag):
        if tag in inflight:
            last = max(i for i, x in enumerate(inflight) if x == tag)
            k(f"s_waitcnt lgkmcnt({len(inflight) - 1 - last})")
            del inflight[:last + 1]
    def epi(tau):
        a0 = WACC[tau]
        return [f"v_cvt_pk_bf16_f32 v{a0}, v{a0}, v{a0+2}", f"v_cvt_pk_bf16_f32 v{a0+1}, v{a0+1}, v{a0+3}"]
    S_INB = [S_INBC, S_INB1, S_INBC1, S_INB3]
    def pstore(tau): return f"buffer_store_dwordx2 {v(WACC[tau],2)}, v{V_PART}, {WSs}, s{S_INB[tau]} offen {sc}"
    for f in range(16):
        tau, eb = f >> 2, f & 3
        wait_for(('oa', eb)); wait_for(('w', f))
        k(f"v_smfmac_f32_16x16x64_bf16 {v(WACC[tau],4)}, {v(OA[eb],4)}, {v(wslot(f),8)}, v{V_IDX}")
        if 1 <= f and f + 9 < 16:
            for x in wo_read(f + 9): k(x)
            inflight += [('w', f + 9)] * 2
        for z in {1: (0, 4), 2: (1, 5), 3: (2,), 4: (3,), 7: (6,), 8: (7,)}.get(f, ()): k(f"v_mov_b32 v{WS10 + z}, 0")
        if f in (5, 9, 13): k(epi((f - 5) // 4)[0])
        if f in (6, 10, 14): k(epi((f - 6) // 4)[1])
        if f in (7, 11, 15): k(pstore((f - 7) // 4))
    for x in epi(3): k(x)
    k(pstore(3))
    ST(9)
    ft(1)
    if common.TRACE_ON:
        k(f"s_waitcnt lgkmcnt(0)\ns_lshl_b32 s5, s{S_STEP}, 2\ns_add_u32 s5, s5, {L_OX + 2048 + 1024}\nv_mov_b32 v56, s5\nv_mov_b32 v57, s96\nds_write_b32 v56, v57")
    for r in range(AQ, AQ + 8): k(f"v_mov_b32 v{r}, 0")
    for r in range(4): k(f"v_mov_b32 v{SENT+r}, -1")
    k(f"s_mov_b32 s{S_T1}, s{S_MEMN}\ns_mov_b32 s{S_T2}, s{S_INBC}\ns_mov_b32 s7, s{S_MEMP}")
    k(f"""
    s_mov_b32 s{S_MEMP}, s{S_MEMC}
    s_mov_b32 s{S_MEMC}, s{S_MEMN}
    s_add_u32 s5, s{S_MEMN}, 0x2000
    s_and_b32 s5, s5, 0x7fff
    s_or_b32 s{S_MEMN}, s5, {MEMR}
    s_lshl_b32 s6, s{S_H}, 13
    s_add_u32 s{S_RST}, s{S_INBC}, s6
    s_add_u32 s5, s{S_INBC}, {INB_SLOT}
    s_cmp_ge_u32 s5, {INBOX + 3*INB_SLOT}
    s_cselect_b32 s{S_INBC}, {INBOX}, s5
    s_add_u32 s{S_INBC1}, s{S_INBC}, 32768
    s_add_u32 s{S_INB1}, s{S_INBC}, 16384
    s_add_u32 s{S_INB3}, s{S_INBC}, 49152
    s_add_u32 s{S_KM}, s{S_KM}, 65536
    s_add_u32 s{S_VM}, s{S_VM}, 65536
    s_add_u32 s{S_T0}, s{S_KFN}, {VF - KF}
    s_add_u32 s{S_KFN}, s{S_KFN}, {0 if 'fixkv' in X else 8192}
    s_xor_b32 s{S_KM0}, s{S_KM0}, 8192
    s_xor_b32 s{S_KRD}, s{S_KRD}, 8192
    """)
    assert MEMR == 0x10000 and L_KS % 16384 == 0
    if flags:
        k(f"s_mov_b32 s{S_FOFF}, s{S_FOFF2}\ns_mov_b32 s{S_FNEED}, s{S_FNEED2}")
        flag_next(3)
    k(f"s_add_u32 s{S_STEP}, s{S_STEP}, 1")
    k(f"s_cmp_ge_u32 s{S_W}, 2\ns_cbranch_scc1 {P}_w23")
    if D1: k(f"s_sleep {D1}")
    ST(12)
    L = f"{P}_pi"
    IA, IB = 56, 80
    def inb_issue(r):
        for i in range(4):
            k(f"buffer_load_dwordx4 {v(r+4*i,4)}, v{V_INB}, {WSs}, s{S_T2} offen offset:{1024*i} sc1")
    def inb_reduce(r, pend):
        R = lambda i: r + i
        chk = [f"v_max3_u32 v76, v{R(0)}, v{R(1)}, v{R(2)}", f"v_max3_u32 v77, v{R(3)}, v{R(4)}, v{R(5)}", f"v_max3_u32 v76, v76, v{R(6)}, v{R(7)}",
               f"v_max3_u32 v77, v77, v{R(8)}, v{R(9)}", f"v_max3_u32 v76, v76, v{R(10)}, v{R(11)}", f"v_max3_u32 v77, v77, v{R(12)}, v{R(13)}",
               f"v_max3_u32 v76, v76, v{R(14)}, v{R(15)}", "v_max_u32 v76, v76, v77"]
        k(f"s_waitcnt vmcnt({pend+3})")
        k(f"v_mfma_f32_16x16x32_bf16 v[72:75], {v(V_SEL,4)}, {v(r,4)}, 0"); k(chk[0])
        k(f"s_waitcnt vmcnt({pend+2})")
        k(f"v_mfma_f32_16x16x32_bf16 v[72:75], {v(V_SEL,4)}, {v(r+4,4)}, v[72:75]"); k(chk[1]); k(chk[2])
        k(f"s_waitcnt vmcnt({pend+1})")
        k(f"v_mfma_f32_16x16x32_bf16 v[72:75], {v(V_SEL,4)}, {v(r+8,4)}, v[72:75]"); k(chk[3]); k(chk[4])
        k(f"s_waitcnt vmcnt({pend})")
        k(chk[5]); k(chk[6]); k(chk[7])
        k(f"v_cmp_eq_u32 vcc, -1, v76")
        k(f"v_mfma_f32_16x16x32_bf16 v[72:75], {v(V_SEL,4)}, {v(r+12,4)}, v[72:75]")
    k(f"s_mov_b32 s{S_SPIN}, 0")
    inb_issue(IA)
    for r in range(AQ + 8, AQ + 24): k(f"v_mov_b32 v{r}, 0")
    if 'gap2' in X: k("s_sleep 1")
    inb_issue(IB)
    k.label(L)
    inb_reduce(IA, 4)
    k(f"s_cbranch_vccnz {L}_retry")
    def cold_pi():
        k.label(f"{L}_retry")
        inb_issue(IA)
        if stamps: k("s_add_u32 s59, s59, 1")
        inb_reduce(IB, 4)
        k(f"s_cbranch_vccz {L}_ok")
        inb_issue(IB)
        k(f"s_add_u32 s{S_SPIN}, s{S_SPIN}, 1")
        k(f"s_cmp_gt_u32 s{S_SPIN}, 100000\ns_cbranch_scc0 {L}")
        k(f"s_add_u32 s{S_ERR}, s{S_ERR}, 1\ns_waitcnt vmcnt(0)\ns_branch {L}_ok")
    cold.append(cold_pi)
    k.label(f"{L}_ok")
    ST(10)
    ft(2)
    k("s_mov_b32 vcc_lo, 0xff00ff00\ns_mov_b32 vcc_hi, 0xff00ff00")
    for r in range(4):
        k(f"v_add_f32_dpp v{72+r}, v{72+r}, v{72+r} row_ror:8 row_mask:0xf bank_mask:0xf")
    k("v_cvt_pk_bf16_f32 v72, v72, v73\nv_cvt_pk_bf16_f32 v73, v74, v75")
    k("v_cndmask_b32 v72, v72, v73, vcc")
    k(f"buffer_store_dword v72, v{V_PUB}, {WSs}, s{S_T1} offen {sc}")
    k.label(f"{P}_join")
    k("s_barrier")
    ST(11)
    ft(3)
    ft_flush()
    ST.collect()
    if D2: k(f"s_sleep {D2}")
    k(f"s_mov_b32 s{S_SPIN}, 0")
    mem_poll_issue()
    k("s_waitcnt vmcnt(3)")
    k_frag_reads()
    if 'gap' in X: k("s_sleep 1")
    mem_poll_issue(MB)
    k(f"s_branch {P}_step")
    k.label(f"{P}_w23")
    if 'ackt' in X: k("s_waitcnt vmcnt(0)\ns_memtime s[88:89]")
    for r in range(AQ + 8, AQ + 24): k(f"v_mov_b32 v{r}, 0")
    k("s_waitcnt vmcnt(2)")
    k(f"buffer_store_dword v{SENT}, v{V_PUB}, {WSs}, s7 offen {sc}")
    if stamps: k("s_memtime s[84:85]" if 'ackt' in X else "s_memtime s[88:89]\ns_memtime s[84:85]")
    k(f"s_branch {P}_join")
    for cb in cold: cb()
    k.label(f"{P}_done")
    k("s_waitcnt vmcnt(0)\ns_barrier")
    if flags:
        k(f"s_cmp_lg_u32 s{S_W}, 2\ns_cbranch_scc1 {P}_nfin\nv_mov_b32 v{MA[0]}, {NSEG}\ns_mov_b64 exec, 1")
        k(f"buffer_store_dword v{MA[0]}, v{V_L16}, {WSs}, s{S_KVMF} offen sc1")
        k("s_mov_b64 exec, -1\ns_waitcnt vmcnt(0)")
        k.label(f"{P}_nfin")
    if FT:
        k(f"s_waitcnt lgkmcnt(0)\ns_barrier\nv_lshrrev_b32 v56, 2, v{V_L16}\ns_lshl_b32 s6, s{S_W}, 8\nv_add_u32 v56, s6, v56")
        k(f"v_add_u32 v57, {L_OX + 2048}, v56\nds_read_b32 v58, v57\ns_waitcnt lgkmcnt(0)")
        k(f"s_lshl_b32 s5, s{S_H}, 10\ns_add_u32 s5, s5, {TRACE}\nbuffer_store_dword v58, v56, {WSs}, s5 offen\ns_waitcnt vmcnt(0)")
    if stamps and flags:
        k(f"s_lshl_b32 s5, s2, 10\ns_lshl_b32 s6, s{S_W}, 6\ns_add_u32 s5, s5, s6\ns_add_u32 s5, s5, {TRACE + 256}\nv_mov_b32 v56, 0")
        for j in range(4):
            for r in range(4): k(f"v_mov_b32 v{60+4*j+r}, s{44+4*j+r}")
            k(f"buffer_store_dwordx4 {v(60+4*j,4)}, v56, {WSs}, s5 offen offset:{16*j}")
        k("s_waitcnt vmcnt(0)")
    if common.TRACE_ON:
        k(f"s_memrealtime s[98:99]\ns_waitcnt lgkmcnt(0)\nv_mov_b32 v56, {L_OX + 2048 + 1024 + 63*4}\nv_mov_b32 v57, s98\nds_write_b32 v56, v57\ns_waitcnt lgkmcnt(0)")
        k(f"v_lshrrev_b32 v56, 2, v{V_L16}\nv_add_u32 v57, {L_OX + 2048 + 1024}, v56\nds_read_b32 v58, v57\ns_waitcnt lgkmcnt(0)")
        k(f"s_lshl_b32 s5, s2, 10\ns_add_u32 s5, s5, {TRACE}\nbuffer_store_dword v58, v56, {WSs}, s5 offen\ns_waitcnt vmcnt(0)")
    return ST


def xcc_decide(k, P, slow_label):
    L = f"{P}_xd"
    k("s_mov_b32 s72, 0")
    k.label(L)
    k("v_readfirstlane_b32 s70, v112\nv_readfirstlane_b32 s71, v113")
    k(f"s_lshr_b32 s5, s71, 16\ns_cmp_ge_u32 s5, 32\ns_cbranch_scc1 {L}_all")
    k(f"s_add_u32 s72, s72, 1\ns_cmp_gt_u32 s72, 0x20000\ns_cbranch_scc1 {slow_label}")
    k(f"s_sleep 4\nbuffer_load_dwordx2 v[112:113], off, s[{DBG}:{DBG+3}], 0 sc1\ns_waitcnt vmcnt(0)\ns_branch {L}")
    k.label(f"{L}_all")
    k("s_getreg_b32 s5, hwreg(HW_REG_XCC_ID, 0, 4)\ns_mul_i32 s5, s5, 6\ns_lshr_b64 s[70:71], s[70:71], s5\ns_and_b32 s5, s70, 63")
    k(f"s_cmp_lg_u32 s5, 32\ns_cbranch_scc1 {slow_label}")
```

```python
import sys
from common import *
import chain, qkv, gemmk, ffn1, ln

NAME = "recurrent_scan__memory_aug_recurrent_mem_tr__dense_activation_mish__prompt_kernel"

def build(stamps=False, opts=''):
    import common
    common.TRACE_ON = 'trace' in opts
    import re as _re
    gemmk.OUT_SC = 'sc1' if 'outsc1' in opts else ('nt' if 'outnt' in opts else '')
    mm = _re.search(r'D=(\d+),(\d+),(\w*)', opts)
    D1, D2, XO = (int(mm.group(1)), int(mm.group(2)), mm.group(3)) if mm else (0, 3, 'G1H0')
    k = K()
    k(f"""
    s_cmp_ge_u32 s2, 256
    s_cbranch_scc1 mg_exit
    {"s_memrealtime s[78:79]" if 'trace' in opts else ""}
    {"s_and_b32 s5, s2, 7" if 'spread' not in opts else "s_lshr_b32 s5, s2, 5"}
    {"s_lshr_b32 s6, s2, 3" if 'spread' not in opts else "s_and_b32 s6, s2, 31"}
    s_cmp_eq_u32 s5, 0
    s_cbranch_scc1 mg_chain
    s_cmp_le_u32 s5, 2
    s_cbranch_scc1 mg_wo
    s_cmp_eq_u32 s5, 3
    s_cbranch_scc1 mg_f2
    s_sub_u32 s5, s5, 4
    s_cmp_lt_u32 s6, {8*RQ}
    s_cbranch_scc0 mg_f1sel
    s_mul_i32 s5, s5, {8*RQ}
    s_add_u32 s5, s5, s6
    s_branch mg_qkv
mg_f1sel:
    s_sub_u32 s6, s6, {8*RQ}
    s_mul_i32 s5, s5, {32 - 8*RQ}
    s_add_u32 s5, s5, s6
    s_cmp_lt_u32 s5, {7*RH}
    s_cbranch_scc1 mg_f1
    s_endpgm
    """)
    k.label("mg_chain")
    k("s_mov_b32 s3, s6")
    dbg_srd(k)
    chain.chain_setup(k, "ch", merged=True)
    if 'trace' in opts:
        k(f"s_memrealtime s[74:75]\ns_waitcnt lgkmcnt(0)\nv_mov_b32 v40, s78\nv_mov_b32 v41, s74\nv_mov_b32 v42, 0\ns_lshl_b32 s5, s2, 10\ns_add_u32 s5, s5, {TRACE + 512}")
        k("buffer_store_dwordx2 v[40:41], v42, s[8:11], s5 offen")
        for i in range(6): k(f"v_mov_b32 v43, s{80+2*i}\nbuffer_store_dword v43, v42, s[8:11], s5 offen offset:{16+4*i}")
    if 'forceslow' in opts: k("s_branch mg_chain_slow")
    chain.xcc_decide(k, "ch", "mg_chain_slow")
    chain.chain_loop(k, "ch", stamps=('st' in opts.split()), dbg=('dbg' in opts), flags=True, D1=D1, D2=D2, X=XO + 'merged')
    if 'wbl2' in opts: k("buffer_wbl2 sc1\ns_waitcnt vmcnt(0)")
    k("s_endpgm")
    k.label("mg_chain_slow")
    k("s_waitcnt vmcnt(0)")
    chain.chain_loop(k, "cs", stamps=False, dbg=('dbg' in opts), flags=True, sc='sc1', X='merged')
    k("s_endpgm")
    k.label("mg_wo")
    if 'nowo' in opts: k("s_endpgm")
    k("s_and_b32 s3, s6, 15\ns_lshr_b32 s6, s6, 4\ns_sub_u32 s5, s5, 1\ns_lshl_b32 s5, s5, 1\ns_add_u32 s16, s5, s6")
    dbg_srd(k)
    k(f"s_and_b32 s5, s2, 7\ns_cmp_lg_u32 s5, 1" if 'spread' not in opts else "s_lshr_b32 s5, s2, 5\ns_cmp_lg_u32 s5, 1")
    k("s_cbranch_scc1 mg_wo_noln")
    k(f"s_load_dwordx2 s[36:37], s[0:1], {A_X}\ns_load_dwordx2 s[38:39], s[0:1], {D_WS}\nv_mov_b32 v100, v0\nv_lshrrev_b32 v1, 6, v0\nv_and_b32 v0, 63, v0\nv_readfirstlane_b32 s20, v1")
    k(("s_lshr_b32 s5, s2, 3" if 'spread' not in opts else "s_and_b32 s5, s2, 31") + "\ns_lshl_b32 s5, s5, 2\ns_add_u32 s20, s20, s5\ns_waitcnt lgkmcnt(0)")
    srd(k, 8, 38, WS_BYTES); srd(k, 12, 36, 2048 * 1024)
    ln.ln_role(k, "ln", 20, 8, 12)
    k("s_waitcnt vmcnt(0)")
    dbg_add(k, DBG_LN, 4)
    k("v_mov_b32 v0, v100")
    k.label("mg_wo_noln")
    if 'wolate' in opts:
        k("v_lshrrev_b32 v1, 6, v0\nv_readfirstlane_b32 s4, v1")
        dbg_wait(k, DBG_FLAGS, N_FLAG_WGS, 2)
    if 'delay' in opts.split():
        k("v_lshrrev_b32 v1, 6, v0\nv_readfirstlane_b32 s4, v1")
        dbg_wait(k, 4, 0x200000, 2)
    gemmk.gk_setup(k, "wo", "wo", merged=True); gemmk.gk_loop(k, "wo", "wo")
    k("s_endpgm")
    k.label("mg_f2")
    if 'noffn' in opts: k("s_endpgm")
    k("s_and_b32 s3, s6, 15\ns_lshr_b32 s16, s6, 4")
    dbg_srd(k)
    if 'delay' in opts.split():
        k("v_lshrrev_b32 v1, 6, v0\nv_readfirstlane_b32 s4, v1")
        dbg_wait(k, 4, 0x200000, 2)
    gemmk.gk_setup(k, "f2", "f2", merged=True); gemmk.gk_loop(k, "f2", "f2")
    k("s_endpgm")
    k.label("mg_qkv")
    k(f"s_mul_hi_u32 s3, s5, {-(-(1 << 32) // RQ)}\ns_mul_i32 s6, s3, {RQ}\ns_sub_u32 s16, s5, s6")
    dbg_srd(k)
    qkv.qkv_setup(k, "qk", merged=True); qkv.qkv_loop(k, "qk", merged=True)
    k("s_endpgm")
    k.label("mg_f1")
    if 'noffn' in opts: k("s_endpgm")
    k(f"s_lshr_b32 s3, s5, 1\ns_and_b32 s16, s5, 1")
    dbg_srd(k)
    if 'delay' in opts.split() and 'f1early' not in opts:
        k("v_lshrrev_b32 v1, 6, v0\nv_readfirstlane_b32 s4, v1")
        dbg_wait(k, 4, 0x200000, 2)
    ffn1.f1_setup(k, "f1", merged=True); ffn1.f1_loop(k, "f1")
    k.label("mg_exit")
    k("s_endpgm")
    mega = k.finish()
    hdr = open('recurrent_scan__memory_aug_recurrent_mem_tr__dense_activation_mish__prompt.s.ref').read().split("; Override launch")[0]
    txt = hdr
    txt += f"; @launch grid=(256,1,1) block=(256,1,1) lds=163840\n"
    txt += '.amdgcn_target "amdgcn-amd-amdhsa--gfx950"\n.text\n'
    txt += kernel_text(NAME, mega, 512, 256)
    print("mega instrs", len(k.ins), "nops", k.nops, file=sys.stderr)
    return txt
if __name__ == "__main__":
    open(sys.argv[1], "w").write(build(opts=" ".join(sys.argv[2:])))
```

```python
from asm import *
from layout import *
import common
from common import dbg_srd, dbg_add, dbg_wait, DBG, DBG_FLAGS, DBG_LN, N_FLAG_WGS
import math, struct

def f2u(x): return struct.unpack("<I", struct.pack("<f", x))[0]

L_WO = 0
L_KS = 131072
L_MX = 147456
L_QX = 155648
L_KX = L_QX + 2304
L_OX = L_KX + 2304
RSX = 288
S_H, S_W = 3, 4
WS = 8
WSRD = 12
S_STEP = 20
S_MEMC, S_MEMN, S_MEMP = 21, 22, 23
S_INBC, S_INBC1, S_INBP = 24, 25, 26
S_KFN, S_VFN, S_KM, S_VM = 27, 28, 29, 30
S_KSM0 = 31
S_SPIN = 33
S_C = 32
S_T0, S_T1, S_T2 = 34, 35, 36
S_ERR = 37
S_KSLOT = 38
S_FLG = 39
S_JUNK = 19
V_IDX, V_L16, V_FLV, V_MEMP, V_MEMW = 1, 2, 3, 4, 5
V_MR = 6
V_PART, V_INB, V_PUB = 9, 10, 11
V_SEL = 12
V_QW, V_QR, V_KR, V_OW, V_WO, V_KMO, V_VMO = 16, 17, 18, 19, 20, 21, 22
V_TMP = 23
V_WARM = 0
AQ, AK, AV = 24, 32, 40
MA = [48, 52, 56, 60, 64, 68, 72, 76]
KSEG = 80
QB = [48, 52, 112, 116]
KA = [80, 84, 88, 92]
VSEG = 120
WSLOT = [96, 104, 80, 88, 112, 56, 64, 72, 120]
WS10 = 40
WACC = [28, 36, 40, 44]
OA = [24, 32, 48, 52]
OUT = [120, 124]
WV0 = 128

def wfrag(mat, t, u):
    f = t * 8 + u
    if mat == 0: return a(8 * f, 8)
    if mat == 1: return a(128 + 8 * f, 8)
    return v(WV0 + 8 * f, 8)
def wfrag_pair(mat, t, u, rp):
    f = t * 8 + u
    if mat == 0: return a(8 * f + 2 * rp, 2)
    if mat == 1: return a(128 + 8 * f + 2 * rp, 2)
    return v(WV0 + 8 * f + 2 * rp, 2)

def srd(k, r, ptr, nbytes):
    k(f"s_mov_b32 s{r}, s{ptr}")
    k(f"s_and_b32 s{r+1}, s{ptr+1}, 0xffff")
    k(f"s_mov_b32 s{r+2}, {nbytes}")
    k(f"s_mov_b32 s{r+3}, 0x20000")

class Stamps:
    def __init__(self, k, on): self.k = k; self.on = on; self.used = []
    def init(self, n=16):
        if not self.on: return
        for i in range(n): self.k(f"s_mov_b32 s{44+i}, 0")
        self.k("s_memtime s[40:41]\ns_waitcnt lgkmcnt(0)\ns_mov_b32 s42, s40")
    def __call__(self, i):
        if not self.on: return
        self.used.append(i)
        self.k(f"s_memtime s[{64+2*i}:{65+2*i}]")
    def collect(self):
        if not self.on: return
        self.k("s_waitcnt lgkmcnt(0)")
        prev = 42
        for i in self.used:
            self.k(f"s_sub_u32 s43, s{64+2*i}, s{prev}\ns_add_u32 s{44+i}, s{44+i}, s43")
            prev = 64 + 2 * i
        self.k(f"s_mov_b32 s42, s{prev}")

def sm(k, mat, t, u):
    acc = [AQ, AK, AV][mat] + 4 * t
    k(f"v_smfmac_f32_16x16x64_bf16 {v(acc,4)}, {v(MA[u],4)}, {wfrag(mat,t,u)}, v{V_IDX}")

def chain_setup(k, P, merged=False):
    k(f"""
    s_load_dwordx8 s[16:23], s[0:1], {A_WQ}
    s_load_dwordx2 s[24:25], s[0:1], {A_MEM0}
    s_load_dwordx2 s[26:27], s[0:1], {D_WS}
    v_lshrrev_b32 v24, 6, v0
    v_and_b32 v0, 63, v0
    v_readfirstlane_b32 s{S_W}, v24
    v_and_b32 v24, 15, v0          ; n
    v_lshrrev_b32 v25, 4, v0       ; g
    v_lshlrev_b32 v{V_L16}, 4, v0
    v_and_b32 v26, 1, v0
    v_mul_u32_u24 v26, 0xaaaa, v26
    v_add_u32 v{V_IDX}, 0x4444, v26
    s_lshl_b32 s5, s{S_W}, 11
    v_add_u32 v{V_MEMP}, s5, v{V_L16}
    v_add_u32 v{V_MEMW}, {L_MX}, v{V_MEMP}
    v_xor_b32 v{V_MR}, 2048, v{V_MEMW}
    v_xor_b32 v{V_MR+1}, 4096, v{V_MEMW}
    v_xor_b32 v{V_MR+2}, 6144, v{V_MEMW}
    s_lshl_b32 s5, s{S_W}, 4
    v_lshrrev_b32 v26, 2, v24
    v_add_u32 v26, s5, v26
    v_lshlrev_b32 v26, 12, v26
    s_lshl_b32 s5, s{S_H}, 7
    v_add_u32 v26, s5, v26
    v_and_b32 v27, 3, v24
    v_lshlrev_b32 v27, 5, v27
    v_add_u32 v26, v26, v27
    v_lshlrev_b32 v27, 3, v25
    v_add_u32 v{V_PART}, v26, v27
    s_and_b32 s7, s{S_W}, 1
    s_lshl_b32 s6, s{S_H}, 1
    s_add_u32 s6, s6, s7
    s_lshl_b32 s5, s6, 12
    v_add_u32 v{V_INB}, s5, v{V_L16}
    s_lshr_b32 s5, s6, 3
    s_lshl_b32 s5, s5, 10
    s_bfe_u32 s7, s6, 0x20001
    s_lshl_b32 s7, s7, 8
    s_add_u32 s5, s5, s7
    s_and_b32 s7, s6, 1
    s_lshl_b32 s7, s7, 4
    s_add_u32 s5, s5, s7
    v_and_b32 v26, 1, v24
    v_lshlrev_b32 v26, 2, v26
    v_lshrrev_b32 v27, 3, v24
    v_lshl_add_u32 v26, v27, 1, v26
    v_and_b32 v27, 1, v25
    v_add_u32 v28, v26, v27          ; m
    v_lshlrev_b32 v26, 5, v28
    v_bfe_u32 v30, v24, 1, 2         ; nn
    v_lshl_add_u32 v26, v30, 2, v26
    v_add_u32 v{V_PUB}, s5, v26
    v_and_b32 v26, 3, v24
    v_bfe_u32 v27, v24, 2, 1
    v_lshlrev_b32 v27, 4, v27
    v_mov_b32 v29, 0x3f80
    v_lshlrev_b32 v29, v27, v29
    """)
    for r in range(4):
        k(f"v_cmp_eq_u32 vcc, {r}, v26\nv_cndmask_b32 v{V_SEL+r}, 0, v29, vcc")
    k(f"""
    v_mul_u32_u24 v26, {2*RSX}, v25
    v_lshrrev_b32 v27, 2, v24
    v_lshlrev_b32 v27, 4, v27
    v_add_u32 v26, v26, v27
    v_and_b32 v27, 3, v24
    v_lshlrev_b32 v27, 1, v27
    v_add_u32 v26, v26, v27
    s_lshl_b32 s5, s{S_W}, 6
    s_add_u32 s5, s5, {L_QX}
    v_add_u32 v{V_QW}, s5, v26
    v_and_b32 v26, 7, v24
    v_mul_u32_u24 v26, {RSX}, v26
    v_lshlrev_b32 v27, 4, v25
    v_add_u32 v26, v26, v27
    v_add_u32 v{V_QR}, {L_QX}, v26
    ; m'(x) = 2*(x>>2) + (x&1)
    v_lshrrev_b32 v26, 2, v24
    v_lshlrev_b32 v26, 1, v26
    v_and_b32 v29, 1, v24
    v_add_u32 v29, v26, v29
    v_mul_u32_u24 v26, {RSX}, v29
    v_add_u32 v26, v26, v27
    v_add_u32 v{V_KR}, {L_KX}, v26
    v_lshlrev_b32 v26, 8, v29
    v_add_u32 v26, v26, v27
    s_lshl_b32 s5, s{S_W}, 6
    v_add_u32 v{V_KMO}, s5, v26
    v_lshlrev_b32 v26, 3, v0
    s_lshl_b32 s5, s{S_W}, 9
    v_add_u32 v{V_VMO}, s5, v26
    v_and_b32 v26, 7, v24
    v_lshlrev_b32 v26, 4, v26
    v_lshrrev_b32 v27, 1, v25
    v_lshlrev_b32 v27, 7, v27
    v_add_u32 v26, v26, v27
    v_and_b32 v27, 1, v25
    v_lshlrev_b32 v27, 3, v27
    v_add_u32 v26, v26, v27
    s_lshl_b32 s5, s{S_W}, 9
    s_add_u32 s5, s5, {L_OX}
    v_add_u32 v{V_OW}, s5, v26
    s_lshl_b32 s5, s{S_W}, 15
    v_add_u32 v{V_WO}, s5, v{V_L16}
    s_waitcnt lgkmcnt(0)
    """)
    srd(k, WS, 26, WS_BYTES)
    srd(k, WSRD, 24, 8192)
    k(f"""
    s_cmp_ge_u32 s{S_W}, 2
    s_cbranch_scc1 {P}_nopub0
    s_lshr_b32 s5, s6, 2
    s_lshl_b32 s5, s5, 5
    s_and_b32 s7, s6, 3
    s_lshl_b32 s7, s7, 2
    s_add_u32 s5, s5, s7
    s_lshl_b32 s5, s5, 1
    v_lshlrev_b32 v26, 10, v28
    v_lshl_add_u32 v26, v30, 1, v26
    v_add_u32 v26, s5, v26
    buffer_load_ushort v40, v26, s[{WSRD}:{WSRD+3}], 0 offen
    buffer_load_ushort v41, v26, s[{WSRD}:{WSRD+3}], 0 offen offset:32
    """)
    k.label(f"{P}_nopub0")
    k(f"""
    v_lshrrev_b32 v26, 4, v0
    v_bfe_u32 v27, v0, 5, 1
    v_lshlrev_b32 v27, 1, v27
    v_and_b32 v28, 15, v0
    v_xor_b32 v27, v27, v28
    v_lshlrev_b32 v27, 4, v27
    v_lshlrev_b32 v26, 13, v26
    v_add_u32 v26, v26, v27
    s_lshl_b32 s5, s{S_H}, 8
    v_add_u32 v24, s5, v26
    v_xor_b32 v25, 64, v24
    v_xor_b32 v39, 128, v24
    v_xor_b32 v23, 192, v24
    v_bfe_u32 v28, v0, 2, 2        ; r
    v_and_b32 v29, 3, v0           ; c
    v_lshrrev_b32 v30, 4, v0       ; gB
    v_and_b32 v31, 1, v28          ; r&1
    v_lshrrev_b32 v32, 1, v28      ; r>>1
    v_and_b32 v33, 1, v30          ; gB&1
    v_lshrrev_b32 v34, 1, v30      ; gB>>1
    v_lshlrev_b32 v35, 4, v31
    v_lshl_add_u32 v35, v34, 3, v35
    v_lshl_add_u32 v35, v32, 2, v35
    v_lshl_add_u32 v35, v33, 1, v35 ; Lrow
    v_lshlrev_b32 v35, 8, v35
    v_lshlrev_b32 v36, 2, v31
    v_lshl_add_u32 v36, v32, 1, v36
    v_add_u32 v36, v36, v33        ; F
    v_lshlrev_b32 v36, 1, v36      ; 2F
    v_lshrrev_b32 v37, 1, v29      ; c>>1
    s_lshl_b32 s5, s{S_W}, 2
    v_add_u32 v37, s5, v37
    v_xor_b32 v37, v37, v36
    v_lshlrev_b32 v37, 4, v37
    v_and_b32 v38, 1, v29
    v_lshl_add_u32 v37, v38, 3, v37
    v_add_u32 v35, v35, v37
    s_lshl_b32 s5, s{S_W}, 15
    v_add_u32 v26, s5, v35
    v_xor_b32 v27, 32, v26
    """)
    for mat in range(3):
        srd(k, WSRD, 16 + 2 * mat, 512 * 4096 * 2)
        k(f"s_lshl_b32 s5, s{S_W}, 20\ns_lshl_b32 s6, s{S_W}, 15")
        for y in range(32):
            k(f"s_mov_b32 m0, s6")
            k(f"buffer_load_dwordx4 v{(24, 25, 39, 23)[(y & 1) + 2 * ((y >> 2) & 1)]}, s[{WSRD}:{WSRD+3}], s5 offen lds")
            if y < 31: k(f"s_add_u32 s5, s5, 32768\ns_add_u32 s6, s6, 1024")
        if mat == 0 and merged:
            for r in range(4): k(f"v_mov_b32 v{44+r}, -1")
            k(f"s_lshl_b32 s7, s{S_H}, 13\ns_add_u32 s7, s7, {INBOX}")
            for slot in range(3):
                k(f"buffer_store_dwordx4 v[44:47], v{V_MEMP}, s[{WS}:{WS+3}], s7 offen sc1")
                k(f"buffer_store_dwordx4 v[44:47], v{V_MEMP}, s[{WS}:{WS+3}], s7 offen offset:1024 sc1")
                if slot < 2: k("s_add_u32 s7, s7, 0x40000")
            for slot in range(1, 4):
                k(f"s_mov_b32 s7, {MEMR + slot*8192}\nbuffer_store_dword v44, v{V_PUB}, s[{WS}:{WS+3}], s7 offen sc1")
            k(f"s_lshl_b32 s7, s{S_H}, 4\ns_add_u32 s7, s7, {FLAGS + F_KVM}\nv_mov_b32 v48, 0")
            k(f"buffer_store_dword v48, off, s[{WS}:{WS+3}], s7 sc1")
        k("s_waitcnt vmcnt(0)")
        if mat == 0:
            k(f"s_cmp_ge_u32 s{S_W}, 2\ns_cbranch_scc1 {P}_nopub1")
            k(f"v_lshl_or_b32 v40, v41, 16, v40\ns_mov_b32 s7, {MEMR}")
            k(f"buffer_store_dword v40, v{V_PUB}, s[{WS}:{WS+3}], s7 offen sc1")
            k.label(f"{P}_nopub1")
        k("s_barrier")
        if mat == 0 and merged: dbg_add(k, DBG_FLAGS, 46, S_W)
        if mat == 1 and merged:
            La = f"{P}_ann"
            k(f"s_cmp_lg_u32 s{S_W}, 0\ns_cbranch_scc1 {La}")
            k("s_getreg_b32 s70, hwreg(HW_REG_XCC_ID, 0, 4)\ns_mul_i32 s70, s70, 6\ns_lshl_b64 s[70:71], 1, s70\ns_add_u32 s71, s71, 0x10000")
            k("v_mov_b32 v44, s70\nv_mov_b32 v45, s71\ns_mov_b64 exec, 1")
            k(f"buffer_atomic_add_x2 v[44:45], off, s[{DBG}:{DBG+3}], 0 sc1")
            k("s_mov_b64 exec, -1")
            k.label(La)
        for t in range(2):
            for u in range(8):
                k(f"v_xor_b32 v28, {u*16384}, v{26+t}")
                for rp in range(4):
                    off = 8192 * (rp >> 1) + 256 * (rp & 1)
                    k(f"ds_read_b64_tr_b16 {wfrag_pair(mat,t,u,rp)}, v28 offset:{off}")
                if u % 2 == 1: k("s_waitcnt lgkmcnt(0)")
        k("s_waitcnt lgkmcnt(0)\ns_barrier")
    srd(k, WSRD, 22, 4096 * 512 * 2)
    k(f"""
    v_lshrrev_b32 v26, 4, v0
    v_and_b32 v27, 1, v26
    v_lshlrev_b32 v27, 2, v27        ; 4*(row&1)
    v_and_b32 v28, 15, v0
    v_xor_b32 v27, v27, v28
    v_lshlrev_b32 v27, 4, v27
    v_lshlrev_b32 v26, 10, v26
    v_add_u32 v26, v26, v27
    s_lshl_b32 s5, s{S_W}, 8
    v_add_u32 v24, s5, v26
    v_xor_b32 v25, 128, v24
    s_lshl_b32 s5, s{S_H}, 17
    s_lshl_b32 s6, s{S_W}, 15
    """)
    for y in range(32):
        k("s_mov_b32 m0, s6")
        k(f"buffer_load_dwordx4 v{24 + (y & 1)}, s[{WSRD}:{WSRD+3}], s5 offen lds")
        if y < 31: k("s_add_u32 s5, s5, 4096\ns_add_u32 s6, s6, 1024")
    k(f"""
    v_lshlrev_b32 v35, 3, v34
    v_lshl_add_u32 v35, v33, 2, v35
    v_add_u32 v35, v35, v31
    v_lshlrev_b32 v35, 8, v35
    v_lshlrev_b32 v36, 2, v31
    v_lshl_add_u32 v36, v33, 3, v36
    v_lshrrev_b32 v37, 1, v29
    v_lshl_add_u32 v37, v32, 1, v37
    v_xor_b32 v37, v37, v36
    v_lshlrev_b32 v37, 4, v37
    v_lshl_add_u32 v37, v38, 3, v37
    v_add_u32 v35, v35, v37
    s_lshl_b32 s5, s{S_W}, 15
    v_add_u32 v28, s5, v35
    """)
    if merged:
        k(f"buffer_load_dwordx2 v[112:113], off, s[{DBG}:{DBG+3}], 0 sc1")
        k(f"buffer_load_dword v114, off, s[{DBG}:{DBG+3}], 0 offset:{DBG_FLAGS} sc1")
    k("s_waitcnt vmcnt(0)")
    TMP = 48
    for half in range(2):
        for tau in range(4):
            k(f"v_xor_b32 v29, {64*tau}, v28")
            for e2 in range(2):
                eb = 2 * half + e2
                for rp in range(4):
                    off = (32 * eb + 16 * (rp >> 1) + 2 * (rp & 1)) * 256
                    k(f"ds_read_b64_tr_b16 {v(TMP+16*tau+8*e2+2*rp,2)}, v29 offset:{off}")
            k("s_waitcnt lgkmcnt(0)")
        for tau in range(4):
            for e2 in range(2):
                for hf in range(2):
                    k(f"ds_write_b128 v{V_WO}, {v(TMP+16*tau+8*e2+4*hf,4)} offset:{half*16384+tau*4096+e2*2048+hf*1024}")
        k("s_waitcnt lgkmcnt(0)")
    k("s_barrier")
    k(f"""
    v_and_b32 v24, 0x3e0, v{V_L16}
    v_lshrrev_b32 v24, 1, v24
    v_add_u32 v{V_WARM}, {L_OX}, v24
    """)

def step_offsets(k):
    k(f"""
    s_and_b32 s5, s{S_STEP}, 3
    s_lshl_b32 s5, s5, 13
    s_add_u32 s{S_MEMC}, s5, {MEMR}
    s_add_u32 s5, s{S_STEP}, 1
    s_and_b32 s5, s5, 3
    s_lshl_b32 s5, s5, 13
    s_add_u32 s{S_MEMN}, s5, {MEMR}
    s_add_u32 s5, s{S_STEP}, 3
    s_and_b32 s5, s5, 3
    s_lshl_b32 s5, s5, 13
    s_add_u32 s{S_MEMP}, s5, {MEMR}
    s_and_b32 s5, s{S_STEP}, 1
    s_lshl_b32 s6, s5, 18
    s_add_u32 s{S_INBC}, s6, {INBOX}
    s_add_u32 s{S_INBC1}, s{S_INBC}, 32768
    s_xor_b32 s6, s6, 0x40000
    s_add_u32 s{S_INBP}, s6, {INBOX}
    s_lshl_b32 s6, s5, 13
    s_add_u32 s{S_KSLOT}, s6, {L_KS}
    s_xor_b32 s6, s6, 8192
    s_lshl_b32 s7, s{S_W}, 11
    s_add_u32 s6, s6, s7
    s_add_u32 s{S_KSM0}, s6, {L_KS}
    s_lshl_b32 s5, s{S_H}, 6
    s_add_u32 s5, s5, s{S_STEP}
    s_add_u32 s5, s5, 1
    s_lshl_b32 s5, s5, 13
    s_add_u32 s{S_KFN}, s5, {KF}
    s_add_u32 s{S_VFN}, s5, {VF}
    s_lshl_b32 s5, s{S_STEP}, 5
    s_add_u32 s5, s5, s{S_H}
    s_lshl_b32 s5, s5, 11
    s_add_u32 s{S_KM}, s5, {KM}
    s_add_u32 s{S_VM}, s5, {VM}
    """)

def poll(k, P, name, r0, voff, soff, tmp, tmp2, cnt=None):
    L = f"{P}_{name}"
    k(f"s_mov_b32 s{S_SPIN}, 0")
    k.label(L)
    k(f"buffer_load_dwordx4 {v(r0,4)}, v{voff}, s[{WS}:{WS+3}], s{soff} offen sc1")
    k(f"buffer_load_dwordx4 {v(r0+4,4)}, v{voff}, s[{WS}:{WS+3}], s{soff} offen offset:1024 sc1")
    k(f"s_add_u32 s{S_SPIN}, s{S_SPIN}, 1")
    if cnt is not None: k(f"s_add_u32 s{cnt}, s{cnt}, 1")
    k(f"s_cmp_gt_u32 s{S_SPIN}, 20000")
    k(f"s_cbranch_scc1 {L}_fail")
    k("s_waitcnt vmcnt(0)")
    k(f"v_max3_u32 v{tmp}, v{r0}, v{r0+1}, v{r0+2}")
    k(f"v_max3_u32 v{tmp2}, v{r0+3}, v{r0+4}, v{r0+5}")
    k(f"v_max3_u32 v{tmp}, v{tmp}, v{r0+6}, v{r0+7}")
    k(f"v_max_u32 v{tmp}, v{tmp}, v{tmp2}")
    k(f"v_cmp_eq_u32 vcc, -1, v{tmp}")
    k(f"s_cbranch_vccnz {L}")
    k(f"s_branch {L}_ok")
    k.label(f"{L}_fail")
    k(f"s_add_u32 s{S_ERR}, s{S_ERR}, 1")
    k("s_waitcnt vmcnt(0)")
    k.label(f"{L}_ok")

def ilv(k, main, fill, start=0, per=1):
    fill = list(fill)
    for i, m in enumerate(main):
        k(m)
        if i >= start:
            for _ in range(per):
                if fill: k(fill.pop(0))
    for f in fill: k(f)

def smt(mat, t, u):
    acc = [AQ, AK, AV][mat] + 4 * t
    return f"v_smfmac_f32_16x16x64_bf16 {v(acc,4)}, {v(MA[u],4)}, {wfrag(mat,t,u)}, v{V_IDX}"

def chain_loop(k, P, stamps=False, dbg=True, D1=0, D2=0, X='', flags=False, sc=''):
    ST = Stamps(k, stamps)
    FT = 'ft' in X
    def ft(i):
        if FT: k(f"s_memrealtime s[{64+2*i}:{65+2*i}]")
    def ft_flush():
        if not FT: return
        L = k.newlabel(f"{P}_ft")
        k(f"s_waitcnt lgkmcnt(0)\ns_sub_u32 s5, s{S_STEP}, 21\ns_cmp_gt_u32 s5, 7\ns_cbranch_scc1 {L}")
        k(f"s_lshl_b32 s5, s5, 4\ns_lshl_b32 s6, s{S_W}, 7\ns_add_u32 s5, s5, s6\ns_add_u32 s5, s5, {L_OX + 2048}\nv_mov_b32 v112, s5")
        for i in range(4): k(f"v_mov_b32 v113, s{64+2*i}\nds_write_b32 v112, v113 offset:{4*i}")
        k("s_waitcnt lgkmcnt(0)")
        k.label(L)
    WSs = f"s[{WS}:{WS+3}]"
    c = (128 ** -0.5) * math.log2(math.e)
    S_ONES = 41 if not stamps else 62
    S_RST = 18
    S_FR, S_FC = 16, 17
    S_FNEED, S_FOFF, S_FNEED2, S_FOFF2 = 39, 38, 26, 31
    S_INBPv = 28
    S_KVMF = 60 if stamps else 42
    S_INB1, S_INB3 = (43 if not stamps else 61), 19
    INB_SLOT = 0x40000
    k(f"s_mov_b32 s{S_C}, {f2u(c):#x}")
    k(f"s_mov_b32 s{S_ONES}, 0x3f803f80")
    k(f"s_mov_b32 s{S_ERR}, 0")
    SENT = 116
    def flag_spin(tag):
        L = k.newlabel(f"{P}_{tag}")
        k(f"v_readfirstlane_b32 s5, v{V_FLV}")
        k(f"s_cmp_ge_u32 s5, s{S_FNEED}\ns_cbranch_scc1 {L}_ok")
        k(f"s_mov_b32 s{S_SPIN}, 0")
        k.label(L)
        k(f"v_mov_b32 v{V_FLV}, 0")
        k(f"buffer_load_dword v{V_FLV}, v{V_FLV}, {WSs}, s{S_FOFF} offen sc1")
        k(f"s_add_u32 s{S_SPIN}, s{S_SPIN}, 1\ns_cmp_gt_u32 s{S_SPIN}, 0x8000\ns_cbranch_scc1 {L}_fail")
        k(f"s_waitcnt vmcnt(0)\nv_readfirstlane_b32 s5, v{V_FLV}")
        k(f"s_cmp_ge_u32 s5, s{S_FNEED}\ns_cbranch_scc0 {L}\ns_branch {L}_ok")
        k.label(f"{L}_fail")
        k(f"s_add_u32 s{S_ERR}, s{S_ERR}, 1\ns_waitcnt vmcnt(0)")
        k.label(f"{L}_ok")
    def flag_next(seg_plus):
        k(f"s_lshl_b32 s5, s{S_H}, 4\ns_lshl_b32 s{S_FOFF2}, s{S_FR}, 2\ns_add_u32 s{S_FOFF2}, s{S_FOFF2}, s5")
        k(f"s_add_u32 s{S_FOFF2}, s{S_FOFF2}, {FLAGS + F_KV}")
        k(f"s_add_u32 s5, s{S_STEP}, {seg_plus}\ns_cmp_ge_u32 s5, {NSEG}\ns_cselect_b32 s{S_FNEED2}, 0, s{S_FC}")
        k(f"s_add_u32 s{S_FR}, s{S_FR}, 1\ns_cmp_eq_u32 s{S_FR}, {RQ}\ns_cselect_b32 s{S_FR}, 0, s{S_FR}\ns_addc_u32 s{S_FC}, s{S_FC}, 0")
    S_KSM0v = 29 + 0
    def k_dma01():
        return [f"buffer_load_dwordx4 v{V_MEMP}, {WSs}, s{S_KFN} offen sc1 lds",
                f"buffer_load_dwordx4 v{V_MEMP}, {WSs}, s{S_KFN} offen offset:1024 sc1 lds"]
    S_KM0 = 28
    S_KRD = 61 if not stamps else 63
    k(f"""
    s_mov_b32 s{S_STEP}, 0
    s_mov_b32 s{S_MEMC}, {MEMR}
    s_mov_b32 s{S_MEMN}, {MEMR + 8192}
    s_mov_b32 s{S_MEMP}, {MEMR + 3*8192}
    s_mov_b32 s{S_INBC}, {INBOX}
    s_mov_b32 s{S_INBC1}, {INBOX + 32768}
    s_mov_b32 s{S_INB1}, {INBOX + 16384}
    s_mov_b32 s{S_INB3}, {INBOX + 49152}
    s_lshl_b32 s5, s{S_H}, 13
    s_add_u32 s{S_RST}, s5, {INBOX + 2*INB_SLOT}
    s_lshl_b32 s5, s{S_H}, 11
    s_add_u32 s{S_KM}, s5, {KM}
    s_add_u32 s{S_VM}, s5, {VM}
    s_lshl_b32 s5, s{S_H}, 19
    s_add_u32 s{S_KFN}, s5, {KF}
    s_lshl_b32 s5, s{S_H}, 4
    s_add_u32 s{S_KVMF}, s5, {FLAGS + F_KVM}
    s_lshl_b32 s5, s{S_W}, 11
    s_add_u32 s{S_KM0}, s5, {L_KS}
    s_mov_b32 s{S_KRD}, {L_KS}
    """)
    if flags and 'merged' in X:
        k(f"v_lshlrev_b32 v56, 3, v{V_L16}\ns_lshl_b32 s5, s{S_H}, 13\ns_add_u32 s5, s5, {INBOX}\ns_cmp_eq_u32 s{S_W}, 3\ns_cbranch_scc1 {P}_pfm")
        k(f"s_lshl_b32 s6, s{S_W}, 18\ns_add_u32 s5, s5, s6\nbuffer_load_dword v57, v56, {WSs}, s5 offen sc1\ns_branch {P}_pfd")
        k.label(f"{P}_pfm")
        k(f"s_mov_b32 s5, {MEMR}")
        for i in range(4):
            k(f"buffer_load_dword v{57+i}, v56, {WSs}, s5 offen sc1")
            if i < 3: k("s_add_u32 s5, s5, 8192")
        k.label(f"{P}_pfd")
        Lf = f"{P}_fr"
        k("s_mov_b32 s72, 0")
        k.label(Lf)
        k(f"v_readfirstlane_b32 s5, v114\ns_cmp_ge_u32 s5, {N_FLAG_WGS}\ns_cbranch_scc1 {Lf}_ok")
        k(f"s_add_u32 s72, s72, 1\ns_cmp_gt_u32 s72, 0x20000\ns_cbranch_scc1 {Lf}_ok")
        k(f"s_sleep 4\nbuffer_load_dword v114, off, s[{DBG}:{DBG+3}], 0 offset:{DBG_FLAGS} sc1\ns_waitcnt vmcnt(0)\ns_branch {Lf}")
        k.label(f"{Lf}_ok")
    if flags:
        k(f"s_lshl_b32 s5, s{S_H}, 4\ns_add_u32 s{S_FOFF}, s5, {FLAGS + F_KV}\ns_mov_b32 s{S_FNEED}, 1\nv_mov_b32 v{V_FLV}, 0")
        flag_spin("f0")
    k(f"s_mov_b32 m0, s{S_KM0}")
    for x in k_dma01(): k(x)
    if flags:
        k(f"s_add_u32 s{S_FOFF}, s{S_FOFF}, 4\nv_mov_b32 v{V_FLV}, 0")
        k(f"buffer_load_dword v{V_FLV}, v{V_FLV}, {WSs}, s{S_FOFF} offen sc1")
        k(f"s_mov_b32 s{S_FR}, {2 % RQ}\ns_mov_b32 s{S_FC}, {2 // RQ + 1}")
        flag_next(2)
    k(f"s_add_u32 s{S_T0}, s{S_KFN}, {VF - KF}")
    k(f"s_add_u32 s{S_KFN}, s{S_KFN}, 8192\ns_xor_b32 s{S_KM0}, s{S_KM0}, 8192")
    for r in range(AQ, AQ + 24): k(f"v_mov_b32 v{r}, 0")
    for r in range(4): k(f"v_mov_b32 v{SENT+r}, -1")
    k("s_waitcnt vmcnt(0)")
    ST.init()
    cold = []
    MB = VSEG
    def mem_poll_issue(r=MA[0]):
        k(f"buffer_load_dwordx4 {v(r,4)}, v{V_MEMP}, {WSs}, s{S_MEMC} offen sc1")
        k(f"buffer_load_dwordx4 {v(r+4,4)}, v{V_MEMP}, {WSs}, s{S_MEMC} offen offset:1024 sc1")
    def mem_check(r):
        k(f"v_max3_u32 v{V_TMP}, v{r}, v{r+1}, v{r+2}")
        k(f"v_max3_u32 v{MA[2]}, v{r+3}, v{r+4}, v{r+5}")
        k(f"v_max3_u32 v{V_TMP}, v{V_TMP}, v{r+6}, v{r+7}")
        k(f"v_max_u32 v{V_TMP}, v{V_TMP}, v{MA[2]}")
        k(f"v_cmp_eq_u32 vcc, -1, v{V_TMP}")
    def k_frag_reads():
        k(f"v_add_u32 v{V_TMP}, s{S_KRD}, v{V_L16}")
        for T in range(2):
            for ks in range(4): k(f"ds_read_b128 {v(KSEG+16*T+4*ks,4)}, v{V_TMP} offset:{(4*T+ks)*1024}")
    k("s_barrier")
    k(f"s_mov_b32 s{S_SPIN}, 0")
    mem_poll_issue()
    k_frag_reads()
    mem_poll_issue(MB)
    k.label(f"{P}_step")
    k("s_waitcnt vmcnt(2)")
    ST(0)
    ft(0)
    if common.TRACE_ON: k("s_memrealtime s[96:97]")
    mem_check(MA[0])
    own = [smt(mat, t, u) for u in (0, 1) for mat in range(3) for t in range(2)]
    k(f"s_cbranch_vccnz {P}_pm_retry")
    def cold_pm():
        k.label(f"{P}_pm_retry")
        mem_poll_issue()
        if stamps: k("s_add_u32 s58, s58, 1")
        k("s_waitcnt vmcnt(2)")
        mem_check(MB)
        k(f"s_cbranch_vccz {P}_pm_b")
        mem_poll_issue(MB)
        k(f"s_add_u32 s{S_SPIN}, s{S_SPIN}, 1")
        k(f"s_cmp_gt_u32 s{S_SPIN}, 100000\ns_cbranch_scc0 {P}_step")
        k(f"s_add_u32 s{S_ERR}, s{S_ERR}, 1\ns_waitcnt vmcnt(0)\ns_branch {P}_pm_ok")
        k.label(f"{P}_pm_b")
        for r in range(8): k(f"v_mov_b32 v{MA[0]+r}, v{MB+r}")
        k(f"s_branch {P}_pm_ok")
    cold.append(cold_pm)
    k.label(f"{P}_pm_ok")
    k(f"ds_write_b128 v{V_MEMW}, {v(MA[0],4)}")
    k(own[0])
    k(f"ds_write_b128 v{V_MEMW}, {v(MA[1],4)} offset:1024")
    if dbg:
        k(f"s_lshl_b32 s5, s{S_STEP}, 13\ns_add_u32 s5, s5, {MEMDBG}")
        k(f"buffer_store_dwordx4 {v(MA[0],4)}, v{V_MEMP}, {WSs}, s5 offen")
        k(f"buffer_store_dwordx4 {v(MA[1],4)}, v{V_MEMP}, {WSs}, s5 offen offset:1024")
    k(f"buffer_load_dwordx4 {v(VSEG,4)}, v{V_MEMP}, {WSs}, s{S_T0} offen sc1")
    k(own[1])
    if flags: k(f"v_readfirstlane_b32 s5, v{V_FLV}")
    k(own[2])
    k(f"buffer_load_dwordx4 {v(VSEG+4,4)}, v{V_MEMP}, {WSs}, s{S_T0} offen offset:1024 sc1")
    if flags: k(f"s_cmp_ge_u32 s5, s{S_FNEED}")
    k(own[3])
    if flags:
        k(f"s_cbranch_scc0 {P}_fs_slow")
        def cold_fs():
            k.label(f"{P}_fs_slow")
            flag_spin("fs")
            k(f"s_branch {P}_fs_ok")
        cold.append(cold_fs)
        k.label(f"{P}_fs_ok")
    k(own[4]); k(own[5])
    k("s_waitcnt lgkmcnt(0)\ns_barrier")
    ST(1)
    rd = [f"ds_read_b128 {v(MA[uu],4)}, v{V_MR + uu//2 - 1} offset:{1024*(uu&1)}" for uu in range(2, 8)]
    k(rd[0])
    ilv(k, own[6:], rd[1:])
    ST(2)
    if flags: k(f"v_mov_b32 v{V_TMP}, s{S_STEP}")
    for u in range(2, 8):
        k(f"s_waitcnt lgkmcnt({7 - u})")
        for t in range(2):
            k(smt(0, t, u))
        if u == 2 and flags:
            k(f"buffer_store_dword v{V_TMP}, off, {WSs}, s{S_KVMF} sc1")
        if u == 3: k(f"buffer_store_dwordx4 {v(SENT,4)}, v{V_MEMP}, {WSs}, s{S_RST} offen {sc}")
        if u == 5: k(f"buffer_store_dwordx4 {v(SENT,4)}, v{V_MEMP}, {WSs}, s{S_RST} offen offset:1024 {sc}")
    qe = [f"v_add_f32 v{AQ}, v{AQ}, v{AQ+1}", f"v_add_f32 v{AQ+2}, v{AQ+2}, v{AQ+3}",
          f"v_add_f32 v{AQ+4}, v{AQ+4}, v{AQ+5}", f"v_add_f32 v{AQ+6}, v{AQ+6}, v{AQ+7}",
          f"v_cvt_pk_bf16_f32 v{AQ}, v{AQ}, v{AQ+2}", f"v_cvt_pk_bf16_f32 v{AQ+4}, v{AQ+4}, v{AQ+6}",
          f"ds_write_b16 v{V_QW}, v{AQ}", f"ds_write_b16_d16_hi v{V_QW}, v{AQ} offset:{RSX}",
          f"ds_write_b16 v{V_QW}, v{AQ+4} offset:8", f"ds_write_b16_d16_hi v{V_QW}, v{AQ+4} offset:{RSX+8}"]
    km = [smt(1, t, u) for u in range(2, 8) for t in range(2)]
    for i, m in enumerate(km):
        k(m)
        if 1 <= i <= 5:
            for _ in range(2):
                if qe: k(qe.pop(0))
        if i == 6:
            k(f"s_mov_b32 m0, s{S_KM0}"); k(k_dma01()[0])
        if i == 7: k(k_dma01()[1])
        if i == 8 and flags:
            k(f"buffer_load_dword v{V_FLV}, off, {WSs}, s{S_FOFF2} sc1")
        if i == 9:
            k(f"s_waitcnt vmcnt({8 if flags else 6}) lgkmcnt(0)\ns_barrier")
            for ks in range(2): k(f"ds_read_b128 {v(QB[ks],4)}, v{V_QR} offset:{64*ks}")
        if i == 10:
            for ks in range(2, 4): k(f"ds_read_b128 {v(QB[ks],4)}, v{V_QR} offset:{64*ks}")
    ST(3)
    vm = [smt(2, t, u) for u in range(2, 8) for t in range(2)]
    ke = [f"v_add_f32 v{AK}, v{AK}, v{AK+1}", f"v_add_f32 v{AK+2}, v{AK+2}, v{AK+3}",
          f"v_add_f32 v{AK+4}, v{AK+4}, v{AK+5}", f"v_add_f32 v{AK+6}, v{AK+6}, v{AK+7}",
          f"v_cvt_pk_bf16_f32 v{AK}, v{AK}, v{AK+2}", f"v_cvt_pk_bf16_f32 v{AK+4}, v{AK+4}, v{AK+6}"]
    D = L_KX - L_QX
    kw = [f"ds_write_b16 v{V_QW}, v{AK} offset:{D}", f"ds_write_b16_d16_hi v{V_QW}, v{AK} offset:{D+RSX}",
          f"ds_write_b16 v{V_QW}, v{AK+4} offset:{D+8}", f"ds_write_b16_d16_hi v{V_QW}, v{AK+4} offset:{D+RSX+8}"]
    k(vm[0]); k(vm[1])
    k(ke[0]); k(ke[1]); k(vm[2]); k(ke[2]); k(ke[3]); k(vm[3]); k(ke[4]); k(ke[5])
    k(kw[0]); k(kw[1]); k(vm[4]); k(kw[2]); k(kw[3])
    k("s_waitcnt lgkmcnt(4)")
    sg = []
    for ks in range(4):
        for T in range(2):
            acc = AQ + 4 * T
            sg.append(f"v_mfma_f32_16x16x32_bf16 {v(acc,4)}, {v(KSEG+16*T+4*ks,4)}, {v(QB[ks],4)}, {'0' if ks == 0 else v(acc,4)}")
    t2i = [f"v_mov_b32 v{AK}, 0", f"v_mov_b32 v{AK+1}, 0", f"v_mov_b32 v{AK+2}, 0xf149f2ca", f"v_mov_b32 v{AK+3}, 0xf149f2ca",
           f"s_lshl_b32 s5, s{S_W}, 6", f"v_add_u32 v{V_TMP}, s5, v{V_KR}"]
    for i in range(4): k(sg[i])
    k("s_waitcnt lgkmcnt(0)\ns_barrier")
    ST(4)
    for ks in range(4): k(f"ds_read_b128 {v(KA[ks] + 0,4)}, v{V_KR} offset:{64*ks}") if False else None
    ilv(k, sg[4:], t2i, per=2)
    for ks in range(4): k(f"ds_read_b128 {v(KA[ks],4)}, v{V_KR} offset:{64*ks}")
    k(f"ds_read_b128 {v(AK+4,4)}, v{V_TMP}")
    def wo_off(f):
        tau, eb = f >> 2, f & 3
        return (eb >> 1) * 16384 + tau * 4096 + (eb & 1) * 2048
    def wslot(f): return WS10 if f == 0 else WSLOT[(f - 1) % 9]
    def wo_read(f):
        slot = wslot(f)
        return [f"ds_read_b128 {v(slot+4*half,4)}, v{V_WO} offset:{wo_off(f)+half*1024}" for half in range(2)]
    w01 = wo_read(1) + wo_read(2)
    S = [AQ + i for i in range(8)] + [AK, AK + 1]
    M, M2 = AK + 4, AK + 5
    X1, X2 = V_TMP, MA[0] + 0
    for i, m in enumerate(vm[5:]):
        k(m)
        if i >= 3: k(w01[i - 3])
    k("s_waitcnt lgkmcnt(5)")
    ve = [f"v_add_f32 v{AV}, v{AV}, v{AV+1}", f"v_add_f32 v{AV+2}, v{AV+2}, v{AV+3}",
          f"v_add_f32 v{AV+4}, v{AV+4}, v{AV+5}", f"v_add_f32 v{AV+6}, v{AV+6}, v{AV+7}",
          f"v_cvt_pk_bf16_f32 v{AV}, v{AV}, v{AV+2}", f"v_cvt_pk_bf16_f32 v{AV+1}, v{AV+4}, v{AV+6}"]
    ms = [f"v_mfma_f32_16x16x32_bf16 {v(AK,4)}, {v(KA[ks],4)}, {v(QB[ks],4)}, {v(AK,4)}" for ks in range(4)]
    X1, X2 = V_TMP, AV + 6
    k(ms[0]); k(f"v_max3_f32 v{X1}, v{S[0]}, v{S[1]}, v{S[2]}"); k(f"v_max3_f32 v{X1}, v{X1}, v{S[3]}, v{S[4]}")
    k(ms[1]); k(f"v_max3_f32 v{X1}, v{X1}, v{S[5]}, v{S[6]}"); k(f"v_max_f32 v{X1}, v{X1}, v{S[7]}")
    k(ms[2]); k(ve[0]); k(ve[1])
    k(ms[3]); k(ve[2]); k(ve[3]); k(ve[4]); k(ve[5])
    k("s_waitcnt lgkmcnt(4)")
    kms = "" if 'plainkm' in X else "sc1"
    if 'nokm' not in X:
        k(f"buffer_store_dwordx4 {v(AK+4,4)}, v{V_KMO}, {WSs}, s{S_KM} offen {kms}")
        k(f"buffer_store_dwordx2 {v(AV,2)}, v{V_VMO}, {WSs}, s{S_VM} offen {kms}")
    else:
        k(f"buffer_store_dwordx4 {v(AK+4,4)}, v{V_KMO}, {WSs}, s{S_RST} offen offset:2048") if False else k("s_nop 0")
    ST(5)
    rest = [x for f in (3, 4, 5, 6, 7, 8) for x in wo_read(f)]
    k(f"v_mov_b32 v{AV+2}, v{AV+1}\nv_mov_b32 v{AV+3}, 0")
    k(f"v_max3_f32 v{M}, v{X1}, v{S[8]}, v{S[9]}")
    k(f"v_mov_b32 v{M2}, v{M}")
    k(f"v_mov_b32 v{QB[0]}, s{S_ONES}\nv_mov_b32 v{QB[0]+1}, s{S_ONES}")
    k(f"v_permlane32_swap_b32 v{M}, v{M2}")
    k(f"v_max_f32 v{M}, v{M}, v{M2}")
    k(f"v_mov_b32 v{M2}, v{M}")
    k(f"v_mov_b32 v{QB[0]+2}, s{S_ONES}\nv_mov_b32 v{QB[0]+3}, s{S_ONES}")
    k(f"v_permlane16_swap_b32 v{M}, v{M2}")
    k(f"v_max_f32 v{M}, v{M}, v{M2}")
    k(f"v_mul_f32 v{M}, {f2u(-c):#x}, v{M}")
    k(f"s_cmp_eq_u32 s{S_STEP}, {NSEG-1}")
    for r in S[::2]:
        k(f"v_pk_fma_f32 {v(r,2)}, {v(r,2)}, s[{S_C}:{S_C+1}], {v(M,2)} op_sel_hi:[1,0,0]")
    for i, r in enumerate(S):
        k(f"v_exp_f32 v{r}, v{r}")
        if i % 2 == 1 and rest: k(rest.pop(0))
    for i in range(4): k(f"v_cvt_pk_bf16_f32 v{AQ+i}, v{AQ+2*i}, v{AQ+2*i+1}")
    k(f"v_cvt_pk_bf16_f32 v{AK}, v{AK}, v{AK+1}\nv_mov_b32 v{AK+1}, 0")
    ST(6)
    O0, O1 = AQ + 4, AV + 4
    Lr, L2 = AK + 2, AK + 3
    k(f"s_waitcnt vmcnt({(8 if flags else 6) - (2 if 'nokm' in X else 0)})")
    ONES = QB[0]
    LA = AK + 4
    k(f"v_mfma_f32_16x16x32_bf16 {v(LA,4)}, {v(ONES,4)}, {v(AQ,4)}, 0")
    k(f"s_cbranch_scc1 {P}_done")
    rest += wo_read(9)
    k(f"v_mfma_f32_16x16x32_bf16 {v(O0,4)}, {v(VSEG,4)}, {v(AQ,4)}, 0")
    k(rest.pop(0)); k(rest.pop(0))
    k(f"v_mfma_f32_16x16x32_bf16 {v(O1,4)}, {v(VSEG+4,4)}, {v(AQ,4)}, 0")
    W8 = rest[-2:]; rest = rest[:-2]
    k(rest.pop(0)); k(rest.pop(0))
    k(f"v_mfma_f32_16x16x16_bf16 {v(LA,4)}, {v(ONES,2)}, {v(AK,2)}, {v(LA,4)}")
    k(rest.pop(0)); k(rest.pop(0))
    k(f"v_mfma_f32_16x16x16_bf16 {v(O0,4)}, {v(AV,2)}, {v(AK,2)}, {v(O0,4)}")
    for x in rest: k(x)
    k(f"v_mfma_f32_16x16x16_bf16 {v(O1,4)}, {v(AV+2,2)}, {v(AK,2)}, {v(O1,4)}")
    k(f"v_rcp_f32 v{Lr}, v{LA}")
    for x in W8: k(x)
    for r in (0, 2): k(f"v_pk_mul_f32 {v(O0+r,2)}, {v(O0+r,2)}, {v(Lr,2)} op_sel_hi:[1,0]")
    k(f"v_cvt_pk_bf16_f32 v{O0}, v{O0}, v{O0+1}\nv_cvt_pk_bf16_f32 v{O0+1}, v{O0+2}, v{O0+3}")
    k(f"ds_write_b64 v{V_OW}, {v(O0,2)}")
    for r in (0, 2): k(f"v_pk_mul_f32 {v(O1+r,2)}, {v(O1+r,2)}, {v(Lr,2)} op_sel_hi:[1,0]")
    k(f"v_cvt_pk_bf16_f32 v{O1}, v{O1}, v{O1+1}\nv_cvt_pk_bf16_f32 v{O1+1}, v{O1+2}, v{O1+3}")
    k(f"ds_write_b64 v{V_OW}, {v(O1,2)} offset:256")
    ST(7)
    for x in wo_read(0): k(x)
    for r in range(4): k(f"v_mov_b32 v{WACC[1]+r}, 0")
    k("s_waitcnt lgkmcnt(2)\ns_barrier")
    for eb in range(4): k(f"ds_read_b128 {v(OA[eb],4)}, v{V_WARM} offset:{512*eb}")
    for r in range(4): k(f"v_mov_b32 v{WACC[0]+r}, 0")
    ST(8)
    inflight = [('w', 0), ('w', 0), ('oa', 0), ('oa', 1), ('oa', 2), ('oa', 3)]
    def wait_for(tag):
        if tag in inflight:
            last = max(i for i, x in enumerate(inflight) if x == tag)
            k(f"s_waitcnt lgkmcnt({len(inflight) - 1 - last})")
            del inflight[:last + 1]
    def epi(tau):
        a0 = WACC[tau]
        return [f"v_cvt_pk_bf16_f32 v{a0}, v{a0}, v{a0+2}", f"v_cvt_pk_bf16_f32 v{a0+1}, v{a0+1}, v{a0+3}"]
    S_INB = [S_INBC, S_INB1, S_INBC1, S_INB3]
    def pstore(tau): return f"buffer_store_dwordx2 {v(WACC[tau],2)}, v{V_PART}, {WSs}, s{S_INB[tau]} offen {sc}"
    for f in range(16):
        tau, eb = f >> 2, f & 3
        wait_for(('oa', eb)); wait_for(('w', f))
        k(f"v_smfmac_f32_16x16x64_bf16 {v(WACC[tau],4)}, {v(OA[eb],4)}, {v(wslot(f),8)}, v{V_IDX}")
        if 1 <= f and f + 9 < 16:
            for x in wo_read(f + 9): k(x)
            inflight += [('w', f + 9)] * 2
        for z in {1: (0, 4), 2: (1, 5), 3: (2,), 4: (3,), 7: (6,), 8: (7,)}.get(f, ()): k(f"v_mov_b32 v{WS10 + z}, 0")
        if f in (5, 9, 13): k(epi((f - 5) // 4)[0])
        if f in (6, 10, 14): k(epi((f - 6) // 4)[1])
        if f in (7, 11, 15): k(pstore((f - 7) // 4))
    for x in epi(3): k(x)
    k(pstore(3))
    ST(9)
    ft(1)
    if common.TRACE_ON:
        k(f"s_waitcnt lgkmcnt(0)\ns_lshl_b32 s5, s{S_STEP}, 2\ns_add_u32 s5, s5, {L_OX + 2048 + 1024}\nv_mov_b32 v56, s5\nv_mov_b32 v57, s96\nds_write_b32 v56, v57")
    for r in range(AQ, AQ + 8): k(f"v_mov_b32 v{r}, 0")
    for r in range(4): k(f"v_mov_b32 v{SENT+r}, -1")
    k(f"s_mov_b32 s{S_T1}, s{S_MEMN}\ns_mov_b32 s{S_T2}, s{S_INBC}\ns_mov_b32 s7, s{S_MEMP}")
    k(f"""
    s_mov_b32 s{S_MEMP}, s{S_MEMC}
    s_mov_b32 s{S_MEMC}, s{S_MEMN}
    s_add_u32 s5, s{S_MEMN}, 0x2000
    s_and_b32 s5, s5, 0x7fff
    s_or_b32 s{S_MEMN}, s5, {MEMR}
    s_lshl_b32 s6, s{S_H}, 13
    s_add_u32 s{S_RST}, s{S_INBC}, s6
    s_add_u32 s5, s{S_INBC}, {INB_SLOT}
    s_cmp_ge_u32 s5, {INBOX + 3*INB_SLOT}
    s_cselect_b32 s{S_INBC}, {INBOX}, s5
    s_add_u32 s{S_INBC1}, s{S_INBC}, 32768
    s_add_u32 s{S_INB1}, s{S_INBC}, 16384
    s_add_u32 s{S_INB3}, s{S_INBC}, 49152
    s_add_u32 s{S_KM}, s{S_KM}, 65536
    s_add_u32 s{S_VM}, s{S_VM}, 65536
    s_add_u32 s{S_T0}, s{S_KFN}, {VF - KF}
    s_add_u32 s{S_KFN}, s{S_KFN}, {0 if 'fixkv' in X else 8192}
    s_xor_b32 s{S_KM0}, s{S_KM0}, 8192
    s_xor_b32 s{S_KRD}, s{S_KRD}, 8192
    """)
    assert MEMR == 0x10000 and L_KS % 16384 == 0
    if flags:
        k(f"s_mov_b32 s{S_FOFF}, s{S_FOFF2}\ns_mov_b32 s{S_FNEED}, s{S_FNEED2}")
        flag_next(3)
    k(f"s_add_u32 s{S_STEP}, s{S_STEP}, 1")
    k(f"s_cmp_ge_u32 s{S_W}, 2\ns_cbranch_scc1 {P}_w23")
    if D1: k(f"s_sleep {D1}")
    ST(12)
    L = f"{P}_pi"
    IA, IB = 56, 80
    def inb_issue(r):
        for i in range(4):
            k(f"buffer_load_dwordx4 {v(r+4*i,4)}, v{V_INB}, {WSs}, s{S_T2} offen offset:{1024*i} sc1")
    def inb_reduce(r, pend):
        R = lambda i: r + i
        chk = [f"v_max3_u32 v76, v{R(0)}, v{R(1)}, v{R(2)}", f"v_max3_u32 v77, v{R(3)}, v{R(4)}, v{R(5)}", f"v_max3_u32 v76, v76, v{R(6)}, v{R(7)}",
               f"v_max3_u32 v77, v77, v{R(8)}, v{R(9)}", f"v_max3_u32 v76, v76, v{R(10)}, v{R(11)}", f"v_max3_u32 v77, v77, v{R(12)}, v{R(13)}",
               f"v_max3_u32 v76, v76, v{R(14)}, v{R(15)}", "v_max_u32 v76, v76, v77"]
        k(f"s_waitcnt vmcnt({pend+3})")
        k(f"v_mfma_f32_16x16x32_bf16 v[72:75], {v(V_SEL,4)}, {v(r,4)}, 0"); k(chk[0])
        k(f"s_waitcnt vmcnt({pend+2})")
        k(f"v_mfma_f32_16x16x32_bf16 v[72:75], {v(V_SEL,4)}, {v(r+4,4)}, v[72:75]"); k(chk[1]); k(chk[2])
        k(f"s_waitcnt vmcnt({pend+1})")
        k(f"v_mfma_f32_16x16x32_bf16 v[72:75], {v(V_SEL,4)}, {v(r+8,4)}, v[72:75]"); k(chk[3]); k(chk[4])
        k(f"s_waitcnt vmcnt({pend})")
        k(f"v_mfma_f32_16x16x32_bf16 v[72:75], {v(V_SEL,4)}, {v(r+12,4)}, v[72:75]")
        k(chk[5]); k(chk[6]); k(chk[7])
        k(f"v_cmp_eq_u32 vcc, -1, v76")
    k(f"s_mov_b32 s{S_SPIN}, 0")
    inb_issue(IA)
    for r in range(AQ + 8, AQ + 24): k(f"v_mov_b32 v{r}, 0")
    if 'gap2' in X: k("s_sleep 1")
    inb_issue(IB)
    k.label(L)
    inb_reduce(IA, 4)
    k(f"s_cbranch_vccnz {L}_retry")
    def cold_pi():
        k.label(f"{L}_retry")
        inb_issue(IA)
        if stamps: k("s_add_u32 s59, s59, 1")
        inb_reduce(IB, 4)
        k(f"s_cbranch_vccz {L}_ok")
        inb_issue(IB)
        k(f"s_add_u32 s{S_SPIN}, s{S_SPIN}, 1")
        k(f"s_cmp_gt_u32 s{S_SPIN}, 100000\ns_cbranch_scc0 {L}")
        k(f"s_add_u32 s{S_ERR}, s{S_ERR}, 1\ns_waitcnt vmcnt(0)\ns_branch {L}_ok")
    cold.append(cold_pi)
    k.label(f"{L}_ok")
    ST(10)
    ft(2)
    k("s_mov_b32 vcc_lo, 0xff00ff00\ns_mov_b32 vcc_hi, 0xff00ff00")
    for r in range(4):
        k(f"v_add_f32_dpp v{72+r}, v{72+r}, v{72+r} row_ror:8 row_mask:0xf bank_mask:0xf")
    k("v_cvt_pk_bf16_f32 v72, v72, v73\nv_cvt_pk_bf16_f32 v73, v74, v75")
    k("v_cndmask_b32 v72, v72, v73, vcc")
    k(f"buffer_store_dword v72, v{V_PUB}, {WSs}, s{S_T1} offen {sc}")
    k.label(f"{P}_join")
    k("s_barrier")
    ST(11)
    ft(3)
    ft_flush()
    ST.collect()
    if D2: k(f"s_sleep {D2}")
    k(f"s_mov_b32 s{S_SPIN}, 0")
    mem_poll_issue()
    k("s_waitcnt vmcnt(3)")
    k_frag_reads()
    if 'gap' in X: k("s_sleep 1")
    mem_poll_issue(MB)
    k(f"s_branch {P}_step")
    k.label(f"{P}_w23")
    if 'ackt' in X: k("s_waitcnt vmcnt(0)\ns_memtime s[88:89]")
    for r in range(AQ + 8, AQ + 24): k(f"v_mov_b32 v{r}, 0")
    k("s_waitcnt vmcnt(2)")
    k(f"buffer_store_dword v{SENT}, v{V_PUB}, {WSs}, s7 offen {sc}")
    if stamps: k("s_memtime s[84:85]" if 'ackt' in X else "s_memtime s[88:89]\ns_memtime s[84:85]")
    k(f"s_branch {P}_join")
    for cb in cold: cb()
    k.label(f"{P}_done")
    k("s_waitcnt vmcnt(0)\ns_barrier")
    if flags:
        k(f"s_cmp_lg_u32 s{S_W}, 2\ns_cbranch_scc1 {P}_nfin\nv_mov_b32 v{MA[0]}, {NSEG}\ns_mov_b64 exec, 1")
        k(f"buffer_store_dword v{MA[0]}, v{V_L16}, {WSs}, s{S_KVMF} offen sc1")
        k("s_mov_b64 exec, -1\ns_waitcnt vmcnt(0)")
        k.label(f"{P}_nfin")
    if FT:
        k(f"s_waitcnt lgkmcnt(0)\ns_barrier\nv_lshrrev_b32 v56, 2, v{V_L16}\ns_lshl_b32 s6, s{S_W}, 8\nv_add_u32 v56, s6, v56")
        k(f"v_add_u32 v57, {L_OX + 2048}, v56\nds_read_b32 v58, v57\ns_waitcnt lgkmcnt(0)")
        k(f"s_lshl_b32 s5, s{S_H}, 10\ns_add_u32 s5, s5, {TRACE}\nbuffer_store_dword v58, v56, {WSs}, s5 offen\ns_waitcnt vmcnt(0)")
    if stamps and flags:
        k(f"s_lshl_b32 s5, s2, 10\ns_lshl_b32 s6, s{S_W}, 6\ns_add_u32 s5, s5, s6\ns_add_u32 s5, s5, {TRACE + 256}\nv_mov_b32 v56, 0")
        for j in range(4):
            for r in range(4): k(f"v_mov_b32 v{60+4*j+r}, s{44+4*j+r}")
            k(f"buffer_store_dwordx4 {v(60+4*j,4)}, v56, {WSs}, s5 offen offset:{16*j}")
        k("s_waitcnt vmcnt(0)")
    if common.TRACE_ON:
        k(f"s_memrealtime s[98:99]\ns_waitcnt lgkmcnt(0)\nv_mov_b32 v56, {L_OX + 2048 + 1024 + 63*4}\nv_mov_b32 v57, s98\nds_write_b32 v56, v57\ns_waitcnt lgkmcnt(0)")
        k(f"v_lshrrev_b32 v56, 2, v{V_L16}\nv_add_u32 v57, {L_OX + 2048 + 1024}, v56\nds_read_b32 v58, v57\ns_waitcnt lgkmcnt(0)")
        k(f"s_lshl_b32 s5, s2, 10\ns_add_u32 s5, s5, {TRACE}\nbuffer_store_dword v58, v56, {WSs}, s5 offen\ns_waitcnt vmcnt(0)")
    return ST


def xcc_decide(k, P, slow_label):
    L = f"{P}_xd"
    k("s_mov_b32 s72, 0")
    k.label(L)
    k("v_readfirstlane_b32 s70, v112\nv_readfirstlane_b32 s71, v113")
    k(f"s_lshr_b32 s5, s71, 16\ns_cmp_ge_u32 s5, 32\ns_cbranch_scc1 {L}_all")
    k(f"s_add_u32 s72, s72, 1\ns_cmp_gt_u32 s72, 0x20000\ns_cbranch_scc1 {slow_label}")
    k(f"s_sleep 4\nbuffer_load_dwordx2 v[112:113], off, s[{DBG}:{DBG+3}], 0 sc1\ns_waitcnt vmcnt(0)\ns_branch {L}")
    k.label(f"{L}_all")
    k("s_getreg_b32 s5, hwreg(HW_REG_XCC_ID, 0, 4)\ns_mul_i32 s5, s5, 6\ns_lshr_b64 s[70:71], s[70:71], s5\ns_and_b32 s5, s70, 63")
    k(f"s_cmp_lg_u32 s5, 32\ns_cbranch_scc1 {slow_label}")
```

```python
from asm import *
from layout import *
import common
from common import dbg_srd, dbg_add, dbg_wait, DBG, DBG_FLAGS, DBG_LN, N_FLAG_WGS
import math, struct

def f2u(x): return struct.unpack("<I", struct.pack("<f", x))[0]

L_WO = 0
L_KS = 131072
L_MX = 147456
L_QX = 155648
L_KX = L_QX + 2304
L_OX = L_KX + 2304
RSX = 288
S_H, S_W = 3, 4
WS = 8
WSRD = 12
S_STEP = 20
S_MEMC, S_MEMN, S_MEMP = 21, 22, 23
S_INBC, S_INBC1, S_INBP = 24, 25, 26
S_KFN, S_VFN, S_KM, S_VM = 27, 28, 29, 30
S_KSM0 = 31
S_SPIN = 33
S_C = 32
S_T0, S_T1, S_T2 = 34, 35, 36
S_ERR = 37
S_KSLOT = 38
S_FLG = 39
S_JUNK = 19
V_IDX, V_L16, V_FLV, V_MEMP, V_MEMW = 1, 2, 3, 4, 5
V_MR = 6
V_PART, V_INB, V_PUB = 9, 10, 11
V_SEL = 12
V_QW, V_QR, V_KR, V_OW, V_WO, V_KMO, V_VMO = 16, 17, 18, 19, 20, 21, 22
V_TMP = 23
V_WARM = 0
AQ, AK, AV = 24, 32, 40
MA = [48, 52, 56, 60, 64, 68, 72, 76]
KSEG = 80
QB = [48, 52, 112, 116]
KA = [80, 84, 88, 92]
VSEG = 120
WSLOT = [96, 104, 80, 88, 112, 56, 64, 72, 120]
WS10 = 40
WACC = [28, 36, 40, 44]
OA = [24, 32, 48, 52]
OUT = [120, 124]
WV0 = 128

def wfrag(mat, t, u):
    f = t * 8 + u
    if mat == 0: return a(8 * f, 8)
    if mat == 1: return a(128 + 8 * f, 8)
    return v(WV0 + 8 * f, 8)
def wfrag_pair(mat, t, u, rp):
    f = t * 8 + u
    if mat == 0: return a(8 * f + 2 * rp, 2)
    if mat == 1: return a(128 + 8 * f + 2 * rp, 2)
    return v(WV0 + 8 * f + 2 * rp, 2)

def srd(k, r, ptr, nbytes):
    k(f"s_mov_b32 s{r}, s{ptr}")
    k(f"s_and_b32 s{r+1}, s{ptr+1}, 0xffff")
    k(f"s_mov_b32 s{r+2}, {nbytes}")
    k(f"s_mov_b32 s{r+3}, 0x20000")

class Stamps:
    def __init__(self, k, on): self.k = k; self.on = on; self.used = []
    def init(self, n=16):
        if not self.on: return
        for i in range(n): self.k(f"s_mov_b32 s{44+i}, 0")
        self.k("s_memtime s[40:41]\ns_waitcnt lgkmcnt(0)\ns_mov_b32 s42, s40")
    def __call__(self, i):
        if not self.on: return
        self.used.append(i)
        self.k(f"s_memtime s[{64+2*i}:{65+2*i}]")
    def collect(self):
        if not self.on: return
        self.k("s_waitcnt lgkmcnt(0)")
        prev = 42
        for i in self.used:
            self.k(f"s_sub_u32 s43, s{64+2*i}, s{prev}\ns_add_u32 s{44+i}, s{44+i}, s43")
            prev = 64 + 2 * i
        self.k(f"s_mov_b32 s42, s{prev}")

def sm(k, mat, t, u):
    acc = [AQ, AK, AV][mat] + 4 * t
    k(f"v_smfmac_f32_16x16x64_bf16 {v(acc,4)}, {v(MA[u],4)}, {wfrag(mat,t,u)}, v{V_IDX}")

def chain_setup(k, P, merged=False):
    k(f"""
    s_load_dwordx8 s[16:23], s[0:1], {A_WQ}
    s_load_dwordx2 s[24:25], s[0:1], {A_MEM0}
    s_load_dwordx2 s[26:27], s[0:1], {D_WS}
    v_lshrrev_b32 v24, 6, v0
    v_and_b32 v0, 63, v0
    v_readfirstlane_b32 s{S_W}, v24
    v_and_b32 v24, 15, v0          ; n
    v_lshrrev_b32 v25, 4, v0       ; g
    v_lshlrev_b32 v{V_L16}, 4, v0
    v_and_b32 v26, 1, v0
    v_mul_u32_u24 v26, 0xaaaa, v26
    v_add_u32 v{V_IDX}, 0x4444, v26
    s_lshl_b32 s5, s{S_W}, 11
    v_add_u32 v{V_MEMP}, s5, v{V_L16}
    v_add_u32 v{V_MEMW}, {L_MX}, v{V_MEMP}
    v_xor_b32 v{V_MR}, 2048, v{V_MEMW}
    v_xor_b32 v{V_MR+1}, 4096, v{V_MEMW}
    v_xor_b32 v{V_MR+2}, 6144, v{V_MEMW}
    s_lshl_b32 s5, s{S_W}, 4
    v_lshrrev_b32 v26, 2, v24
    v_add_u32 v26, s5, v26
    v_lshlrev_b32 v26, 12, v26
    s_lshl_b32 s5, s{S_H}, 7
    v_add_u32 v26, s5, v26
    v_and_b32 v27, 3, v24
    v_lshlrev_b32 v27, 5, v27
    v_add_u32 v26, v26, v27
    v_lshlrev_b32 v27, 3, v25
    v_add_u32 v{V_PART}, v26, v27
    s_and_b32 s7, s{S_W}, 1
    s_lshl_b32 s6, s{S_H}, 1
    s_add_u32 s6, s6, s7
    s_lshl_b32 s5, s6, 12
    v_add_u32 v{V_INB}, s5, v{V_L16}
    s_lshr_b32 s5, s6, 3
    s_lshl_b32 s5, s5, 10
    s_bfe_u32 s7, s6, 0x20001
    s_lshl_b32 s7, s7, 8
    s_add_u32 s5, s5, s7
    s_and_b32 s7, s6, 1
    s_lshl_b32 s7, s7, 4
    s_add_u32 s5, s5, s7
    v_and_b32 v26, 1, v24
    v_lshlrev_b32 v26, 2, v26
    v_lshrrev_b32 v27, 3, v24
    v_lshl_add_u32 v26, v27, 1, v26
    v_and_b32 v27, 1, v25
    v_add_u32 v28, v26, v27          ; m
    v_lshlrev_b32 v26, 5, v28
    v_bfe_u32 v30, v24, 1, 2         ; nn
    v_lshl_add_u32 v26, v30, 2, v26
    v_add_u32 v{V_PUB}, s5, v26
    v_and_b32 v26, 3, v24
    v_bfe_u32 v27, v24, 2, 1
    v_lshlrev_b32 v27, 4, v27
    v_mov_b32 v29, 0x3f80
    v_lshlrev_b32 v29, v27, v29
    """)
    for r in range(4):
        k(f"v_cmp_eq_u32 vcc, {r}, v26\nv_cndmask_b32 v{V_SEL+r}, 0, v29, vcc")
    k(f"""
    v_mul_u32_u24 v26, {2*RSX}, v25
    v_lshrrev_b32 v27, 2, v24
    v_lshlrev_b32 v27, 4, v27
    v_add_u32 v26, v26, v27
    v_and_b32 v27, 3, v24
    v_lshlrev_b32 v27, 1, v27
    v_add_u32 v26, v26, v27
    s_lshl_b32 s5, s{S_W}, 6
    s_add_u32 s5, s5, {L_QX}
    v_add_u32 v{V_QW}, s5, v26
    v_and_b32 v26, 7, v24
    v_mul_u32_u24 v26, {RSX}, v26
    v_lshlrev_b32 v27, 4, v25
    v_add_u32 v26, v26, v27
    v_add_u32 v{V_QR}, {L_QX}, v26
    ; m'(x) = 2*(x>>2) + (x&1)
    v_lshrrev_b32 v26, 2, v24
    v_lshlrev_b32 v26, 1, v26
    v_and_b32 v29, 1, v24
    v_add_u32 v29, v26, v29
    v_mul_u32_u24 v26, {RSX}, v29
    v_add_u32 v26, v26, v27
    v_add_u32 v{V_KR}, {L_KX}, v26
    v_lshlrev_b32 v26, 8, v29
    v_add_u32 v26, v26, v27
    s_lshl_b32 s5, s{S_W}, 6
    v_add_u32 v{V_KMO}, s5, v26
    v_lshlrev_b32 v26, 3, v0
    s_lshl_b32 s5, s{S_W}, 9
    v_add_u32 v{V_VMO}, s5, v26
    v_and_b32 v26, 7, v24
    v_lshlrev_b32 v26, 4, v26
    v_lshrrev_b32 v27, 1, v25
    v_lshlrev_b32 v27, 7, v27
    v_add_u32 v26, v26, v27
    v_and_b32 v27, 1, v25
    v_lshlrev_b32 v27, 3, v27
    v_add_u32 v26, v26, v27
    s_lshl_b32 s5, s{S_W}, 9
    s_add_u32 s5, s5, {L_OX}
    v_add_u32 v{V_OW}, s5, v26
    s_lshl_b32 s5, s{S_W}, 15
    v_add_u32 v{V_WO}, s5, v{V_L16}
    s_waitcnt lgkmcnt(0)
    """)
    srd(k, WS, 26, WS_BYTES)
    srd(k, WSRD, 24, 8192)
    k(f"""
    s_cmp_ge_u32 s{S_W}, 2
    s_cbranch_scc1 {P}_nopub0
    s_lshr_b32 s5, s6, 2
    s_lshl_b32 s5, s5, 5
    s_and_b32 s7, s6, 3
    s_lshl_b32 s7, s7, 2
    s_add_u32 s5, s5, s7
    s_lshl_b32 s5, s5, 1
    v_lshlrev_b32 v26, 10, v28
    v_lshl_add_u32 v26, v30, 1, v26
    v_add_u32 v26, s5, v26
    buffer_load_ushort v40, v26, s[{WSRD}:{WSRD+3}], 0 offen
    buffer_load_ushort v41, v26, s[{WSRD}:{WSRD+3}], 0 offen offset:32
    """)
    k.label(f"{P}_nopub0")
    k(f"""
    v_lshrrev_b32 v26, 4, v0
    v_bfe_u32 v27, v0, 5, 1
    v_lshlrev_b32 v27, 1, v27
    v_and_b32 v28, 15, v0
    v_xor_b32 v27, v27, v28
    v_lshlrev_b32 v27, 4, v27
    v_lshlrev_b32 v26, 13, v26
    v_add_u32 v26, v26, v27
    s_lshl_b32 s5, s{S_H}, 8
    v_add_u32 v24, s5, v26
    v_xor_b32 v25, 64, v24
    v_xor_b32 v39, 128, v24
    v_xor_b32 v23, 192, v24
    v_bfe_u32 v28, v0, 2, 2        ; r
    v_and_b32 v29, 3, v0           ; c
    v_lshrrev_b32 v30, 4, v0       ; gB
    v_and_b32 v31, 1, v28          ; r&1
    v_lshrrev_b32 v32, 1, v28      ; r>>1
    v_and_b32 v33, 1, v30          ; gB&1
    v_lshrrev_b32 v34, 1, v30      ; gB>>1
    v_lshlrev_b32 v35, 4, v31
    v_lshl_add_u32 v35, v34, 3, v35
    v_lshl_add_u32 v35, v32, 2, v35
    v_lshl_add_u32 v35, v33, 1, v35 ; Lrow
    v_lshlrev_b32 v35, 8, v35
    v_lshlrev_b32 v36, 2, v31
    v_lshl_add_u32 v36, v32, 1, v36
    v_add_u32 v36, v36, v33        ; F
    v_lshlrev_b32 v36, 1, v36      ; 2F
    v_lshrrev_b32 v37, 1, v29      ; c>>1
    s_lshl_b32 s5, s{S_W}, 2
    v_add_u32 v37, s5, v37
    v_xor_b32 v37, v37, v36
    v_lshlrev_b32 v37, 4, v37
    v_and_b32 v38, 1, v29
    v_lshl_add_u32 v37, v38, 3, v37
    v_add_u32 v35, v35, v37
    s_lshl_b32 s5, s{S_W}, 15
    v_add_u32 v26, s5, v35
    v_xor_b32 v27, 32, v26
    """)
    for mat in range(3):
        srd(k, WSRD, 16 + 2 * mat, 512 * 4096 * 2)
        k(f"s_lshl_b32 s5, s{S_W}, 20\ns_lshl_b32 s6, s{S_W}, 15")
        for y in range(32):
            k(f"s_mov_b32 m0, s6")
            k(f"buffer_load_dwordx4 v{(24, 25, 39, 23)[(y & 1) + 2 * ((y >> 2) & 1)]}, s[{WSRD}:{WSRD+3}], s5 offen lds")
            if y < 31: k(f"s_add_u32 s5, s5, 32768\ns_add_u32 s6, s6, 1024")
        if mat == 0 and merged:
            for r in range(4): k(f"v_mov_b32 v{44+r}, -1")
            k(f"s_lshl_b32 s7, s{S_H}, 13\ns_add_u32 s7, s7, {INBOX}")
            for slot in range(3):
                k(f"buffer_store_dwordx4 v[44:47], v{V_MEMP}, s[{WS}:{WS+3}], s7 offen sc1")
                k(f"buffer_store_dwordx4 v[44:47], v{V_MEMP}, s[{WS}:{WS+3}], s7 offen offset:1024 sc1")
                if slot < 2: k("s_add_u32 s7, s7, 0x40000")
            for slot in range(1, 4):
                k(f"s_mov_b32 s7, {MEMR + slot*8192}\nbuffer_store_dword v44, v{V_PUB}, s[{WS}:{WS+3}], s7 offen sc1")
            k(f"s_lshl_b32 s7, s{S_H}, 4\ns_add_u32 s7, s7, {FLAGS + F_KVM}\nv_mov_b32 v48, 0")
            k(f"buffer_store_dword v48, off, s[{WS}:{WS+3}], s7 sc1")
        k("s_waitcnt vmcnt(0)")
        if mat == 0:
            k(f"s_cmp_ge_u32 s{S_W}, 2\ns_cbranch_scc1 {P}_nopub1")
            k(f"v_lshl_or_b32 v40, v41, 16, v40\ns_mov_b32 s7, {MEMR}")
            k(f"buffer_store_dword v40, v{V_PUB}, s[{WS}:{WS+3}], s7 offen sc1")
            k.label(f"{P}_nopub1")
        k("s_barrier")
        if mat == 0 and merged: dbg_add(k, DBG_FLAGS, 46, S_W)
        if mat == 1 and merged:
            La = f"{P}_ann"
            k(f"s_cmp_lg_u32 s{S_W}, 0\ns_cbranch_scc1 {La}")
            k("s_getreg_b32 s70, hwreg(HW_REG_XCC_ID, 0, 4)\ns_mul_i32 s70, s70, 6\ns_lshl_b64 s[70:71], 1, s70\ns_add_u32 s71, s71, 0x10000")
            k("v_mov_b32 v44, s70\nv_mov_b32 v45, s71\ns_mov_b64 exec, 1")
            k(f"buffer_atomic_add_x2 v[44:45], off, s[{DBG}:{DBG+3}], 0 sc1")
            k("s_mov_b64 exec, -1")
            k.label(La)
        for t in range(2):
            for u in range(8):
                k(f"v_xor_b32 v28, {u*16384}, v{26+t}")
                for rp in range(4):
                    off = 8192 * (rp >> 1) + 256 * (rp & 1)
                    k(f"ds_read_b64_tr_b16 {wfrag_pair(mat,t,u,rp)}, v28 offset:{off}")
                if u % 2 == 1: k("s_waitcnt lgkmcnt(0)")
        k("s_waitcnt lgkmcnt(0)\ns_barrier")
    srd(k, WSRD, 22, 4096 * 512 * 2)
    k(f"""
    v_lshrrev_b32 v26, 4, v0
    v_and_b32 v27, 1, v26
    v_lshlrev_b32 v27, 2, v27        ; 4*(row&1)
    v_and_b32 v28, 15, v0
    v_xor_b32 v27, v27, v28
    v_lshlrev_b32 v27, 4, v27
    v_lshlrev_b32 v26, 10, v26
    v_add_u32 v26, v26, v27
    s_lshl_b32 s5, s{S_W}, 8
    v_add_u32 v24, s5, v26
    v_xor_b32 v25, 128, v24
    s_lshl_b32 s5, s{S_H}, 17
    s_lshl_b32 s6, s{S_W}, 15
    """)
    for y in range(32):
        k("s_mov_b32 m0, s6")
        k(f"buffer_load_dwordx4 v{24 + (y & 1)}, s[{WSRD}:{WSRD+3}], s5 offen lds")
        if y < 31: k("s_add_u32 s5, s5, 4096\ns_add_u32 s6, s6, 1024")
    k(f"""
    v_lshlrev_b32 v35, 3, v34
    v_lshl_add_u32 v35, v33, 2, v35
    v_add_u32 v35, v35, v31
    v_lshlrev_b32 v35, 8, v35
    v_lshlrev_b32 v36, 2, v31
    v_lshl_add_u32 v36, v33, 3, v36
    v_lshrrev_b32 v37, 1, v29
    v_lshl_add_u32 v37, v32, 1, v37
    v_xor_b32 v37, v37, v36
    v_lshlrev_b32 v37, 4, v37
    v_lshl_add_u32 v37, v38, 3, v37
    v_add_u32 v35, v35, v37
    s_lshl_b32 s5, s{S_W}, 15
    v_add_u32 v28, s5, v35
    """)
    if merged:
        k(f"buffer_load_dwordx2 v[112:113], off, s[{DBG}:{DBG+3}], 0 sc1")
        k(f"buffer_load_dword v114, off, s[{DBG}:{DBG+3}], 0 offset:{DBG_FLAGS} sc1")
    k("s_waitcnt vmcnt(0)")
    TMP = 48
    for half in range(2):
        for tau in range(4):
            k(f"v_xor_b32 v29, {64*tau}, v28")
            for e2 in range(2):
                eb = 2 * half + e2
                for rp in range(4):
                    off = (32 * eb + 16 * (rp >> 1) + 2 * (rp & 1)) * 256
                    k(f"ds_read_b64_tr_b16 {v(TMP+16*tau+8*e2+2*rp,2)}, v29 offset:{off}")
            k("s_waitcnt lgkmcnt(0)")
        for tau in range(4):
            for e2 in range(2):
                for hf in range(2):
                    k(f"ds_write_b128 v{V_WO}, {v(TMP+16*tau+8*e2+4*hf,4)} offset:{half*16384+tau*4096+e2*2048+hf*1024}")
        k("s_waitcnt lgkmcnt(0)")
    k("s_barrier")
    k(f"""
    v_and_b32 v24, 0x3e0, v{V_L16}
    v_lshrrev_b32 v24, 1, v24
    v_add_u32 v{V_WARM}, {L_OX}, v24
    """)

def step_offsets(k):
    k(f"""
    s_and_b32 s5, s{S_STEP}, 3
    s_lshl_b32 s5, s5, 13
    s_add_u32 s{S_MEMC}, s5, {MEMR}
    s_add_u32 s5, s{S_STEP}, 1
    s_and_b32 s5, s5, 3
    s_lshl_b32 s5, s5, 13
    s_add_u32 s{S_MEMN}, s5, {MEMR}
    s_add_u32 s5, s{S_STEP}, 3
    s_and_b32 s5, s5, 3
    s_lshl_b32 s5, s5, 13
    s_add_u32 s{S_MEMP}, s5, {MEMR}
    s_and_b32 s5, s{S_STEP}, 1
    s_lshl_b32 s6, s5, 18
    s_add_u32 s{S_INBC}, s6, {INBOX}
    s_add_u32 s{S_INBC1}, s{S_INBC}, 32768
    s_xor_b32 s6, s6, 0x40000
    s_add_u32 s{S_INBP}, s6, {INBOX}
    s_lshl_b32 s6, s5, 13
    s_add_u32 s{S_KSLOT}, s6, {L_KS}
    s_xor_b32 s6, s6, 8192
    s_lshl_b32 s7, s{S_W}, 11
    s_add_u32 s6, s6, s7
    s_add_u32 s{S_KSM0}, s6, {L_KS}
    s_lshl_b32 s5, s{S_H}, 6
    s_add_u32 s5, s5, s{S_STEP}
    s_add_u32 s5, s5, 1
    s_lshl_b32 s5, s5, 13
    s_add_u32 s{S_KFN}, s5, {KF}
    s_add_u32 s{S_VFN}, s5, {VF}
    s_lshl_b32 s5, s{S_STEP}, 5
    s_add_u32 s5, s5, s{S_H}
    s_lshl_b32 s5, s5, 11
    s_add_u32 s{S_KM}, s5, {KM}
    s_add_u32 s{S_VM}, s5, {VM}
    """)

def poll(k, P, name, r0, voff, soff, tmp, tmp2, cnt=None):
    L = f"{P}_{name}"
    k(f"s_mov_b32 s{S_SPIN}, 0")
    k.label(L)
    k(f"buffer_load_dwordx4 {v(r0,4)}, v{voff}, s[{WS}:{WS+3}], s{soff} offen sc1")
    k(f"buffer_load_dwordx4 {v(r0+4,4)}, v{voff}, s[{WS}:{WS+3}], s{soff} offen offset:1024 sc1")
    k(f"s_add_u32 s{S_SPIN}, s{S_SPIN}, 1")
    if cnt is not None: k(f"s_add_u32 s{cnt}, s{cnt}, 1")
    k(f"s_cmp_gt_u32 s{S_SPIN}, 20000")
    k(f"s_cbranch_scc1 {L}_fail")
    k("s_waitcnt vmcnt(0)")
    k(f"v_max3_u32 v{tmp}, v{r0}, v{r0+1}, v{r0+2}")
    k(f"v_max3_u32 v{tmp2}, v{r0+3}, v{r0+4}, v{r0+5}")
    k(f"v_max3_u32 v{tmp}, v{tmp}, v{r0+6}, v{r0+7}")
    k(f"v_max_u32 v{tmp}, v{tmp}, v{tmp2}")
    k(f"v_cmp_eq_u32 vcc, -1, v{tmp}")
    k(f"s_cbranch_vccnz {L}")
    k(f"s_branch {L}_ok")
    k.label(f"{L}_fail")
    k(f"s_add_u32 s{S_ERR}, s{S_ERR}, 1")
    k("s_waitcnt vmcnt(0)")
    k.label(f"{L}_ok")

def ilv(k, main, fill, start=0, per=1):
    fill = list(fill)
    for i, m in enumerate(main):
        k(m)
        if i >= start:
            for _ in range(per):
                if fill: k(fill.pop(0))
    for f in fill: k(f)

def smt(mat, t, u):
    acc = [AQ, AK, AV][mat] + 4 * t
    return f"v_smfmac_f32_16x16x64_bf16 {v(acc,4)}, {v(MA[u],4)}, {wfrag(mat,t,u)}, v{V_IDX}"

def chain_loop(k, P, stamps=False, dbg=True, D1=0, D2=0, X='', flags=False, sc=''):
    ST = Stamps(k, stamps)
    FT = 'ft' in X
    def ft(i):
        if FT: k(f"s_memrealtime s[{64+2*i}:{65+2*i}]")
    def ft_flush():
        if not FT: return
        L = k.newlabel(f"{P}_ft")
        k(f"s_waitcnt lgkmcnt(0)\ns_sub_u32 s5, s{S_STEP}, 21\ns_cmp_gt_u32 s5, 7\ns_cbranch_scc1 {L}")
        k(f"s_lshl_b32 s5, s5, 4\ns_lshl_b32 s6, s{S_W}, 7\ns_add_u32 s5, s5, s6\ns_add_u32 s5, s5, {L_OX + 2048}\nv_mov_b32 v112, s5")
        for i in range(4): k(f"v_mov_b32 v113, s{64+2*i}\nds_write_b32 v112, v113 offset:{4*i}")
        k("s_waitcnt lgkmcnt(0)")
        k.label(L)
    WSs = f"s[{WS}:{WS+3}]"
    c = (128 ** -0.5) * math.log2(math.e)
    S_ONES = 41 if not stamps else 62
    S_RST = 18
    S_FR, S_FC = 16, 17
    S_FNEED, S_FOFF, S_FNEED2, S_FOFF2 = 39, 38, 26, 31
    S_INBPv = 28
    S_KVMF = 60 if stamps else 42
    S_INB1, S_INB3 = (43 if not stamps else 61), 19
    INB_SLOT = 0x40000
    k(f"s_mov_b32 s{S_C}, {f2u(c):#x}")
    k(f"s_mov_b32 s{S_ONES}, 0x3f803f80")
    k(f"s_mov_b32 s{S_ERR}, 0")
    SENT = 116
    def flag_spin(tag):
        L = k.newlabel(f"{P}_{tag}")
        k(f"v_readfirstlane_b32 s5, v{V_FLV}")
        k(f"s_cmp_ge_u32 s5, s{S_FNEED}\ns_cbranch_scc1 {L}_ok")
        k(f"s_mov_b32 s{S_SPIN}, 0")
        k.label(L)
        k(f"v_mov_b32 v{V_FLV}, 0")
        k(f"buffer_load_dword v{V_FLV}, v{V_FLV}, {WSs}, s{S_FOFF} offen sc1")
        k(f"s_add_u32 s{S_SPIN}, s{S_SPIN}, 1\ns_cmp_gt_u32 s{S_SPIN}, 0x8000\ns_cbranch_scc1 {L}_fail")
        k(f"s_waitcnt vmcnt(0)\nv_readfirstlane_b32 s5, v{V_FLV}")
        k(f"s_cmp_ge_u32 s5, s{S_FNEED}\ns_cbranch_scc0 {L}\ns_branch {L}_ok")
        k.label(f"{L}_fail")
        k(f"s_add_u32 s{S_ERR}, s{S_ERR}, 1\ns_waitcnt vmcnt(0)")
        k.label(f"{L}_ok")
    def flag_next(seg_plus):
        k(f"s_lshl_b32 s5, s{S_H}, 4\ns_lshl_b32 s{S_FOFF2}, s{S_FR}, 2\ns_add_u32 s{S_FOFF2}, s{S_FOFF2}, s5")
        k(f"s_add_u32 s{S_FOFF2}, s{S_FOFF2}, {FLAGS + F_KV}")
        k(f"s_add_u32 s5, s{S_STEP}, {seg_plus}\ns_cmp_ge_u32 s5, {NSEG}\ns_cselect_b32 s{S_FNEED2}, 0, s{S_FC}")
        k(f"s_add_u32 s{S_FR}, s{S_FR}, 1\ns_cmp_eq_u32 s{S_FR}, {RQ}\ns_cselect_b32 s{S_FR}, 0, s{S_FR}\ns_addc_u32 s{S_FC}, s{S_FC}, 0")
    S_KSM0v = 29 + 0
    def k_dma01():
        return [f"buffer_load_dwordx4 v{V_MEMP}, {WSs}, s{S_KFN} offen sc1 lds",
                f"buffer_load_dwordx4 v{V_MEMP}, {WSs}, s{S_KFN} offen offset:1024 sc1 lds"]
    S_KM0 = 28
    S_KRD = 61 if not stamps else 63
    k(f"""
    s_mov_b32 s{S_STEP}, 0
    s_mov_b32 s{S_MEMC}, {MEMR}
    s_mov_b32 s{S_MEMN}, {MEMR + 8192}
    s_mov_b32 s{S_MEMP}, {MEMR + 3*8192}
    s_mov_b32 s{S_INBC}, {INBOX}
    s_mov_b32 s{S_INBC1}, {INBOX + 32768}
    s_mov_b32 s{S_INB1}, {INBOX + 16384}
    s_mov_b32 s{S_INB3}, {INBOX + 49152}
    s_lshl_b32 s5, s{S_H}, 13
    s_add_u32 s{S_RST}, s5, {INBOX + 2*INB_SLOT}
    s_lshl_b32 s5, s{S_H}, 11
    s_add_u32 s{S_KM}, s5, {KM}
    s_add_u32 s{S_VM}, s5, {VM}
    s_lshl_b32 s5, s{S_H}, 19
    s_add_u32 s{S_KFN}, s5, {KF}
    s_lshl_b32 s5, s{S_H}, 4
    s_add_u32 s{S_KVMF}, s5, {FLAGS + F_KVM}
    s_lshl_b32 s5, s{S_W}, 11
    s_add_u32 s{S_KM0}, s5, {L_KS}
    s_mov_b32 s{S_KRD}, {L_KS}
    """)
    if flags and 'merged' in X:
        k(f"v_lshlrev_b32 v56, 3, v{V_L16}\ns_lshl_b32 s5, s{S_H}, 13\ns_add_u32 s5, s5, {INBOX}\ns_cmp_eq_u32 s{S_W}, 3\ns_cbranch_scc1 {P}_pfm")
        k(f"s_lshl_b32 s6, s{S_W}, 18\ns_add_u32 s5, s5, s6\nbuffer_load_dword v57, v56, {WSs}, s5 offen sc1\ns_branch {P}_pfd")
        k.label(f"{P}_pfm")
        k(f"s_mov_b32 s5, {MEMR}")
        for i in range(4):
            k(f"buffer_load_dword v{57+i}, v56, {WSs}, s5 offen sc1")
            if i < 3: k("s_add_u32 s5, s5, 8192")
        k.label(f"{P}_pfd")
        Lf = f"{P}_fr"
        k("s_mov_b32 s72, 0")
        k.label(Lf)
        k(f"v_readfirstlane_b32 s5, v114\ns_cmp_ge_u32 s5, {N_FLAG_WGS}\ns_cbranch_scc1 {Lf}_ok")
        k(f"s_add_u32 s72, s72, 1\ns_cmp_gt_u32 s72, 0x20000\ns_cbranch_scc1 {Lf}_ok")
        k(f"s_sleep 4\nbuffer_load_dword v114, off, s[{DBG}:{DBG+3}], 0 offset:{DBG_FLAGS} sc1\ns_waitcnt vmcnt(0)\ns_branch {Lf}")
        k.label(f"{Lf}_ok")
    if flags:
        k(f"s_lshl_b32 s5, s{S_H}, 4\ns_add_u32 s{S_FOFF}, s5, {FLAGS + F_KV}\ns_mov_b32 s{S_FNEED}, 1\nv_mov_b32 v{V_FLV}, 0")
        flag_spin("f0")
    k(f"s_mov_b32 m0, s{S_KM0}")
    for x in k_dma01(): k(x)
    if flags:
        k(f"s_add_u32 s{S_FOFF}, s{S_FOFF}, 4\nv_mov_b32 v{V_FLV}, 0")
        k(f"buffer_load_dword v{V_FLV}, v{V_FLV}, {WSs}, s{S_FOFF} offen sc1")
        k(f"s_mov_b32 s{S_FR}, {2 % RQ}\ns_mov_b32 s{S_FC}, {2 // RQ + 1}")
        flag_next(2)
    k(f"s_add_u32 s{S_T0}, s{S_KFN}, {VF - KF}")
    k(f"s_add_u32 s{S_KFN}, s{S_KFN}, 8192\ns_xor_b32 s{S_KM0}, s{S_KM0}, 8192")
    for r in range(AQ, AQ + 24): k(f"v_mov_b32 v{r}, 0")
    for r in range(4): k(f"v_mov_b32 v{SENT+r}, -1")
    k("s_waitcnt vmcnt(0)")
    ST.init()
    cold = []
    MB = VSEG
    def mem_poll_issue(r=MA[0]):
        k(f"buffer_load_dwordx4 {v(r,4)}, v{V_MEMP}, {WSs}, s{S_MEMC} offen sc1")
        k(f"buffer_load_dwordx4 {v(r+4,4)}, v{V_MEMP}, {WSs}, s{S_MEMC} offen offset:1024 sc1")
    def mem_check(r):
        k(f"v_max3_u32 v{V_TMP}, v{r}, v{r+1}, v{r+2}")
        k(f"v_max3_u32 v{MA[2]}, v{r+3}, v{r+4}, v{r+5}")
        k(f"v_max3_u32 v{V_TMP}, v{V_TMP}, v{r+6}, v{r+7}")
        k(f"v_max_u32 v{V_TMP}, v{V_TMP}, v{MA[2]}")
        k(f"v_cmp_eq_u32 vcc, -1, v{V_TMP}")
    def k_frag_reads():
        k(f"v_add_u32 v{V_TMP}, s{S_KRD}, v{V_L16}")
        for T in range(2):
            for ks in range(4): k(f"ds_read_b128 {v(KSEG+16*T+4*ks,4)}, v{V_TMP} offset:{(4*T+ks)*1024}")
    k("s_barrier")
    k(f"s_mov_b32 s{S_SPIN}, 0")
    mem_poll_issue()
    k_frag_reads()
    mem_poll_issue(MB)
    k.label(f"{P}_step")
    k("s_waitcnt vmcnt(2)")
    ST(0)
    ft(0)
    if common.TRACE_ON: k("s_memrealtime s[96:97]")
    mem_check(MA[0])
    own = [smt(mat, t, u) for u in (0, 1) for mat in range(3) for t in range(2)]
    k(f"s_cbranch_vccnz {P}_pm_retry")
    def cold_pm():
        k.label(f"{P}_pm_retry")
        mem_poll_issue()
        if stamps: k("s_add_u32 s58, s58, 1")
        k("s_waitcnt vmcnt(2)")
        mem_check(MB)
        k(f"s_cbranch_vccz {P}_pm_b")
        mem_poll_issue(MB)
        k(f"s_add_u32 s{S_SPIN}, s{S_SPIN}, 1")
        k(f"s_cmp_gt_u32 s{S_SPIN}, 100000\ns_cbranch_scc0 {P}_step")
        k(f"s_add_u32 s{S_ERR}, s{S_ERR}, 1\ns_waitcnt vmcnt(0)\ns_branch {P}_pm_ok")
        k.label(f"{P}_pm_b")
        for r in range(8): k(f"v_mov_b32 v{MA[0]+r}, v{MB+r}")
        k(f"s_branch {P}_pm_ok")
    cold.append(cold_pm)
    k.label(f"{P}_pm_ok")
    k(f"ds_write_b128 v{V_MEMW}, {v(MA[0],4)}")
    k(own[0])
    k(f"ds_write_b128 v{V_MEMW}, {v(MA[1],4)} offset:1024")
    if dbg:
        k(f"s_lshl_b32 s5, s{S_STEP}, 13\ns_add_u32 s5, s5, {MEMDBG}")
        k(f"buffer_store_dwordx4 {v(MA[0],4)}, v{V_MEMP}, {WSs}, s5 offen")
        k(f"buffer_store_dwordx4 {v(MA[1],4)}, v{V_MEMP}, {WSs}, s5 offen offset:1024")
    k(f"buffer_load_dwordx4 {v(VSEG,4)}, v{V_MEMP}, {WSs}, s{S_T0} offen sc1")
    k(own[1])
    if flags: k(f"v_readfirstlane_b32 s5, v{V_FLV}")
    k(own[2])
    k(f"buffer_load_dwordx4 {v(VSEG+4,4)}, v{V_MEMP}, {WSs}, s{S_T0} offen offset:1024 sc1")
    if flags: k(f"s_cmp_ge_u32 s5, s{S_FNEED}")
    k(own[3])
    if flags:
        k(f"s_cbranch_scc0 {P}_fs_slow")
        def cold_fs():
            k.label(f"{P}_fs_slow")
            flag_spin("fs")
            k(f"s_branch {P}_fs_ok")
        cold.append(cold_fs)
        k.label(f"{P}_fs_ok")
    k(own[4]); k(own[5])
    k("s_waitcnt lgkmcnt(0)\ns_barrier")
    ST(1)
    rd = [f"ds_read_b128 {v(MA[uu],4)}, v{V_MR + uu//2 - 1} offset:{1024*(uu&1)}" for uu in range(2, 8)]
    k(rd[0])
    ilv(k, own[6:], rd[1:])
    ST(2)
    if flags: k(f"v_mov_b32 v{V_TMP}, s{S_STEP}")
    for u in range(2, 8):
        k(f"s_waitcnt lgkmcnt({7 - u})")
        for t in range(2):
            k(smt(0, t, u))
        if u == 2 and flags and 'xkf' not in X:
            k(f"buffer_store_dword v{V_TMP}, off, {WSs}, s{S_KVMF} sc1")
        if 'rs2' in X:
            pass
        if u == 3 and 'xr' not in X: k(f"buffer_store_dwordx4 {v(SENT,4)}, v{V_MEMP}, {WSs}, s{S_RST} offen {sc}")
        if u == 5 and 'xr' not in X: k(f"buffer_store_dwordx4 {v(SENT,4)}, v{V_MEMP}, {WSs}, s{S_RST} offen offset:1024 {sc}")
    qe = [f"v_add_f32 v{AQ}, v{AQ}, v{AQ+1}", f"v_add_f32 v{AQ+2}, v{AQ+2}, v{AQ+3}",
          f"v_add_f32 v{AQ+4}, v{AQ+4}, v{AQ+5}", f"v_add_f32 v{AQ+6}, v{AQ+6}, v{AQ+7}",
          f"v_cvt_pk_bf16_f32 v{AQ}, v{AQ}, v{AQ+2}", f"v_cvt_pk_bf16_f32 v{AQ+4}, v{AQ+4}, v{AQ+6}",
          f"ds_write_b16 v{V_QW}, v{AQ}", f"ds_write_b16_d16_hi v{V_QW}, v{AQ} offset:{RSX}",
          f"ds_write_b16 v{V_QW}, v{AQ+4} offset:8", f"ds_write_b16_d16_hi v{V_QW}, v{AQ+4} offset:{RSX+8}"]
    km = [smt(1, t, u) for u in range(2, 8) for t in range(2)]
    q1 = 'q1' in X
    for i, m in enumerate(km):
        k(m)
        if q1:
            if 1 <= i <= 6: k(qe.pop(0))
            if i in (6, 7): k(qe.pop(0)); k(qe.pop(0))
        elif 1 <= i <= 5:
            for _ in range(2):
                if qe: k(qe.pop(0))
        if i == (0 if q1 else 6) and 'xd' not in X:
            k(f"s_mov_b32 m0, s{S_KM0}"); k(k_dma01()[0])
        if i == (8 if q1 else 7) and 'xd' not in X: k(k_dma01()[1])
        if i == 8 and flags and 'xfl' not in X:
            k(f"buffer_load_dword v{V_FLV}, off, {WSs}, s{S_FOFF2} sc1")
        if i == (10 if 'b10' in X else 9):
            k(f"s_waitcnt vmcnt({8 if flags else 6}) lgkmcnt(0)\ns_barrier")
            for ks in range(2): k(f"ds_read_b128 {v(QB[ks],4)}, v{V_QR} offset:{64*ks}")
        if i == (11 if 'b10' in X else 10):
            for ks in range(2, 4): k(f"ds_read_b128 {v(QB[ks],4)}, v{V_QR} offset:{64*ks}")
    ST(3)
    vm = [smt(2, t, u) for u in range(2, 8) for t in range(2)]
    ke = [f"v_add_f32 v{AK}, v{AK}, v{AK+1}", f"v_add_f32 v{AK+2}, v{AK+2}, v{AK+3}",
          f"v_add_f32 v{AK+4}, v{AK+4}, v{AK+5}", f"v_add_f32 v{AK+6}, v{AK+6}, v{AK+7}",
          f"v_cvt_pk_bf16_f32 v{AK}, v{AK}, v{AK+2}", f"v_cvt_pk_bf16_f32 v{AK+4}, v{AK+4}, v{AK+6}"]
    D = L_KX - L_QX
    kw = [f"ds_write_b16 v{V_QW}, v{AK} offset:{D}", f"ds_write_b16_d16_hi v{V_QW}, v{AK} offset:{D+RSX}",
          f"ds_write_b16 v{V_QW}, v{AK+4} offset:{D+8}", f"ds_write_b16_d16_hi v{V_QW}, v{AK+4} offset:{D+RSX+8}"]
    k(vm[0]); k(vm[1])
    k(ke[0]); k(ke[1]); k(vm[2]); k(ke[2]); k(ke[3]); k(vm[3]); k(ke[4]); k(ke[5])
    k(kw[0]); k(kw[1]); k(vm[4]); k(kw[2]); k(kw[3])
    k("s_waitcnt lgkmcnt(4)")
    sg = []
    for ks in range(4):
        for T in range(2):
            acc = AQ + 4 * T
            sg.append(f"v_mfma_f32_16x16x32_bf16 {v(acc,4)}, {v(KSEG+16*T+4*ks,4)}, {v(QB[ks],4)}, {'0' if ks == 0 else v(acc,4)}")
    t2i = [f"v_mov_b32 v{AK}, 0", f"v_mov_b32 v{AK+1}, 0", f"v_mov_b32 v{AK+2}, 0xf149f2ca", f"v_mov_b32 v{AK+3}, 0xf149f2ca",
           f"s_lshl_b32 s5, s{S_W}, 6", f"v_add_u32 v{V_TMP}, s5, v{V_KR}"]
    for i in range(4): k(sg[i])
    k("s_waitcnt lgkmcnt(0)\ns_barrier")
    ST(4)
    for ks in range(4): k(f"ds_read_b128 {v(KA[ks] + 0,4)}, v{V_KR} offset:{64*ks}") if False else None
    ilv(k, sg[4:], t2i, per=2)
    for ks in range(4): k(f"ds_read_b128 {v(KA[ks],4)}, v{V_KR} offset:{64*ks}")
    k(f"ds_read_b128 {v(AK+4,4)}, v{V_TMP}")
    def wo_off(f):
        tau, eb = f >> 2, f & 3
        return (eb >> 1) * 16384 + tau * 4096 + (eb & 1) * 2048
    def wslot(f): return WS10 if f == 0 else WSLOT[(f - 1) % 9]
    def wo_read(f):
        slot = wslot(f)
        return [f"ds_read_b128 {v(slot+4*half,4)}, v{V_WO} offset:{wo_off(f)+half*1024}" for half in range(2)]
    w01 = wo_read(1) + wo_read(2)
    S = [AQ + i for i in range(8)] + [AK, AK + 1]
    M, M2 = AK + 4, AK + 5
    X1, X2 = V_TMP, MA[0] + 0
    for i, m in enumerate(vm[5:]):
        k(m)
        if i >= 3: k(w01[i - 3])
    k("s_waitcnt lgkmcnt(5)")
    ve = [f"v_add_f32 v{AV}, v{AV}, v{AV+1}", f"v_add_f32 v{AV+2}, v{AV+2}, v{AV+3}",
          f"v_add_f32 v{AV+4}, v{AV+4}, v{AV+5}", f"v_add_f32 v{AV+6}, v{AV+6}, v{AV+7}",
          f"v_cvt_pk_bf16_f32 v{AV}, v{AV}, v{AV+2}", f"v_cvt_pk_bf16_f32 v{AV+1}, v{AV+4}, v{AV+6}"]
    ms = [f"v_mfma_f32_16x16x32_bf16 {v(AK,4)}, {v(KA[ks],4)}, {v(QB[ks],4)}, {v(AK,4)}" for ks in range(4)]
    X1, X2 = V_TMP, AV + 6
    k(ms[0]); k(f"v_max3_f32 v{X1}, v{S[0]}, v{S[1]}, v{S[2]}"); k(f"v_max3_f32 v{X1}, v{X1}, v{S[3]}, v{S[4]}")
    k(ms[1]); k(f"v_max3_f32 v{X1}, v{X1}, v{S[5]}, v{S[6]}"); k(f"v_max_f32 v{X1}, v{X1}, v{S[7]}")
    k(ms[2]); k(ve[0]); k(ve[1])
    k(ms[3]); k(ve[2]); k(ve[3]); k(ve[4]); k(ve[5])
    k("s_waitcnt lgkmcnt(4)")
    kms = "" if 'plainkm' in X else "sc1"
    if 'nokm' not in X:
        k(f"buffer_store_dwordx4 {v(AK+4,4)}, v{V_KMO}, {WSs}, s{S_KM} offen {kms}")
        k(f"buffer_store_dwordx2 {v(AV,2)}, v{V_VMO}, {WSs}, s{S_VM} offen {kms}")
    else:
        k(f"buffer_store_dwordx4 {v(AK+4,4)}, v{V_KMO}, {WSs}, s{S_RST} offen offset:2048") if False else k("s_nop 0")
    ST(5)
    rest = [x for f in (3, 4, 5, 6, 7, 8) for x in wo_read(f)]
    k(f"v_mov_b32 v{AV+2}, v{AV+1}\nv_mov_b32 v{AV+3}, 0")
    k(f"v_max3_f32 v{M}, v{X1}, v{S[8]}, v{S[9]}")
    k(f"v_mov_b32 v{M2}, v{M}")
    k(f"v_mov_b32 v{QB[0]}, s{S_ONES}\nv_mov_b32 v{QB[0]+1}, s{S_ONES}")
    k(f"v_permlane32_swap_b32 v{M}, v{M2}")
    k(f"v_max_f32 v{M}, v{M}, v{M2}")
    k(f"v_mov_b32 v{M2}, v{M}")
    k(f"v_mov_b32 v{QB[0]+2}, s{S_ONES}\nv_mov_b32 v{QB[0]+3}, s{S_ONES}")
    k(f"v_permlane16_swap_b32 v{M}, v{M2}")
    k(f"v_max_f32 v{M}, v{M}, v{M2}")
    k(f"v_mul_f32 v{M}, {f2u(-c):#x}, v{M}")
    k(f"s_cmp_eq_u32 s{S_STEP}, {NSEG-1}")
    for r in S[::2]:
        k(f"v_pk_fma_f32 {v(r,2)}, {v(r,2)}, s[{S_C}:{S_C+1}], {v(M,2)} op_sel_hi:[1,0,0]")
    for i, r in enumerate(S):
        k(f"v_exp_f32 v{r}, v{r}")
        if i % 2 == 1 and rest: k(rest.pop(0))
    for i in range(4): k(f"v_cvt_pk_bf16_f32 v{AQ+i}, v{AQ+2*i}, v{AQ+2*i+1}")
    k(f"v_cvt_pk_bf16_f32 v{AK}, v{AK}, v{AK+1}\nv_mov_b32 v{AK+1}, 0")
    ST(6)
    O0, O1 = AQ + 4, AV + 4
    Lr, L2 = AK + 2, AK + 3
    k(f"s_waitcnt vmcnt({(8 if flags else 6) - (2 if 'nokm' in X else 0)})")
    ONES = QB[0]
    LA = AK + 4
    k(f"v_mfma_f32_16x16x32_bf16 {v(LA,4)}, {v(ONES,4)}, {v(AQ,4)}, 0")
    k(f"s_cbranch_scc1 {P}_done")
    rest += wo_read(9)
    k(f"v_mfma_f32_16x16x32_bf16 {v(O0,4)}, {v(VSEG,4)}, {v(AQ,4)}, 0")
    k(rest.pop(0)); k(rest.pop(0))
    k(f"v_mfma_f32_16x16x32_bf16 {v(O1,4)}, {v(VSEG+4,4)}, {v(AQ,4)}, 0")
    W8 = rest[-2:]; rest = rest[:-2]
    k(rest.pop(0)); k(rest.pop(0))
    k(f"v_mfma_f32_16x16x16_bf16 {v(LA,4)}, {v(ONES,2)}, {v(AK,2)}, {v(LA,4)}")
    k(rest.pop(0)); k(rest.pop(0))
    k(f"v_mfma_f32_16x16x16_bf16 {v(O0,4)}, {v(AV,2)}, {v(AK,2)}, {v(O0,4)}")
    for x in rest: k(x)
    k(f"v_mfma_f32_16x16x16_bf16 {v(O1,4)}, {v(AV+2,2)}, {v(AK,2)}, {v(O1,4)}")
    k(f"v_rcp_f32 v{Lr}, v{LA}")
    for x in W8: k(x)
    for r in (0, 2): k(f"v_pk_mul_f32 {v(O0+r,2)}, {v(O0+r,2)}, {v(Lr,2)} op_sel_hi:[1,0]")
    k(f"v_cvt_pk_bf16_f32 v{O0}, v{O0}, v{O0+1}\nv_cvt_pk_bf16_f32 v{O0+1}, v{O0+2}, v{O0+3}")
    k(f"ds_write_b64 v{V_OW}, {v(O0,2)}")
    for r in (0, 2): k(f"v_pk_mul_f32 {v(O1+r,2)}, {v(O1+r,2)}, {v(Lr,2)} op_sel_hi:[1,0]")
    k(f"v_cvt_pk_bf16_f32 v{O1}, v{O1}, v{O1+1}\nv_cvt_pk_bf16_f32 v{O1+1}, v{O1+2}, v{O1+3}")
    k(f"ds_write_b64 v{V_OW}, {v(O1,2)} offset:256")
    ST(7)
    for x in wo_read(0): k(x)
    for r in range(4): k(f"v_mov_b32 v{WACC[1]+r}, 0")
    k("s_waitcnt lgkmcnt(2)\ns_barrier")
    for eb in range(4): k(f"ds_read_b128 {v(OA[eb],4)}, v{V_WARM} offset:{512*eb}")
    for r in range(4): k(f"v_mov_b32 v{WACC[0]+r}, 0")
    ST(8)
    inflight = [('w', 0), ('w', 0), ('oa', 0), ('oa', 1), ('oa', 2), ('oa', 3)]
    def wait_for(tag):
        if tag in inflight:
            last = max(i for i, x in enumerate(inflight) if x == tag)
            k(f"s_waitcnt lgkmcnt({len(inflight) - 1 - last})")
            del inflight[:last + 1]
    def epi(tau):
        a0 = WACC[tau]
        return [f"v_cvt_pk_bf16_f32 v{a0}, v{a0}, v{a0+2}", f"v_cvt_pk_bf16_f32 v{a0+1}, v{a0+1}, v{a0+3}"]
    S_INB = [S_INBC, S_INB1, S_INBC1, S_INB3]
    def pstore(tau): return f"buffer_store_dwordx2 {v(WACC[tau],2)}, v{V_PART}, {WSs}, s{S_INB[tau]} offen {sc}"
    for f in range(16):
        tau, eb = f >> 2, f & 3
        wait_for(('oa', eb)); wait_for(('w', f))
        k(f"v_smfmac_f32_16x16x64_bf16 {v(WACC[tau],4)}, {v(OA[eb],4)}, {v(wslot(f),8)}, v{V_IDX}")
        if 1 <= f and f + 9 < 16:
            for x in wo_read(f + 9): k(x)
            inflight += [('w', f + 9)] * 2
        for z in {1: (0, 4), 2: (1, 5), 3: (2,), 4: (3,), 7: (6,), 8: (7,)}.get(f, ()): k(f"v_mov_b32 v{WS10 + z}, 0")
        if f in (5, 9, 13): k(epi((f - 5) // 4)[0])
        if f in (6, 10, 14): k(epi((f - 6) // 4)[1])
        if f in (7, 11, 15): k(pstore((f - 7) // 4))
    for x in epi(3): k(x)
    k(pstore(3))
    ST(9)
    ft(1)
    if common.TRACE_ON:
        k(f"s_waitcnt lgkmcnt(0)\ns_lshl_b32 s5, s{S_STEP}, 2\ns_add_u32 s5, s5, {L_OX + 2048 + 1024}\nv_mov_b32 v56, s5\nv_mov_b32 v57, s96\nds_write_b32 v56, v57")
    for r in range(AQ, AQ + 8): k(f"v_mov_b32 v{r}, 0")
    for r in range(4): k(f"v_mov_b32 v{SENT+r}, -1")
    k(f"s_mov_b32 s{S_T1}, s{S_MEMN}\ns_mov_b32 s{S_T2}, s{S_INBC}\ns_mov_b32 s7, s{S_MEMP}")
    k(f"""
    s_mov_b32 s{S_MEMP}, s{S_MEMC}
    s_mov_b32 s{S_MEMC}, s{S_MEMN}
    s_add_u32 s5, s{S_MEMN}, 0x2000
    s_and_b32 s5, s5, 0x7fff
    s_or_b32 s{S_MEMN}, s5, {MEMR}
    s_lshl_b32 s6, s{S_H}, 13
    s_add_u32 s{S_RST}, s{S_INBC}, s6
    s_add_u32 s5, s{S_INBC}, {INB_SLOT}
    s_cmp_ge_u32 s5, {INBOX + 3*INB_SLOT}
    s_cselect_b32 s{S_INBC}, {INBOX}, s5
    s_add_u32 s{S_INBC1}, s{S_INBC}, 32768
    s_add_u32 s{S_INB1}, s{S_INBC}, 16384
    s_add_u32 s{S_INB3}, s{S_INBC}, 49152
    s_add_u32 s{S_KM}, s{S_KM}, 65536
    s_add_u32 s{S_VM}, s{S_VM}, 65536
    s_add_u32 s{S_T0}, s{S_KFN}, {VF - KF}
    s_add_u32 s{S_KFN}, s{S_KFN}, {0 if 'fixkv' in X else 8192}
    s_xor_b32 s{S_KM0}, s{S_KM0}, 8192
    s_xor_b32 s{S_KRD}, s{S_KRD}, 8192
    """)
    assert MEMR == 0x10000 and L_KS % 16384 == 0
    if flags:
        k(f"s_mov_b32 s{S_FOFF}, s{S_FOFF2}\ns_mov_b32 s{S_FNEED}, s{S_FNEED2}")
        flag_next(3)
    k(f"s_add_u32 s{S_STEP}, s{S_STEP}, 1")
    k(f"s_cmp_ge_u32 s{S_W}, 2\ns_cbranch_scc1 {P}_w23")
    if D1: k(f"s_sleep {D1}")
    ST(12)
    L = f"{P}_pi"
    IA, IB = 56, 80
    def inb_issue(r):
        for i in range(4):
            k(f"buffer_load_dwordx4 {v(r+4*i,4)}, v{V_INB}, {WSs}, s{S_T2} offen offset:{1024*i} sc1")
    def inb_reduce(r, pend):
        R = lambda i: r + i
        chk = [f"v_max3_u32 v76, v{R(0)}, v{R(1)}, v{R(2)}", f"v_max3_u32 v77, v{R(3)}, v{R(4)}, v{R(5)}", f"v_max3_u32 v76, v76, v{R(6)}, v{R(7)}",
               f"v_max3_u32 v77, v77, v{R(8)}, v{R(9)}", f"v_max3_u32 v76, v76, v{R(10)}, v{R(11)}", f"v_max3_u32 v77, v77, v{R(12)}, v{R(13)}",
               f"v_max3_u32 v76, v76, v{R(14)}, v{R(15)}", "v_max_u32 v76, v76, v77"]
        k(f"s_waitcnt vmcnt({pend+3})")
        k(f"v_mfma_f32_16x16x32_bf16 v[72:75], {v(V_SEL,4)}, {v(r,4)}, 0"); k(chk[0])
        k(f"s_waitcnt vmcnt({pend+2})")
        k(f"v_mfma_f32_16x16x32_bf16 v[72:75], {v(V_SEL,4)}, {v(r+4,4)}, v[72:75]"); k(chk[1]); k(chk[2])
        k(f"s_waitcnt vmcnt({pend+1})")
        k(f"v_mfma_f32_16x16x32_bf16 v[72:75], {v(V_SEL,4)}, {v(r+8,4)}, v[72:75]"); k(chk[3]); k(chk[4])
        k(f"s_waitcnt vmcnt({pend})")
        k(f"v_mfma_f32_16x16x32_bf16 v[72:75], {v(V_SEL,4)}, {v(r+12,4)}, v[72:75]")
        k(chk[5]); k(chk[6]); k(chk[7])
        k(f"v_cmp_eq_u32 vcc, -1, v76")
    k(f"s_mov_b32 s{S_SPIN}, 0")
    inb_issue(IA)
    for r in range(AQ + 8, AQ + 24): k(f"v_mov_b32 v{r}, 0")
    if 'gap2' in X: k("s_sleep 1")
    inb_issue(IB)
    k.label(L)
    inb_reduce(IA, 4)
    k(f"s_cbranch_vccnz {L}_retry")
    def cold_pi():
        k.label(f"{L}_retry")
        inb_issue(IA)
        if stamps: k("s_add_u32 s59, s59, 1")
        inb_reduce(IB, 4)
        k(f"s_cbranch_vccz {L}_ok")
        inb_issue(IB)
        k(f"s_add_u32 s{S_SPIN}, s{S_SPIN}, 1")
        k(f"s_cmp_gt_u32 s{S_SPIN}, 100000\ns_cbranch_scc0 {L}")
        k(f"s_add_u32 s{S_ERR}, s{S_ERR}, 1\ns_waitcnt vmcnt(0)\ns_branch {L}_ok")
    cold.append(cold_pi)
    k.label(f"{L}_ok")
    ST(10)
    ft(2)
    k("s_mov_b32 vcc_lo, 0xff00ff00\ns_mov_b32 vcc_hi, 0xff00ff00")
    for r in range(4):
        k(f"v_add_f32_dpp v{72+r}, v{72+r}, v{72+r} row_ror:8 row_mask:0xf bank_mask:0xf")
    k("v_cvt_pk_bf16_f32 v72, v72, v73\nv_cvt_pk_bf16_f32 v73, v74, v75")
    k("v_cndmask_b32 v72, v72, v73, vcc")
    k(f"buffer_store_dword v72, v{V_PUB}, {WSs}, s{S_T1} offen {sc}")
    k.label(f"{P}_join")
    k("s_barrier")
    ST(11)
    ft(3)
    ft_flush()
    ST.collect()
    if D2: k(f"s_sleep {D2}")
    k(f"s_mov_b32 s{S_SPIN}, 0")
    mem_poll_issue()
    k("s_waitcnt vmcnt(3)")
    k_frag_reads()
    if 'gap' in X: k("s_sleep 1")
    mem_poll_issue(MB)
    k(f"s_branch {P}_step")
    k.label(f"{P}_w23")
    if 'ackt' in X: k("s_waitcnt vmcnt(0)\ns_memtime s[88:89]")
    for r in range(AQ + 8, AQ + 24): k(f"v_mov_b32 v{r}, 0")
    k("s_waitcnt vmcnt(2)")
    k(f"buffer_store_dword v{SENT}, v{V_PUB}, {WSs}, s7 offen {sc}")
    if stamps: k("s_memtime s[84:85]" if 'ackt' in X else "s_memtime s[88:89]\ns_memtime s[84:85]")
    k(f"s_branch {P}_join")
    for cb in cold: cb()
    k.label(f"{P}_done")
    k("s_waitcnt vmcnt(0)\ns_barrier")
    if flags:
        k(f"s_cmp_lg_u32 s{S_W}, 2\ns_cbranch_scc1 {P}_nfin\nv_mov_b32 v{MA[0]}, {NSEG}\ns_mov_b64 exec, 1")
        k(f"buffer_store_dword v{MA[0]}, v{V_L16}, {WSs}, s{S_KVMF} offen sc1")
        k("s_mov_b64 exec, -1\ns_waitcnt vmcnt(0)")
        k.label(f"{P}_nfin")
    if FT:
        k(f"s_waitcnt lgkmcnt(0)\ns_barrier\nv_lshrrev_b32 v56, 2, v{V_L16}\ns_lshl_b32 s6, s{S_W}, 8\nv_add_u32 v56, s6, v56")
        k(f"v_add_u32 v57, {L_OX + 2048}, v56\nds_read_b32 v58, v57\ns_waitcnt lgkmcnt(0)")
        k(f"s_lshl_b32 s5, s{S_H}, 10\ns_add_u32 s5, s5, {TRACE}\nbuffer_store_dword v58, v56, {WSs}, s5 offen\ns_waitcnt vmcnt(0)")
    if stamps and flags:
        k(f"s_lshl_b32 s5, s2, 10\ns_lshl_b32 s6, s{S_W}, 6\ns_add_u32 s5, s5, s6\ns_add_u32 s5, s5, {TRACE + 256}\nv_mov_b32 v56, 0")
        for j in range(4):
            for r in range(4): k(f"v_mov_b32 v{60+4*j+r}, s{44+4*j+r}")
            k(f"buffer_store_dwordx4 {v(60+4*j,4)}, v56, {WSs}, s5 offen offset:{16*j}")
        k("s_waitcnt vmcnt(0)")
    if common.TRACE_ON:
        k(f"s_memrealtime s[98:99]\ns_waitcnt lgkmcnt(0)\nv_mov_b32 v56, {L_OX + 2048 + 1024 + 63*4}\nv_mov_b32 v57, s98\nds_write_b32 v56, v57\ns_waitcnt lgkmcnt(0)")
        k(f"v_lshrrev_b32 v56, 2, v{V_L16}\nv_add_u32 v57, {L_OX + 2048 + 1024}, v56\nds_read_b32 v58, v57\ns_waitcnt lgkmcnt(0)")
        k(f"s_lshl_b32 s5, s2, 10\ns_add_u32 s5, s5, {TRACE}\nbuffer_store_dword v58, v56, {WSs}, s5 offen\ns_waitcnt vmcnt(0)")
    return ST


def xcc_decide(k, P, slow_label):
    L = f"{P}_xd"
    k("s_mov_b32 s72, 0")
    k.label(L)
    k("v_readfirstlane_b32 s70, v112\nv_readfirstlane_b32 s71, v113")
    k(f"s_lshr_b32 s5, s71, 16\ns_cmp_ge_u32 s5, 32\ns_cbranch_scc1 {L}_all")
    k(f"s_add_u32 s72, s72, 1\ns_cmp_gt_u32 s72, 0x20000\ns_cbranch_scc1 {slow_label}")
    k(f"s_sleep 4\nbuffer_load_dwordx2 v[112:113], off, s[{DBG}:{DBG+3}], 0 sc1\ns_waitcnt vmcnt(0)\ns_branch {L}")
    k.label(f"{L}_all")
    k("s_getreg_b32 s5, hwreg(HW_REG_XCC_ID, 0, 4)\ns_mul_i32 s5, s5, 6\ns_lshr_b64 s[70:71], s[70:71], s5\ns_and_b32 s5, s70, 63")
    k(f"s_cmp_lg_u32 s5, 32\ns_cbranch_scc1 {slow_label}")
```

```python
from asm import *
from layout import *
import common
from common import dbg_srd, dbg_add, dbg_wait, DBG, DBG_FLAGS, DBG_LN, N_FLAG_WGS
import math, struct

def f2u(x): return struct.unpack("<I", struct.pack("<f", x))[0]

L_WO = 0
L_KS = 131072
L_MX = 147456
L_QX = 155648
L_KX = L_QX + 2304
L_OX = L_KX + 2304
RSX = 288
S_H, S_W = 3, 4
WS = 8
WSRD = 12
S_STEP = 20
S_MEMC, S_MEMN, S_MEMP = 21, 22, 23
S_INBC, S_INBC1, S_INBP = 24, 25, 26
S_KFN, S_VFN, S_KM, S_VM = 27, 28, 29, 30
S_KSM0 = 31
S_SPIN = 33
S_C = 32
S_T0, S_T1, S_T2 = 34, 35, 36
S_ERR = 37
S_KSLOT = 38
S_FLG = 39
S_JUNK = 19
V_IDX, V_L16, V_FLV, V_MEMP, V_MEMW = 1, 2, 3, 4, 5
V_MR = 6
V_PART, V_INB, V_PUB = 9, 10, 11
V_SEL = 12
V_QW, V_QR, V_KR, V_OW, V_WO, V_KMO, V_VMO = 16, 17, 18, 19, 20, 21, 22
V_TMP = 23
V_WARM = 0
AQ, AK, AV = 24, 32, 40
MA = [48, 52, 56, 60, 64, 68, 72, 76]
KSEG = 80
QB = [48, 52, 112, 116]
KA = [80, 84, 88, 92]
VSEG = 120
WSLOT = [96, 104, 80, 88, 112, 56, 64, 72, 120]
WS10 = 40
WACC = [28, 36, 40, 44]
OA = [24, 32, 48, 52]
OUT = [120, 124]
WV0 = 128

def wfrag(mat, t, u):
    f = t * 8 + u
    if mat == 0: return a(8 * f, 8)
    if mat == 1: return a(128 + 8 * f, 8)
    return v(WV0 + 8 * f, 8)
def wfrag_pair(mat, t, u, rp):
    f = t * 8 + u
    if mat == 0: return a(8 * f + 2 * rp, 2)
    if mat == 1: return a(128 + 8 * f + 2 * rp, 2)
    return v(WV0 + 8 * f + 2 * rp, 2)

def srd(k, r, ptr, nbytes):
    k(f"s_mov_b32 s{r}, s{ptr}")
    k(f"s_and_b32 s{r+1}, s{ptr+1}, 0xffff")
    k(f"s_mov_b32 s{r+2}, {nbytes}")
    k(f"s_mov_b32 s{r+3}, 0x20000")

class Stamps:
    def __init__(self, k, on): self.k = k; self.on = on; self.used = []
    def init(self, n=16):
        if not self.on: return
        for i in range(n): self.k(f"s_mov_b32 s{44+i}, 0")
        self.k("s_memtime s[40:41]\ns_waitcnt lgkmcnt(0)\ns_mov_b32 s42, s40")
    def __call__(self, i):
        if not self.on: return
        self.used.append(i)
        self.k(f"s_memtime s[{64+2*i}:{65+2*i}]")
    def collect(self):
        if not self.on: return
        self.k("s_waitcnt lgkmcnt(0)")
        prev = 42
        for i in self.used:
            self.k(f"s_sub_u32 s43, s{64+2*i}, s{prev}\ns_add_u32 s{44+i}, s{44+i}, s43")
            prev = 64 + 2 * i
        self.k(f"s_mov_b32 s42, s{prev}")

def sm(k, mat, t, u):
    acc = [AQ, AK, AV][mat] + 4 * t
    k(f"v_smfmac_f32_16x16x64_bf16 {v(acc,4)}, {v(MA[u],4)}, {wfrag(mat,t,u)}, v{V_IDX}")

def setup_stamp(k, i):
    if common.TRACE_ON: k(f"s_memrealtime s[{80+2*i}:{81+2*i}]")
def chain_setup(k, P, merged=False):
    k(f"""
    s_load_dwordx8 s[16:23], s[0:1], {A_WQ}
    s_load_dwordx2 s[24:25], s[0:1], {A_MEM0}
    s_load_dwordx2 s[26:27], s[0:1], {D_WS}
    v_lshrrev_b32 v24, 6, v0
    v_and_b32 v0, 63, v0
    v_readfirstlane_b32 s{S_W}, v24
    v_and_b32 v24, 15, v0          ; n
    v_lshrrev_b32 v25, 4, v0       ; g
    v_lshlrev_b32 v{V_L16}, 4, v0
    v_and_b32 v26, 1, v0
    v_mul_u32_u24 v26, 0xaaaa, v26
    v_add_u32 v{V_IDX}, 0x4444, v26
    s_lshl_b32 s5, s{S_W}, 11
    v_add_u32 v{V_MEMP}, s5, v{V_L16}
    v_add_u32 v{V_MEMW}, {L_MX}, v{V_MEMP}
    v_xor_b32 v{V_MR}, 2048, v{V_MEMW}
    v_xor_b32 v{V_MR+1}, 4096, v{V_MEMW}
    v_xor_b32 v{V_MR+2}, 6144, v{V_MEMW}
    s_lshl_b32 s5, s{S_W}, 4
    v_lshrrev_b32 v26, 2, v24
    v_add_u32 v26, s5, v26
    v_lshlrev_b32 v26, 12, v26
    s_lshl_b32 s5, s{S_H}, 7
    v_add_u32 v26, s5, v26
    v_and_b32 v27, 3, v24
    v_lshlrev_b32 v27, 5, v27
    v_add_u32 v26, v26, v27
    v_lshlrev_b32 v27, 3, v25
    v_add_u32 v{V_PART}, v26, v27
    s_and_b32 s7, s{S_W}, 1
    s_lshl_b32 s6, s{S_H}, 1
    s_add_u32 s6, s6, s7
    s_lshl_b32 s5, s6, 12
    v_add_u32 v{V_INB}, s5, v{V_L16}
    s_lshr_b32 s5, s6, 3
    s_lshl_b32 s5, s5, 10
    s_bfe_u32 s7, s6, 0x20001
    s_lshl_b32 s7, s7, 8
    s_add_u32 s5, s5, s7
    s_and_b32 s7, s6, 1
    s_lshl_b32 s7, s7, 4
    s_add_u32 s5, s5, s7
    v_and_b32 v26, 1, v24
    v_lshlrev_b32 v26, 2, v26
    v_lshrrev_b32 v27, 3, v24
    v_lshl_add_u32 v26, v27, 1, v26
    v_and_b32 v27, 1, v25
    v_add_u32 v28, v26, v27          ; m
    v_lshlrev_b32 v26, 5, v28
    v_bfe_u32 v30, v24, 1, 2         ; nn
    v_lshl_add_u32 v26, v30, 2, v26
    v_add_u32 v{V_PUB}, s5, v26
    v_and_b32 v26, 3, v24
    v_bfe_u32 v27, v24, 2, 1
    v_lshlrev_b32 v27, 4, v27
    v_mov_b32 v29, 0x3f80
    v_lshlrev_b32 v29, v27, v29
    """)
    for r in range(4):
        k(f"v_cmp_eq_u32 vcc, {r}, v26\nv_cndmask_b32 v{V_SEL+r}, 0, v29, vcc")
    k(f"""
    v_mul_u32_u24 v26, {2*RSX}, v25
    v_lshrrev_b32 v27, 2, v24
    v_lshlrev_b32 v27, 4, v27
    v_add_u32 v26, v26, v27
    v_and_b32 v27, 3, v24
    v_lshlrev_b32 v27, 1, v27
    v_add_u32 v26, v26, v27
    s_lshl_b32 s5, s{S_W}, 6
    s_add_u32 s5, s5, {L_QX}
    v_add_u32 v{V_QW}, s5, v26
    v_and_b32 v26, 7, v24
    v_mul_u32_u24 v26, {RSX}, v26
    v_lshlrev_b32 v27, 4, v25
    v_add_u32 v26, v26, v27
    v_add_u32 v{V_QR}, {L_QX}, v26
    ; m'(x) = 2*(x>>2) + (x&1)
    v_lshrrev_b32 v26, 2, v24
    v_lshlrev_b32 v26, 1, v26
    v_and_b32 v29, 1, v24
    v_add_u32 v29, v26, v29
    v_mul_u32_u24 v26, {RSX}, v29
    v_add_u32 v26, v26, v27
    v_add_u32 v{V_KR}, {L_KX}, v26
    v_lshlrev_b32 v26, 8, v29
    v_add_u32 v26, v26, v27
    s_lshl_b32 s5, s{S_W}, 6
    v_add_u32 v{V_KMO}, s5, v26
    v_lshlrev_b32 v26, 3, v0
    s_lshl_b32 s5, s{S_W}, 9
    v_add_u32 v{V_VMO}, s5, v26
    v_and_b32 v26, 7, v24
    v_lshlrev_b32 v26, 4, v26
    v_lshrrev_b32 v27, 1, v25
    v_lshlrev_b32 v27, 7, v27
    v_add_u32 v26, v26, v27
    v_and_b32 v27, 1, v25
    v_lshlrev_b32 v27, 3, v27
    v_add_u32 v26, v26, v27
    s_lshl_b32 s5, s{S_W}, 9
    s_add_u32 s5, s5, {L_OX}
    v_add_u32 v{V_OW}, s5, v26
    s_lshl_b32 s5, s{S_W}, 15
    v_add_u32 v{V_WO}, s5, v{V_L16}
    s_waitcnt lgkmcnt(0)
    """)
    srd(k, WS, 26, WS_BYTES)
    srd(k, WSRD, 24, 8192)
    k(f"""
    s_cmp_ge_u32 s{S_W}, 2
    s_cbranch_scc1 {P}_nopub0
    s_lshr_b32 s5, s6, 2
    s_lshl_b32 s5, s5, 5
    s_and_b32 s7, s6, 3
    s_lshl_b32 s7, s7, 2
    s_add_u32 s5, s5, s7
    s_lshl_b32 s5, s5, 1
    v_lshlrev_b32 v26, 10, v28
    v_lshl_add_u32 v26, v30, 1, v26
    v_add_u32 v26, s5, v26
    buffer_load_ushort v40, v26, s[{WSRD}:{WSRD+3}], 0 offen
    buffer_load_ushort v41, v26, s[{WSRD}:{WSRD+3}], 0 offen offset:32
    """)
    k.label(f"{P}_nopub0")
    k(f"""
    v_lshrrev_b32 v26, 4, v0
    v_bfe_u32 v27, v0, 5, 1
    v_lshlrev_b32 v27, 1, v27
    v_and_b32 v28, 15, v0
    v_xor_b32 v27, v27, v28
    v_lshlrev_b32 v27, 4, v27
    v_lshlrev_b32 v26, 13, v26
    v_add_u32 v26, v26, v27
    s_lshl_b32 s5, s{S_H}, 8
    v_add_u32 v24, s5, v26
    v_xor_b32 v25, 64, v24
    v_xor_b32 v39, 128, v24
    v_xor_b32 v23, 192, v24
    v_bfe_u32 v28, v0, 2, 2        ; r
    v_and_b32 v29, 3, v0           ; c
    v_lshrrev_b32 v30, 4, v0       ; gB
    v_and_b32 v31, 1, v28          ; r&1
    v_lshrrev_b32 v32, 1, v28      ; r>>1
    v_and_b32 v33, 1, v30          ; gB&1
    v_lshrrev_b32 v34, 1, v30      ; gB>>1
    v_lshlrev_b32 v35, 4, v31
    v_lshl_add_u32 v35, v34, 3, v35
    v_lshl_add_u32 v35, v32, 2, v35
    v_lshl_add_u32 v35, v33, 1, v35 ; Lrow
    v_lshlrev_b32 v35, 8, v35
    v_lshlrev_b32 v36, 2, v31
    v_lshl_add_u32 v36, v32, 1, v36
    v_add_u32 v36, v36, v33        ; F
    v_lshlrev_b32 v36, 1, v36      ; 2F
    v_lshrrev_b32 v37, 1, v29      ; c>>1
    s_lshl_b32 s5, s{S_W}, 2
    v_add_u32 v37, s5, v37
    v_xor_b32 v37, v37, v36
    v_lshlrev_b32 v37, 4, v37
    v_and_b32 v38, 1, v29
    v_lshl_add_u32 v37, v38, 3, v37
    v_add_u32 v35, v35, v37
    s_lshl_b32 s5, s{S_W}, 15
    v_add_u32 v26, s5, v35
    v_xor_b32 v27, 32, v26
    """)
    for mat in range(3):
        srd(k, WSRD, 16 + 2 * mat, 512 * 4096 * 2)
        if mat == 0: setup_stamp(k, 0)
        k(f"s_lshl_b32 s5, s{S_W}, 20\ns_lshl_b32 s6, s{S_W}, 15")
        for y in range(32):
            k(f"s_mov_b32 m0, s6")
            k(f"buffer_load_dwordx4 v{(24, 25, 39, 23)[(y & 1) + 2 * ((y >> 2) & 1)]}, s[{WSRD}:{WSRD+3}], s5 offen lds")
            if y < 31: k(f"s_add_u32 s5, s5, 32768\ns_add_u32 s6, s6, 1024")
        if mat == 0: setup_stamp(k, 1)
        if mat == 0 and merged:
            for r in range(4): k(f"v_mov_b32 v{44+r}, -1")
            k(f"s_lshl_b32 s7, s{S_H}, 13\ns_add_u32 s7, s7, {INBOX}")
            for slot in range(3):
                k(f"buffer_store_dwordx4 v[44:47], v{V_MEMP}, s[{WS}:{WS+3}], s7 offen sc1")
                k(f"buffer_store_dwordx4 v[44:47], v{V_MEMP}, s[{WS}:{WS+3}], s7 offen offset:1024 sc1")
                if slot < 2: k("s_add_u32 s7, s7, 0x40000")
            for slot in range(1, 4):
                k(f"s_mov_b32 s7, {MEMR + slot*8192}\nbuffer_store_dword v44, v{V_PUB}, s[{WS}:{WS+3}], s7 offen sc1")
            k(f"s_lshl_b32 s7, s{S_H}, 4\ns_add_u32 s7, s7, {FLAGS + F_KVM}\nv_mov_b32 v48, 0")
            k(f"buffer_store_dword v48, off, s[{WS}:{WS+3}], s7 sc1")
        k("s_waitcnt vmcnt(0)")
        if mat == 0:
            k(f"s_cmp_ge_u32 s{S_W}, 2\ns_cbranch_scc1 {P}_nopub1")
            k(f"v_lshl_or_b32 v40, v41, 16, v40\ns_mov_b32 s7, {MEMR}")
            k(f"buffer_store_dword v40, v{V_PUB}, s[{WS}:{WS+3}], s7 offen sc1")
            k.label(f"{P}_nopub1")
        k("s_barrier")
        setup_stamp(k, 2 + mat)
        if mat == 0 and merged: dbg_add(k, DBG_FLAGS, 46, S_W)
        if mat == 1 and merged:
            La = f"{P}_ann"
            k(f"s_cmp_lg_u32 s{S_W}, 0\ns_cbranch_scc1 {La}")
            k("s_getreg_b32 s70, hwreg(HW_REG_XCC_ID, 0, 4)\ns_mul_i32 s70, s70, 6\ns_lshl_b64 s[70:71], 1, s70\ns_add_u32 s71, s71, 0x10000")
            k("v_mov_b32 v44, s70\nv_mov_b32 v45, s71\ns_mov_b64 exec, 1")
            k(f"buffer_atomic_add_x2 v[44:45], off, s[{DBG}:{DBG+3}], 0 sc1")
            k("s_mov_b64 exec, -1")
            k.label(La)
        for t in range(2):
            for u in range(8):
                k(f"v_xor_b32 v28, {u*16384}, v{26+t}")
                for rp in range(4):
                    off = 8192 * (rp >> 1) + 256 * (rp & 1)
                    k(f"ds_read_b64_tr_b16 {wfrag_pair(mat,t,u,rp)}, v28 offset:{off}")
                if u % 2 == 1: k("s_waitcnt lgkmcnt(0)")
        k("s_waitcnt lgkmcnt(0)\ns_barrier")
    srd(k, WSRD, 22, 4096 * 512 * 2)
    k(f"""
    v_lshrrev_b32 v26, 4, v0
    v_and_b32 v27, 1, v26
    v_lshlrev_b32 v27, 2, v27        ; 4*(row&1)
    v_and_b32 v28, 15, v0
    v_xor_b32 v27, v27, v28
    v_lshlrev_b32 v27, 4, v27
    v_lshlrev_b32 v26, 10, v26
    v_add_u32 v26, v26, v27
    s_lshl_b32 s5, s{S_W}, 8
    v_add_u32 v24, s5, v26
    v_xor_b32 v25, 128, v24
    s_lshl_b32 s5, s{S_H}, 17
    s_lshl_b32 s6, s{S_W}, 15
    """)
    for y in range(32):
        k("s_mov_b32 m0, s6")
        k(f"buffer_load_dwordx4 v{24 + (y & 1)}, s[{WSRD}:{WSRD+3}], s5 offen lds")
        if y < 31: k("s_add_u32 s5, s5, 4096\ns_add_u32 s6, s6, 1024")
    k(f"""
    v_lshlrev_b32 v35, 3, v34
    v_lshl_add_u32 v35, v33, 2, v35
    v_add_u32 v35, v35, v31
    v_lshlrev_b32 v35, 8, v35
    v_lshlrev_b32 v36, 2, v31
    v_lshl_add_u32 v36, v33, 3, v36
    v_lshrrev_b32 v37, 1, v29
    v_lshl_add_u32 v37, v32, 1, v37
    v_xor_b32 v37, v37, v36
    v_lshlrev_b32 v37, 4, v37
    v_lshl_add_u32 v37, v38, 3, v37
    v_add_u32 v35, v35, v37
    s_lshl_b32 s5, s{S_W}, 15
    v_add_u32 v28, s5, v35
    """)
    if merged:
        k(f"buffer_load_dwordx2 v[112:113], off, s[{DBG}:{DBG+3}], 0 sc1")
        k(f"buffer_load_dword v114, off, s[{DBG}:{DBG+3}], 0 offset:{DBG_FLAGS} sc1")
    k("s_waitcnt vmcnt(0)")
    setup_stamp(k, 5)
    TMP = 48
    for half in range(2):
        for tau in range(4):
            k(f"v_xor_b32 v29, {64*tau}, v28")
            for e2 in range(2):
                eb = 2 * half + e2
                for rp in range(4):
                    off = (32 * eb + 16 * (rp >> 1) + 2 * (rp & 1)) * 256
                    k(f"ds_read_b64_tr_b16 {v(TMP+16*tau+8*e2+2*rp,2)}, v29 offset:{off}")
            k("s_waitcnt lgkmcnt(0)")
        for tau in range(4):
            for e2 in range(2):
                for hf in range(2):
                    k(f"ds_write_b128 v{V_WO}, {v(TMP+16*tau+8*e2+4*hf,4)} offset:{half*16384+tau*4096+e2*2048+hf*1024}")
        k("s_waitcnt lgkmcnt(0)")
    k("s_barrier")
    k(f"""
    v_and_b32 v24, 0x3e0, v{V_L16}
    v_lshrrev_b32 v24, 1, v24
    v_add_u32 v{V_WARM}, {L_OX}, v24
    """)

def step_offsets(k):
    k(f"""
    s_and_b32 s5, s{S_STEP}, 3
    s_lshl_b32 s5, s5, 13
    s_add_u32 s{S_MEMC}, s5, {MEMR}
    s_add_u32 s5, s{S_STEP}, 1
    s_and_b32 s5, s5, 3
    s_lshl_b32 s5, s5, 13
    s_add_u32 s{S_MEMN}, s5, {MEMR}
    s_add_u32 s5, s{S_STEP}, 3
    s_and_b32 s5, s5, 3
    s_lshl_b32 s5, s5, 13
    s_add_u32 s{S_MEMP}, s5, {MEMR}
    s_and_b32 s5, s{S_STEP}, 1
    s_lshl_b32 s6, s5, 18
    s_add_u32 s{S_INBC}, s6, {INBOX}
    s_add_u32 s{S_INBC1}, s{S_INBC}, 32768
    s_xor_b32 s6, s6, 0x40000
    s_add_u32 s{S_INBP}, s6, {INBOX}
    s_lshl_b32 s6, s5, 13
    s_add_u32 s{S_KSLOT}, s6, {L_KS}
    s_xor_b32 s6, s6, 8192
    s_lshl_b32 s7, s{S_W}, 11
    s_add_u32 s6, s6, s7
    s_add_u32 s{S_KSM0}, s6, {L_KS}
    s_lshl_b32 s5, s{S_H}, 6
    s_add_u32 s5, s5, s{S_STEP}
    s_add_u32 s5, s5, 1
    s_lshl_b32 s5, s5, 13
    s_add_u32 s{S_KFN}, s5, {KF}
    s_add_u32 s{S_VFN}, s5, {VF}
    s_lshl_b32 s5, s{S_STEP}, 5
    s_add_u32 s5, s5, s{S_H}
    s_lshl_b32 s5, s5, 11
    s_add_u32 s{S_KM}, s5, {KM}
    s_add_u32 s{S_VM}, s5, {VM}
    """)

def poll(k, P, name, r0, voff, soff, tmp, tmp2, cnt=None):
    L = f"{P}_{name}"
    k(f"s_mov_b32 s{S_SPIN}, 0")
    k.label(L)
    k(f"buffer_load_dwordx4 {v(r0,4)}, v{voff}, s[{WS}:{WS+3}], s{soff} offen sc1")
    k(f"buffer_load_dwordx4 {v(r0+4,4)}, v{voff}, s[{WS}:{WS+3}], s{soff} offen offset:1024 sc1")
    k(f"s_add_u32 s{S_SPIN}, s{S_SPIN}, 1")
    if cnt is not None: k(f"s_add_u32 s{cnt}, s{cnt}, 1")
    k(f"s_cmp_gt_u32 s{S_SPIN}, 20000")
    k(f"s_cbranch_scc1 {L}_fail")
    k("s_waitcnt vmcnt(0)")
    k(f"v_max3_u32 v{tmp}, v{r0}, v{r0+1}, v{r0+2}")
    k(f"v_max3_u32 v{tmp2}, v{r0+3}, v{r0+4}, v{r0+5}")
    k(f"v_max3_u32 v{tmp}, v{tmp}, v{r0+6}, v{r0+7}")
    k(f"v_max_u32 v{tmp}, v{tmp}, v{tmp2}")
    k(f"v_cmp_eq_u32 vcc, -1, v{tmp}")
    k(f"s_cbranch_vccnz {L}")
    k(f"s_branch {L}_ok")
    k.label(f"{L}_fail")
    k(f"s_add_u32 s{S_ERR}, s{S_ERR}, 1")
    k("s_waitcnt vmcnt(0)")
    k.label(f"{L}_ok")

def ilv(k, main, fill, start=0, per=1):
    fill = list(fill)
    for i, m in enumerate(main):
        k(m)
        if i >= start:
            for _ in range(per):
                if fill: k(fill.pop(0))
    for f in fill: k(f)

def smt(mat, t, u):
    acc = [AQ, AK, AV][mat] + 4 * t
    return f"v_smfmac_f32_16x16x64_bf16 {v(acc,4)}, {v(MA[u],4)}, {wfrag(mat,t,u)}, v{V_IDX}"

def chain_loop(k, P, stamps=False, dbg=True, D1=0, D2=0, X='', flags=False, sc=''):
    ST = Stamps(k, stamps)
    FT = 'ft' in X
    def ft(i):
        if FT: k(f"s_memrealtime s[{64+2*i}:{65+2*i}]")
    def ft_flush():
        if not FT: return
        L = k.newlabel(f"{P}_ft")
        k(f"s_waitcnt lgkmcnt(0)\ns_sub_u32 s5, s{S_STEP}, 21\ns_cmp_gt_u32 s5, 7\ns_cbranch_scc1 {L}")
        k(f"s_lshl_b32 s5, s5, 4\ns_lshl_b32 s6, s{S_W}, 7\ns_add_u32 s5, s5, s6\ns_add_u32 s5, s5, {L_OX + 2048}\nv_mov_b32 v112, s5")
        for i in range(4): k(f"v_mov_b32 v113, s{64+2*i}\nds_write_b32 v112, v113 offset:{4*i}")
        k("s_waitcnt lgkmcnt(0)")
        k.label(L)
    WSs = f"s[{WS}:{WS+3}]"
    c = (128 ** -0.5) * math.log2(math.e)
    S_ONES = 41 if not stamps else 62
    S_RST = 18
    S_FR, S_FC = 16, 17
    S_FNEED, S_FOFF, S_FNEED2, S_FOFF2 = 39, 38, 26, 31
    S_INBPv = 28
    S_KVMF = 60 if stamps else 42
    S_INB1, S_INB3 = (43 if not stamps else 61), 19
    INB_SLOT = 0x40000
    k(f"s_mov_b32 s{S_C}, {f2u(c):#x}")
    k(f"s_mov_b32 s{S_ONES}, 0x3f803f80")
    k(f"s_mov_b32 s{S_ERR}, 0")
    SENT = 116
    def flag_spin(tag):
        L = k.newlabel(f"{P}_{tag}")
        k(f"v_readfirstlane_b32 s5, v{V_FLV}")
        k(f"s_cmp_ge_u32 s5, s{S_FNEED}\ns_cbranch_scc1 {L}_ok")
        k(f"s_mov_b32 s{S_SPIN}, 0")
        k.label(L)
        k(f"v_mov_b32 v{V_FLV}, 0")
        k(f"buffer_load_dword v{V_FLV}, v{V_FLV}, {WSs}, s{S_FOFF} offen sc1")
        k(f"s_add_u32 s{S_SPIN}, s{S_SPIN}, 1\ns_cmp_gt_u32 s{S_SPIN}, 0x8000\ns_cbranch_scc1 {L}_fail")
        k(f"s_waitcnt vmcnt(0)\nv_readfirstlane_b32 s5, v{V_FLV}")
        k(f"s_cmp_ge_u32 s5, s{S_FNEED}\ns_cbranch_scc0 {L}\ns_branch {L}_ok")
        k.label(f"{L}_fail")
        k(f"s_add_u32 s{S_ERR}, s{S_ERR}, 1\ns_waitcnt vmcnt(0)")
        k.label(f"{L}_ok")
    def flag_next(seg_plus):
        k(f"s_lshl_b32 s5, s{S_H}, 4\ns_lshl_b32 s{S_FOFF2}, s{S_FR}, 2\ns_add_u32 s{S_FOFF2}, s{S_FOFF2}, s5")
        k(f"s_add_u32 s{S_FOFF2}, s{S_FOFF2}, {FLAGS + F_KV}")
        k(f"s_add_u32 s5, s{S_STEP}, {seg_plus}\ns_cmp_ge_u32 s5, {NSEG}\ns_cselect_b32 s{S_FNEED2}, 0, s{S_FC}")
        k(f"s_add_u32 s{S_FR}, s{S_FR}, 1\ns_cmp_eq_u32 s{S_FR}, {RQ}\ns_cselect_b32 s{S_FR}, 0, s{S_FR}\ns_addc_u32 s{S_FC}, s{S_FC}, 0")
    S_KSM0v = 29 + 0
    def k_dma01():
        return [f"buffer_load_dwordx4 v{V_MEMP}, {WSs}, s{S_KFN} offen sc1 lds",
                f"buffer_load_dwordx4 v{V_MEMP}, {WSs}, s{S_KFN} offen offset:1024 sc1 lds"]
    S_KM0 = 28
    S_KRD = 61 if not stamps else 63
    k(f"""
    s_mov_b32 s{S_STEP}, 0
    s_mov_b32 s{S_MEMC}, {MEMR}
    s_mov_b32 s{S_MEMN}, {MEMR + 8192}
    s_mov_b32 s{S_MEMP}, {MEMR + 3*8192}
    s_mov_b32 s{S_INBC}, {INBOX}
    s_mov_b32 s{S_INBC1}, {INBOX + 32768}
    s_mov_b32 s{S_INB1}, {INBOX + 16384}
    s_mov_b32 s{S_INB3}, {INBOX + 49152}
    s_lshl_b32 s5, s{S_H}, 13
    s_add_u32 s{S_RST}, s5, {INBOX + 2*INB_SLOT}
    s_lshl_b32 s5, s{S_H}, 11
    s_add_u32 s{S_KM}, s5, {KM}
    s_add_u32 s{S_VM}, s5, {VM}
    s_lshl_b32 s5, s{S_H}, 19
    s_add_u32 s{S_KFN}, s5, {KF}
    s_lshl_b32 s5, s{S_H}, 4
    s_add_u32 s{S_KVMF}, s5, {FLAGS + F_KVM}
    s_lshl_b32 s5, s{S_W}, 11
    s_add_u32 s{S_KM0}, s5, {L_KS}
    s_mov_b32 s{S_KRD}, {L_KS}
    """)
    if flags and 'merged' in X:
        k(f"v_lshlrev_b32 v56, 3, v{V_L16}\ns_lshl_b32 s5, s{S_H}, 13\ns_add_u32 s5, s5, {INBOX}\ns_cmp_eq_u32 s{S_W}, 3\ns_cbranch_scc1 {P}_pfm")
        k(f"s_lshl_b32 s6, s{S_W}, 18\ns_add_u32 s5, s5, s6\nbuffer_load_dword v57, v56, {WSs}, s5 offen sc1\ns_branch {P}_pfd")
        k.label(f"{P}_pfm")
        k(f"s_mov_b32 s5, {MEMR}")
        for i in range(4):
            k(f"buffer_load_dword v{57+i}, v56, {WSs}, s5 offen sc1")
            if i < 3: k("s_add_u32 s5, s5, 8192")
        k.label(f"{P}_pfd")
        Lf = f"{P}_fr"
        k("s_mov_b32 s72, 0")
        k.label(Lf)
        k(f"v_readfirstlane_b32 s5, v114\ns_cmp_ge_u32 s5, {N_FLAG_WGS}\ns_cbranch_scc1 {Lf}_ok")
        k(f"s_add_u32 s72, s72, 1\ns_cmp_gt_u32 s72, 0x20000\ns_cbranch_scc1 {Lf}_ok")
        k(f"s_sleep 4\nbuffer_load_dword v114, off, s[{DBG}:{DBG+3}], 0 offset:{DBG_FLAGS} sc1\ns_waitcnt vmcnt(0)\ns_branch {Lf}")
        k.label(f"{Lf}_ok")
    if flags:
        k(f"s_lshl_b32 s5, s{S_H}, 4\ns_add_u32 s{S_FOFF}, s5, {FLAGS + F_KV}\ns_mov_b32 s{S_FNEED}, 1\nv_mov_b32 v{V_FLV}, 0")
        flag_spin("f0")
    k(f"s_mov_b32 m0, s{S_KM0}")
    for x in k_dma01(): k(x)
    if flags:
        k(f"s_add_u32 s{S_FOFF}, s{S_FOFF}, 4\nv_mov_b32 v{V_FLV}, 0")
        k(f"buffer_load_dword v{V_FLV}, v{V_FLV}, {WSs}, s{S_FOFF} offen sc1")
        k(f"s_mov_b32 s{S_FR}, {2 % RQ}\ns_mov_b32 s{S_FC}, {2 // RQ + 1}")
        flag_next(2)
    k(f"s_add_u32 s{S_T0}, s{S_KFN}, {VF - KF}")
    k(f"s_add_u32 s{S_KFN}, s{S_KFN}, 8192\ns_xor_b32 s{S_KM0}, s{S_KM0}, 8192")
    for r in range(AQ, AQ + 24): k(f"v_mov_b32 v{r}, 0")
    for r in range(4): k(f"v_mov_b32 v{SENT+r}, -1")
    k("s_waitcnt vmcnt(0)")
    ST.init()
    cold = []
    MB = VSEG
    def mem_poll_issue(r=MA[0]):
        k(f"buffer_load_dwordx4 {v(r,4)}, v{V_MEMP}, {WSs}, s{S_MEMC} offen sc1")
        k(f"buffer_load_dwordx4 {v(r+4,4)}, v{V_MEMP}, {WSs}, s{S_MEMC} offen offset:1024 sc1")
    def mem_check(r):
        k(f"v_max3_u32 v{V_TMP}, v{r}, v{r+1}, v{r+2}")
        k(f"v_max3_u32 v{MA[2]}, v{r+3}, v{r+4}, v{r+5}")
        k(f"v_max3_u32 v{V_TMP}, v{V_TMP}, v{r+6}, v{r+7}")
        k(f"v_max_u32 v{V_TMP}, v{V_TMP}, v{MA[2]}")
        k(f"v_cmp_eq_u32 vcc, -1, v{V_TMP}")
    def k_frag_reads():
        k(f"v_add_u32 v{V_TMP}, s{S_KRD}, v{V_L16}")
        for T in range(2):
            for ks in range(4): k(f"ds_read_b128 {v(KSEG+16*T+4*ks,4)}, v{V_TMP} offset:{(4*T+ks)*1024}")
    k("s_barrier")
    k(f"s_mov_b32 s{S_SPIN}, 0")
    S1M = 's1m' in X
    S1I = 's1i' in X
    mem_poll_issue()
    k_frag_reads()
    if not S1M: mem_poll_issue(MB)
    k.label(f"{P}_step")
    k("s_waitcnt vmcnt(0)" if S1M else "s_waitcnt vmcnt(2)")
    k.label(f"{P}_step2")
    ST(0)
    ft(0)
    if common.TRACE_ON: k("s_memrealtime s[96:97]")
    mem_check(MA[0])
    own = [smt(mat, t, u) for u in (0, 1) for mat in range(3) for t in range(2)]
    k(f"s_cbranch_vccnz {P}_pm_retry")
    def cold_pm():
        k.label(f"{P}_pm_retry")
        if S1M:
            mem_poll_issue()
            k("s_sleep 2")
            mem_poll_issue(MB)
            k.label(f"{P}_pm_r2")
            k("s_waitcnt vmcnt(2)")
            mem_check(MA[0])
            k(f"s_cbranch_vccz {P}_pm_ok")
        mem_poll_issue()
        if stamps: k("s_add_u32 s58, s58, 1")
        k("s_waitcnt vmcnt(2)")
        mem_check(MB)
        k(f"s_cbranch_vccz {P}_pm_b")
        mem_poll_issue(MB)
        k(f"s_add_u32 s{S_SPIN}, s{S_SPIN}, 1")
        k(f"s_cmp_gt_u32 s{S_SPIN}, 100000\ns_cbranch_scc0 {P}_pm_r2" if S1M else f"s_cmp_gt_u32 s{S_SPIN}, 100000\ns_cbranch_scc0 {P}_step")
        k(f"s_add_u32 s{S_ERR}, s{S_ERR}, 1\ns_waitcnt vmcnt(0)\ns_branch {P}_pm_ok")
        k.label(f"{P}_pm_b")
        for r in range(8): k(f"v_mov_b32 v{MA[0]+r}, v{MB+r}")
        k(f"s_branch {P}_pm_ok")
    cold.append(cold_pm)
    k.label(f"{P}_pm_ok")
    k(f"ds_write_b128 v{V_MEMW}, {v(MA[0],4)}")
    k(own[0])
    k(f"ds_write_b128 v{V_MEMW}, {v(MA[1],4)} offset:1024")
    if dbg:
        k(f"s_lshl_b32 s5, s{S_STEP}, 13\ns_add_u32 s5, s5, {MEMDBG}")
        k(f"buffer_store_dwordx4 {v(MA[0],4)}, v{V_MEMP}, {WSs}, s5 offen")
        k(f"buffer_store_dwordx4 {v(MA[1],4)}, v{V_MEMP}, {WSs}, s5 offen offset:1024")
    k(f"buffer_load_dwordx4 {v(VSEG,4)}, v{V_MEMP}, {WSs}, s{S_T0} offen sc1")
    k(own[1])
    if flags: k(f"v_readfirstlane_b32 s5, v{V_FLV}")
    k(own[2])
    k(f"buffer_load_dwordx4 {v(VSEG+4,4)}, v{V_MEMP}, {WSs}, s{S_T0} offen offset:1024 sc1")
    if flags: k(f"s_cmp_ge_u32 s5, s{S_FNEED}")
    k(own[3])
    if flags:
        k(f"s_cbranch_scc0 {P}_fs_slow")
        def cold_fs():
            k.label(f"{P}_fs_slow")
            flag_spin("fs")
            k(f"s_branch {P}_fs_ok")
        cold.append(cold_fs)
        k.label(f"{P}_fs_ok")
    nb = 4 if 'nb4' in X else (6 if 'nb6' in X else 5)
    for m in own[4:nb]: k(m)
    k("s_waitcnt lgkmcnt(0)\ns_barrier")
    ST(1)
    rd = [f"ds_read_b128 {v(MA[uu],4)}, v{V_MR + uu//2 - 1} offset:{1024*(uu&1)}" for uu in range(2, 8)]
    k(rd[0])
    ilv(k, own[nb:], rd[1:])
    ST(2)
    if flags: k(f"v_mov_b32 v{V_TMP}, s{S_STEP}")
    for u in range(2, 8):
        k(f"s_waitcnt lgkmcnt({7 - u})")
        for t in range(2):
            k(smt(0, t, u))
        if u == 2 and flags and 'xkf' not in X:
            k(f"buffer_store_dword v{V_TMP}, off, {WSs}, s{S_KVMF} sc1")
        if 'rs2' in X:
            pass
        if u == 3 and 'xr' not in X: k(f"buffer_store_dwordx4 {v(SENT,4)}, v{V_MEMP}, {WSs}, s{S_RST} offen {sc}")
        if u == 5 and 'xr' not in X: k(f"buffer_store_dwordx4 {v(SENT,4)}, v{V_MEMP}, {WSs}, s{S_RST} offen offset:1024 {sc}")
    qe = [f"v_add_f32 v{AQ}, v{AQ}, v{AQ+1}", f"v_add_f32 v{AQ+2}, v{AQ+2}, v{AQ+3}",
          f"v_add_f32 v{AQ+4}, v{AQ+4}, v{AQ+5}", f"v_add_f32 v{AQ+6}, v{AQ+6}, v{AQ+7}",
          f"v_cvt_pk_bf16_f32 v{AQ}, v{AQ}, v{AQ+2}", f"v_cvt_pk_bf16_f32 v{AQ+4}, v{AQ+4}, v{AQ+6}",
          f"ds_write_b16 v{V_QW}, v{AQ}", f"ds_write_b16_d16_hi v{V_QW}, v{AQ} offset:{RSX}",
          f"ds_write_b16 v{V_QW}, v{AQ+4} offset:8", f"ds_write_b16_d16_hi v{V_QW}, v{AQ+4} offset:{RSX+8}"]
    km = [smt(1, t, u) for u in range(2, 8) for t in range(2)]
    q1 = 'q1' in X
    for i, m in enumerate(km):
        k(m)
        if q1:
            if 1 <= i <= 6: k(qe.pop(0))
            if i in (6, 7): k(qe.pop(0)); k(qe.pop(0))
        elif 1 <= i <= 5:
            for _ in range(2):
                if qe: k(qe.pop(0))
        if i == (0 if q1 else 6) and 'xd' not in X:
            k(f"s_mov_b32 m0, s{S_KM0}"); k(k_dma01()[0])
        if i == (8 if q1 else 7) and 'xd' not in X: k(k_dma01()[1])
        if i == 8 and flags and 'xfl' not in X:
            k(f"buffer_load_dword v{V_FLV}, off, {WSs}, s{S_FOFF2} sc1")
        if i == (10 if 'b10' in X else 9):
            k(f"s_waitcnt vmcnt({8 if flags else 6}) lgkmcnt(0)\ns_barrier")
            for ks in range(2): k(f"ds_read_b128 {v(QB[ks],4)}, v{V_QR} offset:{64*ks}")
        if i == (11 if 'b10' in X else 10):
            for ks in range(2, 4): k(f"ds_read_b128 {v(QB[ks],4)}, v{V_QR} offset:{64*ks}")
    ST(3)
    vm = [smt(2, t, u) for u in range(2, 8) for t in range(2)]
    ke = [f"v_add_f32 v{AK}, v{AK}, v{AK+1}", f"v_add_f32 v{AK+2}, v{AK+2}, v{AK+3}",
          f"v_add_f32 v{AK+4}, v{AK+4}, v{AK+5}", f"v_add_f32 v{AK+6}, v{AK+6}, v{AK+7}",
          f"v_cvt_pk_bf16_f32 v{AK}, v{AK}, v{AK+2}", f"v_cvt_pk_bf16_f32 v{AK+4}, v{AK+4}, v{AK+6}"]
    D = L_KX - L_QX
    kw = [f"ds_write_b16 v{V_QW}, v{AK} offset:{D}", f"ds_write_b16_d16_hi v{V_QW}, v{AK} offset:{D+RSX}",
          f"ds_write_b16 v{V_QW}, v{AK+4} offset:{D+8}", f"ds_write_b16_d16_hi v{V_QW}, v{AK+4} offset:{D+RSX+8}"]
    k(vm[0]); k(vm[1])
    k(ke[0]); k(ke[1]); k(vm[2]); k(ke[2]); k(ke[3]); k(vm[3]); k(ke[4]); k(ke[5])
    k(kw[0]); k(kw[1]); k(vm[4]); k(kw[2]); k(kw[3])
    k("s_waitcnt lgkmcnt(4)")
    sg = []
    for ks in range(4):
        for T in range(2):
            acc = AQ + 4 * T
            sg.append(f"v_mfma_f32_16x16x32_bf16 {v(acc,4)}, {v(KSEG+16*T+4*ks,4)}, {v(QB[ks],4)}, {'0' if ks == 0 else v(acc,4)}")
    t2i = [f"v_mov_b32 v{AK}, 0", f"v_mov_b32 v{AK+1}, 0", f"v_mov_b32 v{AK+2}, 0xf149f2ca", f"v_mov_b32 v{AK+3}, 0xf149f2ca",
           f"s_lshl_b32 s5, s{S_W}, 6", f"v_add_u32 v{V_TMP}, s5, v{V_KR}"]
    for i in range(4): k(sg[i])
    k("s_waitcnt lgkmcnt(0)\ns_barrier")
    ST(4)
    for ks in range(4): k(f"ds_read_b128 {v(KA[ks] + 0,4)}, v{V_KR} offset:{64*ks}") if False else None
    ilv(k, sg[4:], t2i, per=2)
    for ks in range(4): k(f"ds_read_b128 {v(KA[ks],4)}, v{V_KR} offset:{64*ks}")
    k(f"ds_read_b128 {v(AK+4,4)}, v{V_TMP}")
    def wo_off(f):
        tau, eb = f >> 2, f & 3
        return (eb >> 1) * 16384 + tau * 4096 + (eb & 1) * 2048
    def wslot(f): return WS10 if f == 0 else WSLOT[(f - 1) % 9]
    def wo_read(f):
        slot = wslot(f)
        return [f"ds_read_b128 {v(slot+4*half,4)}, v{V_WO} offset:{wo_off(f)+half*1024}" for half in range(2)]
    w01 = wo_read(1) + wo_read(2)
    S = [AQ + i for i in range(8)] + [AK, AK + 1]
    M, M2 = AK + 4, AK + 5
    X1, X2 = V_TMP, MA[0] + 0
    for i, m in enumerate(vm[5:]):
        k(m)
        if i >= 3: k(w01[i - 3])
    k("s_waitcnt lgkmcnt(5)")
    ve = [f"v_add_f32 v{AV}, v{AV}, v{AV+1}", f"v_add_f32 v{AV+2}, v{AV+2}, v{AV+3}",
          f"v_add_f32 v{AV+4}, v{AV+4}, v{AV+5}", f"v_add_f32 v{AV+6}, v{AV+6}, v{AV+7}",
          f"v_cvt_pk_bf16_f32 v{AV}, v{AV}, v{AV+2}", f"v_cvt_pk_bf16_f32 v{AV+1}, v{AV+4}, v{AV+6}"]
    ms = [f"v_mfma_f32_16x16x32_bf16 {v(AK,4)}, {v(KA[ks],4)}, {v(QB[ks],4)}, {v(AK,4)}" for ks in range(4)]
    X1, X2 = V_TMP, AV + 6
    k(ms[0]); k(f"v_max3_f32 v{X1}, v{S[0]}, v{S[1]}, v{S[2]}"); k(f"v_max3_f32 v{X1}, v{X1}, v{S[3]}, v{S[4]}")
    k(ms[1]); k(f"v_max3_f32 v{X1}, v{X1}, v{S[5]}, v{S[6]}"); k(f"v_max_f32 v{X1}, v{X1}, v{S[7]}")
    k(ms[2]); k(ve[0]); k(ve[1])
    k(ms[3]); k(ve[2]); k(ve[3]); k(ve[4]); k(ve[5])
    k("s_waitcnt lgkmcnt(4)")
    kms = "" if 'plainkm' in X else "sc1"
    if 'nokm' not in X:
        k(f"buffer_store_dwordx4 {v(AK+4,4)}, v{V_KMO}, {WSs}, s{S_KM} offen {kms}")
        k(f"buffer_store_dwordx2 {v(AV,2)}, v{V_VMO}, {WSs}, s{S_VM} offen {kms}")
    else:
        k(f"buffer_store_dwordx4 {v(AK+4,4)}, v{V_KMO}, {WSs}, s{S_RST} offen offset:2048") if False else k("s_nop 0")
    ST(5)
    rest = [x for f in (3, 4, 5, 6, 7, 8) for x in wo_read(f)]
    k(f"v_mov_b32 v{AV+2}, v{AV+1}\nv_mov_b32 v{AV+3}, 0")
    k(f"v_max3_f32 v{M}, v{X1}, v{S[8]}, v{S[9]}")
    k(f"v_mov_b32 v{M2}, v{M}")
    k(f"v_mov_b32 v{QB[0]}, s{S_ONES}\nv_mov_b32 v{QB[0]+1}, s{S_ONES}")
    k(f"v_permlane32_swap_b32 v{M}, v{M2}")
    k(f"v_max_f32 v{M}, v{M}, v{M2}")
    k(f"v_mov_b32 v{M2}, v{M}")
    k(f"v_mov_b32 v{QB[0]+2}, s{S_ONES}\nv_mov_b32 v{QB[0]+3}, s{S_ONES}")
    k(f"v_permlane16_swap_b32 v{M}, v{M2}")
    k(f"v_max_f32 v{M}, v{M}, v{M2}")
    k(f"v_mul_f32 v{M}, {f2u(-c):#x}, v{M}")
    k(f"s_cmp_eq_u32 s{S_STEP}, {NSEG-1}")
    for r in S[::2]:
        k(f"v_pk_fma_f32 {v(r,2)}, {v(r,2)}, s[{S_C}:{S_C+1}], {v(M,2)} op_sel_hi:[1,0,0]")
    for i, r in enumerate(S):
        k(f"v_exp_f32 v{r}, v{r}")
        if i % 2 == 1 and rest: k(rest.pop(0))
    for i in range(4): k(f"v_cvt_pk_bf16_f32 v{AQ+i}, v{AQ+2*i}, v{AQ+2*i+1}")
    k(f"v_cvt_pk_bf16_f32 v{AK}, v{AK}, v{AK+1}\nv_mov_b32 v{AK+1}, 0")
    ST(6)
    O0, O1 = AQ + 4, AV + 4
    Lr, L2 = AK + 2, AK + 3
    k(f"s_waitcnt vmcnt({(8 if flags else 6) - (2 if 'nokm' in X else 0)})")
    ONES = QB[0]
    LA = AK + 4
    k(f"v_mfma_f32_16x16x32_bf16 {v(LA,4)}, {v(ONES,4)}, {v(AQ,4)}, 0")
    k(f"s_cbranch_scc1 {P}_done")
    rest += wo_read(9)
    k(f"v_mfma_f32_16x16x32_bf16 {v(O0,4)}, {v(VSEG,4)}, {v(AQ,4)}, 0")
    k(rest.pop(0)); k(rest.pop(0))
    k(f"v_mfma_f32_16x16x32_bf16 {v(O1,4)}, {v(VSEG+4,4)}, {v(AQ,4)}, 0")
    W8 = rest[-2:]; rest = rest[:-2]
    k(rest.pop(0)); k(rest.pop(0))
    k(f"v_mfma_f32_16x16x16_bf16 {v(LA,4)}, {v(ONES,2)}, {v(AK,2)}, {v(LA,4)}")
    k(rest.pop(0)); k(rest.pop(0))
    k(f"v_mfma_f32_16x16x16_bf16 {v(O0,4)}, {v(AV,2)}, {v(AK,2)}, {v(O0,4)}")
    for x in rest: k(x)
    k(f"v_mfma_f32_16x16x16_bf16 {v(O1,4)}, {v(AV+2,2)}, {v(AK,2)}, {v(O1,4)}")
    k(f"v_rcp_f32 v{Lr}, v{LA}")
    for x in W8: k(x)
    for r in (0, 2): k(f"v_pk_mul_f32 {v(O0+r,2)}, {v(O0+r,2)}, {v(Lr,2)} op_sel_hi:[1,0]")
    k(f"v_cvt_pk_bf16_f32 v{O0}, v{O0}, v{O0+1}\nv_cvt_pk_bf16_f32 v{O0+1}, v{O0+2}, v{O0+3}")
    k(f"ds_write_b64 v{V_OW}, {v(O0,2)}")
    for r in (0, 2): k(f"v_pk_mul_f32 {v(O1+r,2)}, {v(O1+r,2)}, {v(Lr,2)} op_sel_hi:[1,0]")
    k(f"v_cvt_pk_bf16_f32 v{O1}, v{O1}, v{O1+1}\nv_cvt_pk_bf16_f32 v{O1+1}, v{O1+2}, v{O1+3}")
    k(f"ds_write_b64 v{V_OW}, {v(O1,2)} offset:256")
    ST(7)
    for x in wo_read(0): k(x)
    for r in range(4): k(f"v_mov_b32 v{WACC[1]+r}, 0")
    k("s_waitcnt lgkmcnt(2)\ns_barrier")
    for eb in range(4): k(f"ds_read_b128 {v(OA[eb],4)}, v{V_WARM} offset:{512*eb}")
    for r in range(4): k(f"v_mov_b32 v{WACC[0]+r}, 0")
    ST(8)
    inflight = [('w', 0), ('w', 0), ('oa', 0), ('oa', 1), ('oa', 2), ('oa', 3)]
    def wait_for(tag):
        if tag in inflight:
            last = max(i for i, x in enumerate(inflight) if x == tag)
            k(f"s_waitcnt lgkmcnt({len(inflight) - 1 - last})")
            del inflight[:last + 1]
    def epi(tau):
        a0 = WACC[tau]
        return [f"v_cvt_pk_bf16_f32 v{a0}, v{a0}, v{a0+2}", f"v_cvt_pk_bf16_f32 v{a0+1}, v{a0+1}, v{a0+3}"]
    S_INB = [S_INBC, S_INB1, S_INBC1, S_INB3]
    def pstore(tau): return f"buffer_store_dwordx2 {v(WACC[tau],2)}, v{V_PART}, {WSs}, s{S_INB[tau]} offen {sc}"
    for f in range(16):
        tau, eb = f >> 2, f & 3
        wait_for(('oa', eb)); wait_for(('w', f))
        k(f"v_smfmac_f32_16x16x64_bf16 {v(WACC[tau],4)}, {v(OA[eb],4)}, {v(wslot(f),8)}, v{V_IDX}")
        if 1 <= f and f + 9 < 16:
            for x in wo_read(f + 9): k(x)
            inflight += [('w', f + 9)] * 2
        for z in {1: (0, 4), 2: (1, 5), 3: (2,), 4: (3,), 7: (6,), 8: (7,)}.get(f, ()): k(f"v_mov_b32 v{WS10 + z}, 0")
        if f in (5, 9, 13): k(epi((f - 5) // 4)[0])
        if f in (6, 10, 14): k(epi((f - 6) // 4)[1])
        if f in (7, 11, 15): k(pstore((f - 7) // 4))
    for x in epi(3): k(x)
    k(pstore(3))
    ST(9)
    ft(1)
    if common.TRACE_ON:
        k(f"s_waitcnt lgkmcnt(0)\ns_lshl_b32 s5, s{S_STEP}, 2\ns_add_u32 s5, s5, {L_OX + 2048 + 1024}\nv_mov_b32 v56, s5\nv_mov_b32 v57, s96\nds_write_b32 v56, v57")
    for r in range(AQ, AQ + 8): k(f"v_mov_b32 v{r}, 0")
    for r in range(4): k(f"v_mov_b32 v{SENT+r}, -1")
    k(f"s_mov_b32 s{S_T1}, s{S_MEMN}\ns_mov_b32 s{S_T2}, s{S_INBC}\ns_mov_b32 s7, s{S_MEMP}")
    k(f"""
    s_mov_b32 s{S_MEMP}, s{S_MEMC}
    s_mov_b32 s{S_MEMC}, s{S_MEMN}
    s_add_u32 s5, s{S_MEMN}, 0x2000
    s_and_b32 s5, s5, 0x7fff
    s_or_b32 s{S_MEMN}, s5, {MEMR}
    s_lshl_b32 s6, s{S_H}, 13
    s_add_u32 s{S_RST}, s{S_INBC}, s6
    s_add_u32 s5, s{S_INBC}, {INB_SLOT}
    s_cmp_ge_u32 s5, {INBOX + 3*INB_SLOT}
    s_cselect_b32 s{S_INBC}, {INBOX}, s5
    s_add_u32 s{S_INBC1}, s{S_INBC}, 32768
    s_add_u32 s{S_INB1}, s{S_INBC}, 16384
    s_add_u32 s{S_INB3}, s{S_INBC}, 49152
    s_add_u32 s{S_KM}, s{S_KM}, 65536
    s_add_u32 s{S_VM}, s{S_VM}, 65536
    s_add_u32 s{S_T0}, s{S_KFN}, {VF - KF}
    s_add_u32 s{S_KFN}, s{S_KFN}, {0 if 'fixkv' in X else 8192}
    s_xor_b32 s{S_KM0}, s{S_KM0}, 8192
    s_xor_b32 s{S_KRD}, s{S_KRD}, 8192
    """)
    assert MEMR == 0x10000 and L_KS % 16384 == 0
    if flags:
        k(f"s_mov_b32 s{S_FOFF}, s{S_FOFF2}\ns_mov_b32 s{S_FNEED}, s{S_FNEED2}")
        flag_next(3)
    k(f"s_add_u32 s{S_STEP}, s{S_STEP}, 1")
    k(f"s_cmp_ge_u32 s{S_W}, 2\ns_cbranch_scc1 {P}_w23")
    if D1: k(f"s_sleep {D1}")
    ST(12)
    L = f"{P}_pi"
    IA, IB = 56, 80
    def inb_issue(r):
        for i in range(4):
            k(f"buffer_load_dwordx4 {v(r+4*i,4)}, v{V_INB}, {WSs}, s{S_T2} offen offset:{1024*i} sc1")
    def inb_reduce(r, pend):
        R = lambda i: r + i
        chk = [f"v_max3_u32 v76, v{R(0)}, v{R(1)}, v{R(2)}", f"v_max3_u32 v77, v{R(3)}, v{R(4)}, v{R(5)}", f"v_max3_u32 v76, v76, v{R(6)}, v{R(7)}",
               f"v_max3_u32 v77, v77, v{R(8)}, v{R(9)}", f"v_max3_u32 v76, v76, v{R(10)}, v{R(11)}", f"v_max3_u32 v77, v77, v{R(12)}, v{R(13)}",
               f"v_max3_u32 v76, v76, v{R(14)}, v{R(15)}", "v_max_u32 v76, v76, v77"]
        k(f"s_waitcnt vmcnt({pend+3})")
        k(f"v_mfma_f32_16x16x32_bf16 v[72:75], {v(V_SEL,4)}, {v(r,4)}, 0"); k(chk[0])
        k(f"s_waitcnt vmcnt({pend+2})")
        k(f"v_mfma_f32_16x16x32_bf16 v[72:75], {v(V_SEL,4)}, {v(r+4,4)}, v[72:75]"); k(chk[1]); k(chk[2])
        k(f"s_waitcnt vmcnt({pend+1})")
        k(f"v_mfma_f32_16x16x32_bf16 v[72:75], {v(V_SEL,4)}, {v(r+8,4)}, v[72:75]"); k(chk[3]); k(chk[4])
        k(f"s_waitcnt vmcnt({pend})")
        k(f"v_mfma_f32_16x16x32_bf16 v[72:75], {v(V_SEL,4)}, {v(r+12,4)}, v[72:75]")
        k(chk[5]); k(chk[6]); k(chk[7])
        k(f"v_cmp_eq_u32 vcc, -1, v76")
    k(f"s_mov_b32 s{S_SPIN}, 0")
    inb_issue(IA)
    for r in range(AQ + 8, AQ + 24): k(f"v_mov_b32 v{r}, 0")
    if not S1I:
        import re as _re
        mh = _re.search(r"H(\d)", X)
        if mh:
            if int(mh.group(1)): k(f"s_sleep {mh.group(1)}")
        elif 'gap2' in X: k("s_sleep 1")
        inb_issue(IB)
    k.label(L)
    inb_reduce(IA, 0 if S1I else 4)
    k(f"s_cbranch_vccnz {L}_retry")
    def cold_pi():
        k.label(f"{L}_retry")
        if S1I:
            inb_issue(IA)
            k("s_sleep 2")
            inb_issue(IB)
            k.label(f"{L}_r2")
            inb_reduce(IA, 4)
            k(f"s_cbranch_vccz {L}_ok")
        inb_issue(IA)
        if stamps: k("s_add_u32 s59, s59, 1")
        inb_reduce(IB, 4)
        k(f"s_cbranch_vccz {L}_ok")
        inb_issue(IB)
        k(f"s_add_u32 s{S_SPIN}, s{S_SPIN}, 1")
        k(f"s_cmp_gt_u32 s{S_SPIN}, 100000\ns_cbranch_scc0 {L}_r2" if S1I else f"s_cmp_gt_u32 s{S_SPIN}, 100000\ns_cbranch_scc0 {L}")
        k(f"s_add_u32 s{S_ERR}, s{S_ERR}, 1\ns_waitcnt vmcnt(0)\ns_branch {L}_ok")
    cold.append(cold_pi)
    k.label(f"{L}_ok")
    ST(10)
    ft(2)
    k("s_mov_b32 vcc_lo, 0xff00ff00\ns_mov_b32 vcc_hi, 0xff00ff00")
    for r in range(4):
        k(f"v_add_f32_dpp v{72+r}, v{72+r}, v{72+r} row_ror:8 row_mask:0xf bank_mask:0xf")
    k("v_cvt_pk_bf16_f32 v72, v72, v73\nv_cvt_pk_bf16_f32 v73, v74, v75")
    k("v_cndmask_b32 v72, v72, v73, vcc")
    k(f"buffer_store_dword v72, v{V_PUB}, {WSs}, s{S_T1} offen {sc}")
    k.label(f"{P}_join")
    k("s_barrier")
    ST(11)
    ft(3)
    ft_flush()
    ST.collect()
    if D2: k(f"s_sleep {D2}")
    k(f"s_mov_b32 s{S_SPIN}, 0")
    mem_poll_issue()
    k("s_waitcnt vmcnt(3)")
    k_frag_reads()
    if not S1M:
        import re as _re
        mg = _re.search(r"G(\d)", X)
        if mg:
            if int(mg.group(1)): k(f"s_sleep {mg.group(1)}")
        elif 'gap' in X: k("s_sleep 1")
        mem_poll_issue(MB)
    k(f"s_branch {P}_step")
    k.label(f"{P}_w23")
    if 'ackt' in X: k("s_waitcnt vmcnt(0)\ns_memtime s[88:89]")
    for r in range(AQ + 8, AQ + 24): k(f"v_mov_b32 v{r}, 0")
    k("s_waitcnt vmcnt(2)")
    k(f"buffer_store_dword v{SENT}, v{V_PUB}, {WSs}, s7 offen {sc}")
    if stamps: k("s_memtime s[84:85]" if 'ackt' in X else "s_memtime s[88:89]\ns_memtime s[84:85]")
    k(f"s_branch {P}_join")
    for cb in cold: cb()
    k.label(f"{P}_done")
    k("s_waitcnt vmcnt(0)\ns_barrier")
    if flags:
        k(f"s_cmp_lg_u32 s{S_W}, 2\ns_cbranch_scc1 {P}_nfin\nv_mov_b32 v{MA[0]}, {NSEG}\ns_mov_b64 exec, 1")
        k(f"buffer_store_dword v{MA[0]}, v{V_L16}, {WSs}, s{S_KVMF} offen sc1")
        k("s_mov_b64 exec, -1\ns_waitcnt vmcnt(0)")
        k.label(f"{P}_nfin")
    if FT:
        k(f"s_waitcnt lgkmcnt(0)\ns_barrier\nv_lshrrev_b32 v56, 2, v{V_L16}\ns_lshl_b32 s6, s{S_W}, 8\nv_add_u32 v56, s6, v56")
        k(f"v_add_u32 v57, {L_OX + 2048}, v56\nds_read_b32 v58, v57\ns_waitcnt lgkmcnt(0)")
        k(f"s_lshl_b32 s5, s{S_H}, 10\ns_add_u32 s5, s5, {TRACE}\nbuffer_store_dword v58, v56, {WSs}, s5 offen\ns_waitcnt vmcnt(0)")
    if stamps and flags:
        k(f"s_lshl_b32 s5, s2, 10\ns_lshl_b32 s6, s{S_W}, 6\ns_add_u32 s5, s5, s6\ns_add_u32 s5, s5, {TRACE + 256}\nv_mov_b32 v56, 0")
        for j in range(4):
            for r in range(4): k(f"v_mov_b32 v{60+4*j+r}, s{44+4*j+r}")
            k(f"buffer_store_dwordx4 {v(60+4*j,4)}, v56, {WSs}, s5 offen offset:{16*j}")
        k("s_waitcnt vmcnt(0)")
    if common.TRACE_ON:
        k(f"s_memrealtime s[98:99]\ns_waitcnt lgkmcnt(0)\nv_mov_b32 v56, {L_OX + 2048 + 1024 + 63*4}\nv_mov_b32 v57, s98\nds_write_b32 v56, v57\ns_waitcnt lgkmcnt(0)")
        k(f"v_lshrrev_b32 v56, 2, v{V_L16}\nv_add_u32 v57, {L_OX + 2048 + 1024}, v56\nds_read_b32 v58, v57\ns_waitcnt lgkmcnt(0)")
        k(f"s_lshl_b32 s5, s2, 10\ns_add_u32 s5, s5, {TRACE}\nbuffer_store_dword v58, v56, {WSs}, s5 offen\ns_waitcnt vmcnt(0)")
    return ST


def xcc_decide(k, P, slow_label):
    L = f"{P}_xd"
    k("s_mov_b32 s72, 0")
    k.label(L)
    k("v_readfirstlane_b32 s70, v112\nv_readfirstlane_b32 s71, v113")
    k(f"s_lshr_b32 s5, s71, 16\ns_cmp_ge_u32 s5, 32\ns_cbranch_scc1 {L}_all")
    k(f"s_add_u32 s72, s72, 1\ns_cmp_gt_u32 s72, 0x20000\ns_cbranch_scc1 {slow_label}")
    k(f"s_sleep 4\nbuffer_load_dwordx2 v[112:113], off, s[{DBG}:{DBG+3}], 0 sc1\ns_waitcnt vmcnt(0)\ns_branch {L}")
    k.label(f"{L}_all")
    k("s_getreg_b32 s5, hwreg(HW_REG_XCC_ID, 0, 4)\ns_mul_i32 s5, s5, 6\ns_lshr_b64 s[70:71], s[70:71], s5\ns_and_b32 s5, s70, 63")
    k(f"s_cmp_lg_u32 s5, 32\ns_cbranch_scc1 {slow_label}")
```

```python
import sys
from common import *
import chain, qkv, gemmk, ffn1, ln

NAME = "recurrent_scan__memory_aug_recurrent_mem_tr__dense_activation_mish__prompt_kernel"

DESIGN = """;
; One persistent launch, 256 workgroups (one per CU), static roles by workgroup id (x = id & 7, y = id >> 3):
;   x == 0      recurrence ("chain"): head y keeps Wq/Wk/Wv in registers and Wo in LDS; per segment it projects the
;               The hand-offs use plain stores when all 32 heads sit on one XCD (checked at run time through
;               HW_REG_XCC_ID and d_debug) and write-through stores otherwise.
;   x == 1, 2   output projection + gate + residual (x == 1 first runs the LayerNorm)
;   x >= 4      y < 24: Q/K/V projection of the segment tokens + their attention; y >= 24: first FFN matrix + mish
; Work is handed between roles through d_ws with progress words that their writers zero at start-up; d_debug holds
; the start-up counters.  Weights stay resident (registers / LDS) for the whole launch.
; Generated by hand-written Python emitters (instruction streams and wait states are placed explicitly).
;
"""

def build(stamps=False, opts=''):
    import common
    common.TRACE_ON = 'trace' in opts
    import re as _re
    gemmk.OUT_SC = 'sc1' if 'outsc1' in opts else ('nt' if 'outnt' in opts else '')
    mm = _re.search(r'D=(\d+),(\d+),(\w*)', opts)
    D1, D2, XO = (int(mm.group(1)), int(mm.group(2)), mm.group(3)) if mm else (0, 3, 'G1H0')
    k = K()
    k(f"""
    s_cmp_ge_u32 s2, 256
    s_cbranch_scc1 mg_exit
    {"s_memrealtime s[78:79]" if 'trace' in opts else ""}
    {"s_and_b32 s5, s2, 7" if 'spread' not in opts else "s_lshr_b32 s5, s2, 5"}
    {"s_lshr_b32 s6, s2, 3" if 'spread' not in opts else "s_and_b32 s6, s2, 31"}
    s_cmp_eq_u32 s5, 0
    s_cbranch_scc1 mg_chain
    s_cmp_le_u32 s5, 2
    s_cbranch_scc1 mg_wo
    s_cmp_eq_u32 s5, 3
    s_cbranch_scc1 mg_f2
    s_sub_u32 s5, s5, 4
    s_cmp_lt_u32 s6, {8*RQ}
    s_cbranch_scc0 mg_f1sel
    s_mul_i32 s5, s5, {8*RQ}
    s_add_u32 s5, s5, s6
    s_branch mg_qkv
mg_f1sel:
    s_sub_u32 s6, s6, {8*RQ}
    s_mul_i32 s5, s5, {32 - 8*RQ}
    s_add_u32 s5, s5, s6
    s_cmp_lt_u32 s5, {7*RH}
    s_cbranch_scc1 mg_f1
    {"s_branch mg_pf" if 'pf' in opts.split() else "s_endpgm"}
    """)
    k.label("mg_chain")
    k("s_mov_b32 s3, s6")
    dbg_srd(k)
    chain.chain_setup(k, "ch", merged=True)
    if 'wolate2' in opts: dbg_add(k, 8, 40, 4)
    if 'trace' in opts:
        k(f"s_memrealtime s[74:75]\ns_waitcnt lgkmcnt(0)\nv_mov_b32 v40, s78\nv_mov_b32 v41, s74\nv_mov_b32 v42, 0\ns_lshl_b32 s5, s2, 10\ns_add_u32 s5, s5, {TRACE + 512}")
        k("buffer_store_dwordx2 v[40:41], v42, s[8:11], s5 offen")
        for i in range(6): k(f"v_mov_b32 v43, s{80+2*i}\nbuffer_store_dword v43, v42, s[8:11], s5 offen offset:{16+4*i}")
    if 'forceslow' in opts: k("s_branch mg_chain_slow")
    chain.xcc_decide(k, "ch", "mg_chain_slow")
    chain.chain_loop(k, "ch", stamps=('st' in opts.split()), dbg=('dbg' in opts), flags=True, D1=D1, D2=D2, X=XO + 'merged')
    if 'wbl2' in opts: k("buffer_wbl2 sc1\ns_waitcnt vmcnt(0)")
    k("s_endpgm")
    k.label("mg_chain_slow")
    k("s_waitcnt vmcnt(0)")
    chain.chain_loop(k, "cs", stamps=False, dbg=('dbg' in opts), flags=True, sc='sc1', X='merged')
    k("s_endpgm")
    k.label("mg_wo")
    if 'nowo' in opts: k("s_endpgm")
    k("s_and_b32 s3, s6, 15\ns_lshr_b32 s6, s6, 4\ns_sub_u32 s5, s5, 1\ns_lshl_b32 s5, s5, 1\ns_add_u32 s16, s5, s6")
    dbg_srd(k)
    k(f"s_and_b32 s5, s2, 7\ns_cmp_lg_u32 s5, 1" if 'spread' not in opts else "s_lshr_b32 s5, s2, 5\ns_cmp_lg_u32 s5, 1")
    k("s_cbranch_scc1 mg_wo_noln")
    k(f"s_load_dwordx2 s[36:37], s[0:1], {A_X}\ns_load_dwordx2 s[38:39], s[0:1], {D_WS}\nv_mov_b32 v100, v0\nv_lshrrev_b32 v1, 6, v0\nv_and_b32 v0, 63, v0\nv_readfirstlane_b32 s20, v1")
    k(("s_lshr_b32 s5, s2, 3" if 'spread' not in opts else "s_and_b32 s5, s2, 31") + "\ns_lshl_b32 s5, s5, 2\ns_add_u32 s20, s20, s5\ns_waitcnt lgkmcnt(0)")
    srd(k, 8, 38, WS_BYTES); srd(k, 12, 36, 2048 * 1024)
    ln.ln_role(k, "ln", 20, 8, 12)
    k("s_waitcnt vmcnt(0)")
    dbg_add(k, DBG_LN, 4)
    k("v_mov_b32 v0, v100")
    k.label("mg_wo_noln")
    if 'wolate2' in opts:
        k("v_lshrrev_b32 v1, 6, v0\nv_readfirstlane_b32 s4, v1")
        dbg_wait(k, 8, 32, 2)
    elif 'wolate' in opts:
        k("v_lshrrev_b32 v1, 6, v0\nv_readfirstlane_b32 s4, v1")
        dbg_wait(k, DBG_FLAGS, N_FLAG_WGS, 2)
    if 'delay' in opts.split():
        k("v_lshrrev_b32 v1, 6, v0\nv_readfirstlane_b32 s4, v1")
        dbg_wait(k, 4, 0x200000, 2)
    gemmk.gk_setup(k, "wo", "wo", merged=True); gemmk.gk_loop(k, "wo", "wo")
    k("s_endpgm")
    k.label("mg_f2")
    if 'noffn' in opts: k("s_endpgm")
    k("s_and_b32 s3, s6, 15\ns_lshr_b32 s16, s6, 4")
    dbg_srd(k)
    if 'delay' in opts.split():
        k("v_lshrrev_b32 v1, 6, v0\nv_readfirstlane_b32 s4, v1")
        dbg_wait(k, 4, 0x200000, 2)
    gemmk.gk_setup(k, "f2", "f2", merged=True); gemmk.gk_loop(k, "f2", "f2")
    k("s_endpgm")
    k.label("mg_qkv")
    k(f"s_mul_hi_u32 s3, s5, {-(-(1 << 32) // RQ)}\ns_mul_i32 s6, s3, {RQ}\ns_sub_u32 s16, s5, s6")
    dbg_srd(k)
    qkv.qkv_setup(k, "qk", merged=True); qkv.qkv_loop(k, "qk", merged=True)
    k("s_endpgm")
    k.label("mg_f1")
    if 'noffn' in opts: k("s_endpgm")
    k(f"s_lshr_b32 s3, s5, 1\ns_and_b32 s16, s5, 1")
    dbg_srd(k)
    if 'delay' in opts.split() and 'f1early' not in opts:
        k("v_lshrrev_b32 v1, 6, v0\nv_readfirstlane_b32 s4, v1")
        dbg_wait(k, 4, 0x200000, 2)
    ffn1.f1_setup(k, "f1", merged=True); ffn1.f1_loop(k, "f1")
    if 'pf' in opts.split():
        k("s_endpgm")
        k.label("mg_pf")
        k(f"s_sub_u32 s5, s5, {7*RH}\ns_load_dwordx4 s[16:19], s[0:1], {A_WK}\ns_load_dwordx2 s[20:21], s[0:1], {A_WO}")
        k("v_lshlrev_b32 v1, 6, v0\ns_lshl_b32 s6, s5, 14\nv_add_u32 v1, s6, v1\ns_waitcnt lgkmcnt(0)")
        n = 0
        PFPOL = 'nt' if 'pfnt' in opts else ''
        for ptr in ((16, 18) if 'pfkv' in opts else (16, 18, 20)):
            srd(k, 8, ptr, 4 << 20)
            k("s_mov_b32 s7, 0")
            for it in range(15):
                k(f"buffer_load_dword v{8 + (n % 32)}, v1, s[8:11], s7 offen {PFPOL}")
                if it < 14: k(f"s_add_u32 s7, s7, {18 * 16384}")
                n += 1
                if n % 16 == 0: k("s_waitcnt vmcnt(16)")
        k("s_waitcnt vmcnt(0)")
    k.label("mg_exit")
    k("s_endpgm")
    mega = k.finish()
    hdr = open('recurrent_scan__memory_aug_recurrent_mem_tr__dense_activation_mish__prompt.s.ref').read().split("; Override launch")[0]
    txt = hdr
    txt += f"; @launch grid=(256,1,1) block=(256,1,1) lds=163840\n"
    txt += DESIGN
    txt += '.amdgcn_target "amdgcn-amd-amdhsa--gfx950"\n.text\n'
    txt += kernel_text(NAME, mega, 512, 256)
    print("mega instrs", len(k.ins), "nops", k.nops, file=sys.stderr)
    return txt
if __name__ == "__main__":
    open(sys.argv[1], "w").write(build(opts=" ".join(sys.argv[2:])))
```
